```python
import torch

def _softmax(x, axis=-1):
    return torch.softmax(x, dim=axis)
def _gelu(x):
    return torch.nn.functional.gelu(x, approximate="tanh")
def _silu(x):
    return torch.nn.functional.silu(x)
def _sigmoid(x):
    return torch.sigmoid(x)
def _layernorm(x, axis=-1, eps=1e-5):
    m = x.mean(dim=axis, keepdim=True)
    v = x.var(dim=axis, keepdim=True, unbiased=False)
    return (x - m) / torch.sqrt(v + eps)
def _scatter_add(tgt, idx, src, axis=0):
    return tgt.clone().index_add_(axis, idx, src)
def _segment_sum(src, seg, n):
    out = torch.zeros((n,) + src.shape[1:], dtype=src.dtype)
    return out.index_add_(0, seg, src)
def _pad(x, pw):
    flat = tuple(v for pair in reversed(pw) for v in pair)
    return torch.nn.functional.pad(x, flat)

kernel_name = 'sequential_preLN__sliding_block__dense_activation_silu__prompt'

def setup_inputs():

    _w = (lambda a: (lambda t: t.to(torch.bfloat16) if t.is_floating_point() else t)(torch.as_tensor(a)))
    def _A_setup():
        B, S, D = 1, 2048, 640
        return {
            "x": _w((lambda *s: torch.randn(*s, dtype=torch.bfloat16) * 0.05)(B, S, D)),
            "wqkv": _w((lambda *s: torch.randn(*s, dtype=torch.bfloat16) * 0.05)(D, 3 * D)),
            "wo": _w((lambda *s: torch.randn(*s, dtype=torch.bfloat16) * 0.05)(D, D)),
        }
    _A_in = _A_setup()

    def _B_setup():
        B, S, D, F = 1, 2048, 640, 1536
        return {
            "x": _w((lambda *s: torch.randn(*s, dtype=torch.bfloat16) * 0.05)(B, S, D)),
            "w1": _w((lambda *s: torch.randn(*s, dtype=torch.bfloat16) * 3.2)(D, F) * (D ** -0.5)),
            "w2": _w((lambda *s: torch.randn(*s, dtype=torch.bfloat16) * 0.4)(F, D) * (F ** -0.5)),
        }
    _B_in = _B_setup()

    return {
        "A_x": _A_in["x"],
        "A_wqkv": _A_in["wqkv"],
        "A_wo": _A_in["wo"],
        "B_x": _B_in["x"],
        "B_w1": _B_in["w1"],
        "B_w2": _B_in["w2"],
    }

def reference(A_x, A_wqkv, A_wo, B_x, B_w1, B_w2):
    def _A_ref(x, wqkv, wo):
        B, S, D = x.shape
        H = 32; Dh = D // H; W = 256
        qkv = (lambda x, *d: x.permute(*d))((x @ wqkv).reshape(B, S, 3, H, Dh), 2, 0, 3, 1, 4)
        q, k, v = qkv[0], qkv[1], qkv[2]
        scores = torch.einsum("bhqd,bhkd->bhqk", q, k) * (Dh ** -0.5)
        idx = torch.arange(S)
        mask = (idx[:, None] - idx[None, :] >= 0) & (idx[:, None] - idx[None, :] < W)
        scores = torch.where(mask[None, None], scores, -1e9)
        p = _softmax(scores, axis=-1)
        o = torch.einsum("bhqk,bhkd->bhqd", p, v)
        return (lambda x, *d: x.permute(*d))(o, 0, 2, 1, 3).reshape(B, S, D) @ wo

    def _B_ref(x, w1, w2):
        h = torch.einsum("bsd,df->bsf", x, w1)
        h = _silu(h)
        out = torch.einsum("bsf,fd->bsd", h, w2)
        return out

    x = A_x
    h = x + _A_ref(_layernorm(x, axis=-1), A_wqkv, A_wo)
    h2 = h + _B_ref(_layernorm(h, axis=-1), B_w1, B_w2)
    return h2
```

```python
import re

def v(n, c=1):
    return f"v{n}" if c == 1 else f"v[{n}:{n+c-1}]"
def a(n, c=1):
    return f"a{n}" if c == 1 else f"a[{n}:{n+c-1}]"
def s(n, c=1):
    return f"s{n}" if c == 1 else f"s[{n}:{n+c-1}]"

TRANS = ("v_exp_f32", "v_log_f32", "v_rcp_f32", "v_rsq_f32", "v_sqrt_f32", "v_sin_f32", "v_cos_f32", "v_rcp_iflag_f32", "v_exp_f16")
_reg_re = re.compile(r"^(-|abs\()?\s*([vas])(\d+)\)?$")
_rng_re = re.compile(r"^(-)?([vas])\[(\d+):(\d+)\]$")

def regs_of(op):
    op = op.strip()
    m = _rng_re.match(op)
    if m:
        return {(m.group(2), i) for i in range(int(m.group(3)), int(m.group(4)) + 1)}
    m = _reg_re.match(op)
    if m:
        return {(m.group(2), int(m.group(3)))}
    if op == "vcc": return {("s", "vcc_lo"), ("s", "vcc_hi")}
    if op in ("vcc_lo", "vcc_hi", "m0", "exec_lo", "exec_hi"): return {("s", op)}
    if op == "exec": return {("s", "exec_lo"), ("s", "exec_hi")}
    return set()

class Ins:
    __slots__ = ("text", "mn", "ops", "mods", "kind", "defs", "uses", "label", "target", "nopn", "mfma_c", "mfma_ab", "passes")
    def __init__(self, text):
        self.text = text
        self.label = None; self.target = None; self.nopn = 0
        self.mfma_c = set(); self.mfma_ab = set(); self.passes = 0
        t = text.split(";")[0].strip()
        if t.endswith(":"):
            self.kind = "label"; self.label = t[:-1]; self.mn = ""; self.defs = set(); self.uses = set(); self.ops = []; return
        if not t or t.startswith("."):
            self.kind = "dir"; self.mn = ""; self.defs = set(); self.uses = set(); self.ops = []; return
        parts = t.split(None, 1)
        mn = parts[0]; self.mn = mn
        rest = parts[1] if len(parts) > 1 else ""
        ops = []; cur = ""; depth = 0
        for ch in rest:
            if ch in "[(": depth += 1
            if ch in "])": depth -= 1
            if ch == "," and depth == 0:
                ops.append(cur.strip()); cur = ""
            else:
                cur += ch
        if cur.strip(): ops.append(cur.strip())
        mods = ""
        if ops:
            sp = ops[-1].split(None, 1)
            if len(sp) > 1 and not sp[0].startswith("hwreg"):
                ops[-1] = sp[0]; mods = sp[1]
        self.ops = ops; self.mods = mods
        base = mn.replace("_e32", "").replace("_e64", "").replace("_dpp", "").replace("_sdwa", "")
        R = [regs_of(o) for o in ops]
        defs = set(); uses = set()
        def allu(lst):
            u = set()
            for r in lst: u |= r
            return u
        if mn.startswith("v_mfma"):
            self.kind = "mfma"
            defs = R[0]; self.mfma_ab = R[1] | R[2]; self.mfma_c = R[3] if len(R) > 3 else set()
            uses = self.mfma_ab | self.mfma_c
            self.passes = 8 if "32x32" in mn else 4
        elif mn.startswith("v_"):
            self.kind = "valu"
            if base.startswith("v_cmp"):
                defs = R[0]; uses = allu(R[1:])
                if base.startswith("v_cmpx"): defs |= regs_of("exec")
            elif base in ("v_readfirstlane_b32", "v_readlane_b32"):
                defs = R[0]; uses = allu(R[1:])
            elif "permlane" in base and "swap" in base:
                defs = R[0] | R[1]; uses = R[0] | R[1]
            elif base in ("v_add_co_u32", "v_sub_co_u32", "v_addc_co_u32", "v_subb_co_u32"):
                defs = R[0] | R[1]; uses = allu(R[2:])
            else:
                defs = R[0]; uses = allu(R[1:])
                if base in ("v_fmac_f32", "v_dot2c_f32_bf16", "v_writelane_b32", "v_pk_fmac_f16") or "dpp" in mn or "row_" in mods or "quad_perm" in mods:
                    uses |= R[0]
                if base == "v_cndmask_b32" and len(ops) == 3: uses |= regs_of("vcc")
        elif mn.startswith("s_"):
            if mn.startswith("s_atomic"):
                self.kind = "smem"; uses = allu(R)
            elif mn.startswith("s_load") or mn.startswith("s_buffer_load") or mn in ("s_memtime", "s_memrealtime"):
                self.kind = "smem"; defs = R[0]; uses = allu(R[1:])
            else:
                self.kind = "salu"
                if mn == "s_nop":
                    self.nopn = int(ops[0], 0)
                elif mn.startswith("s_cbranch") or mn == "s_branch":
                    self.target = ops[0]
                elif mn.startswith("s_cmp") or mn.startswith("s_bitcmp") or mn in ("s_waitcnt", "s_barrier", "s_endpgm", "s_setprio", "s_sleep"):
                    uses = allu(R)
                else:
                    if R: defs = R[0]; uses = allu(R[1:])
                    if "saveexec" in mn: defs |= regs_of("exec"); uses |= regs_of("exec")
        elif mn.startswith("ds_"):
            self.kind = "ds"
            if mn.startswith("ds_read") or mn.startswith("ds_bpermute") or mn.startswith("ds_swizzle") or mn.startswith("ds_permute"):
                defs = R[0]; uses = allu(R[1:])
            else:
                uses = allu(R)
        elif mn.startswith("buffer_") or mn.startswith("global_"):
            self.kind = "vmem"
            islds = " lds" in (" " + mods) or "load_lds" in mn
            if mn in ("buffer_inv", "buffer_wbl2"):
                pass
            elif "load" in mn and not islds:
                defs = R[0]; uses = allu(R[1:])
            elif "atomic" in mn and "sc0" in mods:
                defs = R[0]; uses = allu(R)
            else:
                uses = allu(R)
            if islds: uses |= {("s", "m0")}
        else:
            raise ValueError("unknown instruction: " + text)
        self.defs = defs; self.uses = uses

    def states(self):
        if self.kind in ("label", "dir"): return 0
        if self.mn == "s_nop": return self.nopn + 1
        return 1
    def is_trans(self):
        return self.mn.replace("_e32", "").replace("_e64", "") in TRANS
    def is_wide_store(self):
        return self.kind == "vmem" and "store" in self.mn and ("x3" in self.mn or "x4" in self.mn)
    def is_dpp(self):
        return self.kind == "valu" and ("dpp" in self.mn or "row_" in (self.mods or "") or "quad_perm" in (self.mods or ""))

def vg(rs): return {r for r in rs if r[0] in ("v", "a")}
def sg(rs): return {r for r in rs if r[0] == "s"}

def required(prev, cur):
    need = 0
    pk, ck = prev.kind, cur.kind
    if pk == "valu":
        pv = vg(prev.defs); ps = sg(prev.defs)
        if pv:
            if ck == "mfma" and (pv & cur.uses): need = max(need, 2)
            if ck == "valu":
                if cur.mn.startswith(("v_readlane", "v_readfirstlane")) and (pv & cur.uses): need = max(need, 1)
                if "permlane" in cur.mn and (pv & cur.uses): need = max(need, 2)
                if cur.is_dpp() and (pv & cur.uses): need = max(need, 2)
                if prev.is_trans() and not cur.is_trans() and (pv & cur.uses): need = max(need, 1)
            if prev.is_trans() and ck in ("vmem", "ds", "mfma") and (pv & cur.uses): need = max(need, 2)
        if ps:
            if ck == "valu" and (ps & cur.uses):
                need = max(need, 4 if cur.mn.startswith(("v_readlane", "v_writelane")) else 2)
            if ck == "vmem" and (ps & cur.uses): need = max(need, 5)
            if ck in ("salu", "smem") and (ps & cur.uses): need = max(need, 3)
            if ("s", "exec_lo") in ps:
                if ck == "mfma": need = max(need, 4)
                if ck == "valu": need = max(need, 5 if cur.is_dpp() else 4 if ("lane" in cur.mn) else 0)
    if pk == "valu" and prev.mn.startswith("v_dot"):
        if (prev.defs & (cur.uses | cur.defs)) and not (cur.mn == prev.mn and cur.ops and len(cur.ops) > 3 and regs_of(cur.ops[3]) == prev.defs and not (prev.defs & (regs_of(cur.ops[1]) | regs_of(cur.ops[2])))):
            need = max(need, 3)
    if pk == "mfma":
        p = prev.passes
        d = prev.defs
        if ck == "mfma":
            if d & cur.mfma_ab: need = max(need, p + 4)
            if d & cur.mfma_c:
                if not (cur.mfma_c == d and cur.passes == p): need = max(need, p + 2)
            if (d & cur.defs) and not (cur.mfma_c == d): need = max(need, p + 2)
        elif ck in ("valu", "vmem", "ds"):
            if d & (cur.uses | cur.defs): need = max(need, p + 4)
        if ck == "valu" and (prev.mfma_c & cur.defs): need = max(need, p - 1)
        if ck in ("ds", "vmem") and (prev.mfma_c & cur.defs): need = max(need, p - 1)
    if pk == "salu" and ("s", "m0") in prev.defs and ck == "vmem" and ("s", "m0") in cur.uses: need = max(need, 1)
    if pk == "salu" and ("s", "m0") in prev.defs and ck == "ds" and "addtid" in cur.mn: need = max(need, 1)
    if prev.is_wide_store():
        data = vg(regs_of(prev.ops[0])) if prev.mn.startswith("buffer") else vg(regs_of(prev.ops[1]))
        if data & vg(cur.defs): need = max(need, 2 if ck == "valu" else 1)
    if pk == "ds" and prev.mn in ("ds_write_b128", "ds_write_b96") and ck == "valu":
        if vg(regs_of(prev.ops[1])) & vg(cur.defs): need = max(need, 1)
    return need

MAXD = 20

class Asm:
    def __init__(self):
        self.L = []
        self.uid = 0
    def e(self, text):
        for ln in text.split("\n"):
            ln = ln.strip()
            if ln: self.L.append(Ins(ln))
    def c(self, text):
        self.L.append(Ins("; " + text)) if False else self.L.append(_Comment(text))
    def label(self, name): self.L.append(Ins(name + ":"))
    def newlabel(self, p="L"):
        self.uid += 1
        return f"{p}_{self.uid}"
    def extend(self, lst):
        for t in lst: self.e(t)

    def finalize(self):
        L = self.L
        labels = {}
        for i, x in enumerate(L):
            if x.kind == "label": labels[x.label] = i
        preds = {}
        for i, x in enumerate(L):
            if x.target is not None:
                preds.setdefault(labels[x.target], []).append(i)
        extra = [0] * len(L)
        def walk(i, cur, dist, best, seen):
            j = i - 1
            while j >= 0 and dist < MAXD:
                x = L[j]
                if x.kind == "label":
                    for pidx in preds.get(j, []):
                        key = (pidx, dist)
                        if key in seen: continue
                        seen.add(key)
                        best = walk(pidx + 1, cur, dist, best, seen)
                    j -= 1
                    continue
                if x.kind == "dir": j -= 1; continue
                if x.mn in ("s_branch", "s_endpgm") and j != i - 1 + 0 and False: pass
                r = required(x, cur)
                if r > dist: best = max(best, r - dist)
                dist += x.states() + extra[j]
                if x.mn in ("s_branch", "s_endpgm") and j < i - 1:
                    pass
                j -= 1
                if j >= 0 and L[j].mn in ("s_branch", "s_endpgm") and L[j].kind == "salu" and (j + 1 != i or True):
                    if L[j + 1].kind == "label" or True:
                        if not (j + 1 == i and getattr(cur, "_via", None) == j):
                            pass
            return best
        for i, x in enumerate(L):
            if x.kind in ("label", "dir"): continue
            n = walk(i, x, 0, 0, set())
            extra[i] = n
        out = []
        nn = 0
        for i, x in enumerate(L):
            n = extra[i]
            while n > 0:
                k = min(n, 16)
                out.append(f"    s_nop {k-1}"); n -= k; nn += 1
            if x.kind == "label": out.append(x.text)
            elif x.kind == "dir": out.append(x.text)
            else: out.append("    " + x.text)
        self.nops_inserted = nn
        return "\n".join(out) + "\n"

class _Comment(Ins):
    def __init__(self, t):
        self.text = "    ; " + t; self.kind = "dir"; self.mn = ""; self.defs = set(); self.uses = set(); self.ops = []
        self.label = None; self.target = None; self.nopn = 0; self.mods = ""
        self.mfma_c = set(); self.mfma_ab = set(); self.passes = 0
```

```python
import sys
from asmgen import *

NAME = "sequential_preLN__sliding_block__dense_activation_silu__prompt"

WS_FA    = 0x0; WS_FB = 0x8000; WS_ST1 = 0x10000; WS_CSQ = 0x14000; WS_CS1 = 0x16000; WS_ST2 = 0x20000
WS_QKV   = 0x100000; WS_O = 0x900000; WS_H = 0xC00000; WS_H1 = 0x1000000; WS_PROF = 0x2000000
WS_SIZE  = 0x10000000
CH = 2048 * 16
NSLOT = 4
PL = 6208
LDS_K = 0; LDS_V = 5 * PL; LDS_ONES = 10 * PL
LDS_ST1 = 69632
LDS_CSQ = LDS_ST1 + 1024
LDS_CTRL = 71680
LDS_WO = 81920

S_X, S_WQKV, S_WO, S_BX, S_W1, S_W2, S_OUT, S_DBG, S_WS = 4, 6, 8, 10, 12, 14, 16, 18, 20
SRD_A, SRD_W, SRD_WS, SRD_T = 24, 28, 32, 36
S_G, S_I, S_WV, S_T0, S_N0, S_R, S_T = 40, 41, 42, 43, 44, 45, 46
S_KA, S_KW, S_SLOT, S_FILL, S_IT, S_TMP, S_TMP2, S_TMP3 = 47, 48, 49, 50, 51, 52, 53, 54
S_XCC, S_MODE = 55, 56
S_EX = 58; S_M = 60; S_C1024 = 62; S_TMP4 = 63
S_STAMP = 64
SH = 64

class Gen:
    def __init__(self, stop=99, prof=False):
        self.A = Asm(); self.stop = stop; self.prof = prof
        self.nstamp = {}; self.role = None; self.exp = 0
        self.bars = {}
        self.stampnames = {}

    def e(self, t): self.A.e(t)
    def L(self, p="L"): return self.A.newlabel(p)
    def lab(self, n): self.A.label(n)

    def bar(self, name):
        self.bars.setdefault(self.role, []).append(name)
        self.e("s_barrier")

    def stamp(self, name=None):
        if not self.prof: return
        n = self.nstamp.get(self.role, {"P2": 16, "P3": 24, "P4": 32, "P5": 40}.get(self.role, 1))
        assert n < 60
        self.e("s_memtime s[98:99]")
        self.e("s_waitcnt lgkmcnt(0)")
        self.e(f"v_writelane_b32 v255, s98, {n}")
        self.stampnames.setdefault(self.role, []).append(name or f"s{n}")
        self.nstamp[self.role] = n + 1

    def itstamp(self, vreg):
        if not self.prof or not (self.exp & 2): return
        e = self.e
        e("s_memtime s[96:97]"); e("s_waitcnt lgkmcnt(0)"); e(f"s_mov_b32 m0, {s(S_IT)}"); e("s_nop 1"); e(f"v_writelane_b32 {v(vreg)}, s96, m0")

    def srd(self, q, ptr, off_sgpr=None, size=None, off_imm=0):
        e = self.e
        if off_sgpr is not None:
            e(f"s_add_u32 {s(q)}, {s(ptr)}, {s(off_sgpr)}")
            e(f"s_addc_u32 {s(q+1)}, {s(ptr+1)}, 0")
        else:
            e(f"s_mov_b32 {s(q)}, {s(ptr)}"); e(f"s_mov_b32 {s(q+1)}, {s(ptr+1)}")
        if off_imm:
            e(f"s_add_u32 {s(q)}, {s(q)}, {off_imm}"); e(f"s_addc_u32 {s(q+1)}, {s(q+1)}, 0")
        if off_sgpr is not None: e(f"s_sub_u32 {s(q+2)}, {size - off_imm}, {s(off_sgpr)}")
        else: e(f"s_mov_b32 {s(q+2)}, {size - off_imm}")
        e(f"s_mov_b32 {s(q+3)}, 0x20000")

    def p1_decode(self):
        e = self.e
        e(f"s_cmp_ge_u32 {s(S_I)}, 15")
        e(f"s_cselect_b32 {s(S_R)}, 1, 0")
        e(f"s_mul_i32 {s(S_TMP)}, {s(S_R)}, 15")
        e(f"s_sub_u32 {s(S_T)}, {s(S_I)}, {s(S_TMP)}")
        e(f"s_lshl_b32 {s(S_T0)}, {s(S_G)}, 8")
        e(f"s_lshl_b32 {s(S_TMP)}, {s(S_R)}, 7")
        e(f"s_add_u32 {s(S_T0)}, {s(S_T0)}, {s(S_TMP)}")
        e(f"s_lshl_b32 {s(S_N0)}, {s(S_T)}, 7")

    def clear_flags(self):
        e = self.e
        e("v_mov_b32 v2, 0")
        e(f"s_lshl_b32 {s(S_TMP)}, s2, 7")
        e(f"v_mov_b32 v3, {s(S_TMP)}")
        e(f"s_lshl_b32 {s(S_TMP)}, {s(S_G)}, 8")
        e(f"s_lshl_b32 {s(S_TMP2)}, {s(S_I)}, 2")
        e(f"s_add_u32 {s(S_TMP)}, {s(S_TMP)}, {s(S_TMP2)}")
        e(f"s_add_u32 {s(S_TMP)}, {s(S_TMP)}, {WS_FB}")
        e(f"v_mov_b32 v4, {s(S_TMP)}")
        e("v_cmp_eq_u32 vcc, 0, v0")
        e("v_cndmask_b32 v3, v4, v3, vcc")
        e("s_mov_b64 exec, 3")
        e(f"buffer_store_dword v2, v3, {s(SRD_WS,4)}, 0 offen sc1")
        e("s_mov_b64 exec, -1")

    def handshake_store(self):
        e = self.e
        e(f"s_lshl_b32 {s(S_TMP)}, {s(S_G)}, 5")
        e(f"s_add_u32 {s(S_TMP)}, {s(S_TMP)}, {s(S_I)}")
        e(f"s_and_b32 {s(S_TMP2)}, {s(S_TMP)}, 3")
        e(f"s_lshl_b32 {s(S_TMP2)}, {s(S_TMP2)}, 3")
        e(f"s_and_b32 {s(S_TMP)}, {s(S_TMP)}, 0xfc")
        e(f"s_or_b32 {s(S_TMP4)}, {s(S_XCC)}, 0x80")
        e(f"s_lshl_b32 {s(S_TMP4)}, {s(S_TMP4)}, {s(S_TMP2)}")
        e(f"s_atomic_or {s(S_TMP4)}, {s(S_DBG,2)}, {s(S_TMP)}")

    def set_fa(self, val):
        e = self.e
        e(f"s_lshl_b32 {s(S_TMP)}, s2, 7")
        e(f"v_mov_b32 v3, {s(S_TMP)}")
        e(f"v_mov_b32 v2, {val}")
        e("s_mov_b64 exec, 1")
        e(f"buffer_store_dword v2, v3, {s(SRD_WS,4)}, 0 offen sc1")
        e("s_mov_b64 exec, -1")

    def poll(self, vaddr, vneed, vtmp, preloaded=False):
        e = self.e
        L = self.L("L_poll"); L2 = self.L("L_poll")
        if preloaded: e(f"s_branch {L2}")
        self.lab(L)
        e(f"buffer_load_dword {v(vtmp)}, {v(vaddr)}, {s(SRD_WS,4)}, 0 offen sc1")
        self.lab(L2)
        e("s_waitcnt vmcnt(0)")
        e(f"v_cmp_lt_u32 {s(S_M,2)}, {v(vtmp)}, {v(vneed)}")
        e(f"s_cmp_eq_u64 {s(S_M,2)}, 0")
        e(f"s_cbranch_scc0 {L}")

    def wait_handshake(self, vhs, preloaded=False):
        e = self.e
        L = self.L("L_hs"); L2 = self.L("L_hs")
        if preloaded: e(f"s_branch {L2}")
        self.lab(L)
        e("v_lshlrev_b32 v2, 2, v0")
        e(f"global_load_dword {v(vhs)}, v2, {s(S_DBG,2)} sc1")
        self.lab(L2)
        e("s_waitcnt vmcnt(0)")
        e(f"v_and_b32 v4, 0x80808080, {v(vhs)}")
        e("v_cmp_ne_u32 vcc, 0x80808080, v4")
        e("s_cmp_eq_u64 vcc, 0")
        e(f"s_cbranch_scc0 {L}")
        e(f"s_or_b32 {s(S_TMP)}, {s(S_XCC)}, 0x80")
        e(f"s_mul_i32 {s(S_TMP)}, {s(S_TMP)}, 0x01010101")
        e(f"v_cmp_ne_u32 {s(S_M,2)}, {s(S_TMP)}, {v(vhs)}")
        e(f"s_lshl_b32 {s(S_TMP)}, {s(S_G)}, 3")
        e(f"s_lshr_b64 {s(S_M,2)}, {s(S_M,2)}, {s(S_TMP)}")
        e(f"s_and_b32 {s(S_M)}, {s(S_M)}, 0xff")
        e(f"s_cselect_b32 {s(S_MODE)}, 0, 1")

    def entry(self):
        e = self.e
        self.role = "all"
        e("s_cmp_ge_u32 s2, 256")
        e("s_cbranch_scc1 L_END")
        if self.prof: e(f"s_memtime s[98:99]")
        e(f"s_load_dwordx16 s[4:19], s[0:1], 0")
        e(f"s_load_dwordx2 s[20:21], s[0:1], 64")
        e("v_lshrrev_b32 v1, 6, v0")
        e("v_and_b32 v0, 63, v0")
        e(f"s_and_b32 {s(S_G)}, s2, 7")
        e(f"v_readfirstlane_b32 {s(S_WV)}, v1")
        e(f"s_lshr_b32 {s(S_I)}, s2, 3")
        e(f"s_mov_b32 {s(S_C1024)}, 1024")
        if self.prof:
            e("s_waitcnt lgkmcnt(0)")
            e("v_writelane_b32 v255, s98, 0")
        e(f"s_cmp_ge_u32 {s(S_I)}, 30")
        e("s_cbranch_scc1 L_COLSUM")
        self.p1_decode()
        e(f"s_cmp_lt_u32 {s(S_WV)}, 4")
        e("s_cbranch_scc1 L_C1")
        e(f"s_cmp_eq_u32 {s(S_WV)}, 6")
        e("s_cbranch_scc1 L_S1")
        e(f"s_cmp_eq_u32 {s(S_WV)}, 7")
        e("s_cbranch_scc1 L_X1")

    def p1_loader(self):
        e = self.e
        self.role = "L"
        V = 8
        Lw = self.L("L_w5"); Lj = self.L("L_j")
        e(f"s_cmp_eq_u32 {s(S_WV)}, 5")
        e(f"s_cbranch_scc1 {Lw}")
        e("v_lshrrev_b32 v1, 3, v0")
        e("v_mul_u32_u24 v1, 1280, v1")
        e("v_lshrrev_b32 v2, 4, v0")
        e("v_and_b32 v3, 7, v0")
        e("v_xor_b32 v4, v3, v2")
        e("v_xor_b32 v5, 4, v4")
        e(f"v_lshl_add_u32 {v(V)}, v4, 4, v1")
        e(f"v_lshl_add_u32 {v(V+1)}, v5, 4, v1")
        e(f"v_add_u32 {v(V+1)}, 10240, {v(V+1)}")
        for q in range(2, 16):
            e(f"v_add_u32 {v(V+q)}, 20480, {v(V+q-2)}")
        e(f"s_mul_i32 {s(S_TMP)}, {s(S_T0)}, 1280")
        e(f"s_mov_b32 {s(S_KW)}, 128")
        e(f"s_mov_b32 {s(S_TMP3)}, 0")
        e("s_waitcnt lgkmcnt(0)")
        self.srd(SRD_A, S_X, S_TMP, 2048 * 1280)
        e(f"s_branch {Lj}")
        self.lab(Lw)
        e("v_lshrrev_b32 v2, 4, v0")
        e("v_mul_u32_u24 v1, 3840, v2")
        e("v_and_b32 v3, 15, v0")
        e("v_lshlrev_b32 v4, 2, v2")
        e("v_xor_b32 v3, v3, v4")
        e(f"v_lshl_add_u32 {v(V)}, v3, 4, v1")
        for q in range(1, 16):
            e(f"v_add_u32 {v(V+q)}, 15360, {v(V+q-1)}")
        e(f"s_lshl_b32 {s(S_TMP)}, {s(S_N0)}, 1")
        e(f"s_mov_b32 {s(S_KW)}, {64*3840}")
        e(f"s_mov_b32 {s(S_TMP3)}, 16384")
        e("s_waitcnt lgkmcnt(0)")
        self.srd(SRD_A, S_WQKV, S_TMP, 640 * 3840)
        self.lab(Lj)
        e(f"s_mov_b32 {s(S_KA)}, 0")
        def stage(m0init):
            e(m0init)
            for q in range(16):
                if q: e(f"s_add_u32 m0, m0, {s(S_C1024)}")
                e(f"buffer_load_dwordx4 {v(V+q)}, {s(SRD_A,4)}, {s(S_KA)} offen lds")
            e(f"s_add_u32 {s(S_KA)}, {s(S_KA)}, {s(S_KW)}")
        self.stamp()
        for st in range(3): stage(f"s_add_u32 m0, {s(S_TMP3)}, {st*32768}")
        self.srd(SRD_WS, S_WS, size=WS_SIZE)
        self.stamp()
        e("s_waitcnt vmcnt(32)")
        self.bar("B0")
        stage(f"s_add_u32 m0, {s(S_TMP3)}, {3*32768}")
        e(f"s_mov_b32 {s(S_IT)}, 0")
        e(f"s_mov_b32 {s(S_FILL)}, 0")
        self.lab("L_L1LOOP")
        La = self.L("L_a"); Lb = self.L("L_b"); Lt = self.L("L_t"); Ls = self.L("L_s")
        self.itstamp(250)
        e(f"s_cmp_eq_u32 {s(S_IT)}, 7"); e(f"s_cbranch_scc1 {La}")
        e(f"s_cmp_gt_u32 {s(S_IT)}, 7"); e(f"s_cbranch_scc1 {Lb}")
        e("s_waitcnt vmcnt(32)"); e(f"s_branch {Lt}")
        self.lab(La); e("s_waitcnt vmcnt(16)"); e(f"s_branch {Lt}")
        self.lab(Lb); e("s_waitcnt vmcnt(0)")
        self.lab(Lt)
        self.itstamp(251)
        self.bar("B1loop")
        self.itstamp(252)
        e(f"s_cmp_gt_u32 {s(S_IT)}, 5")
        e(f"s_cbranch_scc1 {Ls}")
        stage(f"s_add_u32 m0, {s(S_TMP3)}, {s(S_FILL)}")
        self.lab(Ls)
        self.itstamp(253)
        e(f"s_add_u32 {s(S_FILL)}, {s(S_FILL)}, 32768")
        e(f"s_and_b32 {s(S_FILL)}, {s(S_FILL)}, {NSLOT*32768-1}")
        e(f"s_add_u32 {s(S_IT)}, {s(S_IT)}, 1")
        e(f"s_cmp_lt_u32 {s(S_IT)}, 10")
        e("s_cbranch_scc1 L_L1LOOP")
        self.stamp("L1end")
        self.bar("BE1")
        e("s_branch L_P2")

    def p1_sync(self):
        e = self.e
        self.role = "S"
        self.lab("L_S1")
        e("s_waitcnt lgkmcnt(0)")
        self.srd(SRD_WS, S_WS, size=WS_SIZE)
        e(f"s_getreg_b32 {s(S_XCC)}, hwreg(HW_REG_XCC_ID, 0, 4)")
        self.clear_flags()
        self.stat_part(0)
        self.bar("B0")
        e("s_waitcnt vmcnt(0)")
        if not (self.exp & 4): self.handshake_store()
        self.stat_compute(0)
        e(f"s_mov_b32 {s(S_IT)}, 0")
        self.lab("L_S1LOOP")
        La = self.L(); Lb = self.L(); Lc = self.L(); Lx = self.L(); Ly = self.L(); Lp = self.L(); Lq = self.L(); Lr = self.L()
        e(f"s_cmp_eq_u32 {s(S_IT)}, 1"); e(f"s_cbranch_scc1 {La}")
        e(f"s_cmp_eq_u32 {s(S_IT)}, 5"); e(f"s_cbranch_scc1 {Lb}")
        e(f"s_cmp_eq_u32 {s(S_IT)}, 7"); e(f"s_cbranch_scc1 {Lc}")
        e(f"s_branch {Lx}")
        self.lab(La); e("s_waitcnt vmcnt(0)"); e(f"s_branch {Lx}")
        self.lab(Lb)
        if not (self.exp & 12): self.s_hs_verify(); self.s_flags_issue()
        e(f"s_branch {Lx}")
        self.lab(Lc)
        if not (self.exp & 12): self.s_flags_verify()
        self.lab(Lx)
        self.bar("B1loop")
        e(f"s_cmp_eq_u32 {s(S_IT)}, 1"); e(f"s_cbranch_scc1 {Lp}")
        e(f"s_cmp_eq_u32 {s(S_IT)}, 3"); e(f"s_cbranch_scc1 {Lq}")
        e(f"s_branch {Ly}")
        self.lab(Lp)
        e(f"s_cmp_ge_u32 {s(S_T)}, 8"); e(f"s_cbranch_scc1 {Ly}")
        self.set_fa(1)
        e(f"s_branch {Ly}")
        self.lab(Lq)
        if not (self.exp & 12): self.s_hs_issue(first=True)
        self.lab(Ly)
        e(f"s_add_u32 {s(S_IT)}, {s(S_IT)}, 1")
        e(f"s_cmp_lt_u32 {s(S_IT)}, 10")
        e("s_cbranch_scc1 L_S1LOOP")
        self.bar("BE1")
        self.set_fa(2)
        e("s_branch L_P2")

    def s_hs_issue(self, first=False):
        e = self.e
        glc = "" if first else " glc"
        if not first: e("s_sleep 8")
        e(f"s_lshl_b32 {s(S_TMP)}, {s(S_G)}, 5")
        e(f"s_load_dwordx8 s[{SH}:{SH+7}], {s(S_DBG,2)}, {s(S_TMP)}{glc}")
        e(f"s_add_u32 {s(S_TMP)}, {s(S_G)}, 7")
        e(f"s_and_b32 {s(S_TMP)}, {s(S_TMP)}, 7")
        e(f"s_lshl_b32 {s(S_TMP)}, {s(S_TMP)}, 5")
        e(f"s_load_dwordx8 s[{SH+8}:{SH+15}], {s(S_DBG,2)}, {s(S_TMP)}{glc}")
        e(f"s_lshr_b32 {s(S_TMP)}, {s(S_T)}, 1")
        e(f"s_lshl_b32 {s(S_TMP)}, {s(S_TMP)}, 5")
        e(f"s_add_u32 {s(S_TMP)}, {s(S_TMP)}, 28")
        e(f"s_load_dword s{SH+16}, {s(S_DBG,2)}, {s(S_TMP)}{glc}")

    def s_hs_verify(self):
        e = self.e
        L = self.L("L_hs"); L2 = self.L("L_hs")
        e(f"s_branch {L2}")
        self.lab(L)
        self.s_hs_issue()
        self.lab(L2)
        e(f"s_or_b32 {s(S_TMP3)}, {s(S_XCC)}, 0x80")
        e(f"s_mul_i32 {s(S_TMP3)}, {s(S_TMP3)}, 0x01010101")
        e("s_waitcnt lgkmcnt(0)")
        e(f"s_or_b32 {s(S_TMP)}, s{SH+16}, 0x00008080")
        for q in range(16): e(f"s_and_b32 {s(S_TMP)}, {s(S_TMP)}, s{SH+q}")
        e(f"s_and_b32 {s(S_TMP)}, {s(S_TMP)}, 0x80808080")
        e(f"s_cmp_eq_u32 {s(S_TMP)}, 0x80808080")
        e(f"s_cbranch_scc0 {L}")
        e(f"s_mov_b32 {s(S_TMP2)}, 0")
        for q in range(8):
            e(f"s_xor_b32 {s(S_TMP4)}, s{SH+q}, {s(S_TMP3)}")
            e(f"s_or_b32 {s(S_TMP2)}, {s(S_TMP2)}, {s(S_TMP4)}")
        e(f"s_cmp_eq_u32 {s(S_TMP2)}, 0")
        e(f"s_cselect_b32 {s(S_MODE)}, 1, 0")

    def s_flags_issue(self, first=True):
        e = self.e
        glc = "" if first else " glc"
        if not first: e("s_sleep 8")
        e(f"s_mul_i32 {s(S_TMP)}, {s(S_R)}, 15")
        e(f"s_lshl_b32 {s(S_TMP)}, {s(S_TMP)}, 3")
        e(f"s_or_b32 {s(S_TMP)}, {s(S_TMP)}, {s(S_G)}")
        e(f"s_lshl_b32 {s(S_TMP)}, {s(S_TMP)}, 7")
        e(f"s_add_u32 {s(S_M)}, {s(S_WS)}, {s(S_TMP)}")
        e(f"s_addc_u32 {s(S_M+1)}, {s(S_WS+1)}, 0")
        for q in range(8):
            e(f"s_load_dword s{SH+q}, {s(S_M,2)}, {q*8*128}{glc}")
        e(f"s_and_b32 {s(S_TMP)}, {s(S_T)}, 1")
        e(f"s_add_u32 {s(S_TMP)}, {s(S_TMP)}, 30")
        e(f"s_lshl_b32 {s(S_TMP)}, {s(S_TMP)}, 3")
        e(f"s_lshr_b32 {s(S_TMP2)}, {s(S_T)}, 1")
        e(f"s_or_b32 {s(S_TMP)}, {s(S_TMP)}, {s(S_TMP2)}")
        e(f"s_lshl_b32 {s(S_TMP)}, {s(S_TMP)}, 7")
        e(f"s_load_dword s{SH+8}, {s(S_WS,2)}, {s(S_TMP)}{glc}")

    def s_flags_verify(self):
        e = self.e
        L = self.L("L_fl"); L2 = self.L("L_fl")
        e(f"s_branch {L2}")
        self.lab(L)
        self.s_flags_issue(first=False)
        self.lab(L2)
        e("s_waitcnt lgkmcnt(0)")
        e(f"s_mov_b32 {s(S_TMP)}, -1")
        for q in range(9): e(f"s_min_u32 {s(S_TMP)}, {s(S_TMP)}, s{SH+q}")
        e(f"s_cmp_ge_u32 {s(S_TMP)}, 1")
        e(f"s_cbranch_scc0 {L}")

    def stat_part(self, half):
        e = self.e
        Lns = self.L("L_nostat")
        self.srd(SRD_T, S_X, size=2048 * 1280)
        e(f"s_cmp_ge_u32 {s(S_T)}, 8")
        e(f"s_cbranch_scc1 {Lns}")
        e(f"s_lshl_b32 {s(S_TMP)}, {s(S_T)}, 4")
        e(f"s_add_u32 {s(S_TMP)}, {s(S_TMP)}, {s(S_T0)}")
        e(f"s_add_u32 {s(S_TMP)}, {s(S_TMP)}, {8*half}")
        e(f"v_lshrrev_b32 v1, 4, v0")
        e(f"v_add_u32 v7, {s(S_TMP)}, v1")
        e(f"v_mul_u32_u24 v2, 1280, v7")
        e(f"v_and_b32 v1, 15, v0")
        e(f"v_lshl_add_u32 v2, v1, 4, v2")
        e(f"v_add_u32 v5, {4*1280}, v2")
        for p in range(2):
            for m in range(5):
                e(f"buffer_load_dwordx4 {v(32+20*p+4*m,4)}, {'v2' if p == 0 else 'v5'}, {s(SRD_T,4)}, 0 offen offset:{256*m}")
        self.lab(Lns)

    def stat_compute(self, half):
        e = self.e
        Lns = self.L("L_nostat")
        e(f"s_cmp_ge_u32 {s(S_T)}, 8")
        e(f"s_cbranch_scc1 {Lns}")
        for p in range(2):
            a_, b_ = 72 + 2 * p, 73 + 2 * p
            e(f"v_mov_b32 {v(a_)}, 0"); e(f"v_mov_b32 {v(b_)}, 0")
        e("v_mov_b32 v4, 0x3f803f80")
        for i in range(20):
            for p in range(2):
                a_, b_ = 72 + 2 * p, 73 + 2 * p
                e(f"v_dot2_f32_bf16 {v(a_)}, {v(32+20*p+i)}, v4, {v(a_)}")
                e(f"v_dot2_f32_bf16 {v(b_)}, {v(32+20*p+i)}, {v(32+20*p+i)}, {v(b_)}")
        for sh in (8, 4, 2, 1):
            for r in range(72, 76):
                e(f"v_add_f32_dpp {v(r)}, {v(r)}, {v(r)} row_ror:{sh} row_mask:0xf bank_mask:0xf")
        e("v_lshlrev_b32 v7, 3, v7")
        e(f"v_add_u32 v7, {WS_ST1}, v7")
        e("v_and_b32 v6, 15, v0")
        e("v_cmp_eq_u32 vcc, 0, v6")
        for p in range(2):
            a_, b_ = 72 + 2 * p, 73 + 2 * p
            o = 76 + 2 * p
            e(f"v_mul_f32 {v(a_)}, 0x3acccccd, {v(a_)}")
            e(f"v_mul_f32 {v(b_)}, 0x3acccccd, {v(b_)}")
            e(f"v_fma_f32 {v(b_)}, -{v(a_)}, {v(a_)}, {v(b_)}")
            e(f"v_max_f32 {v(b_)}, 0, {v(b_)}")
            e(f"v_add_f32 {v(b_)}, 0x3727c5ac, {v(b_)}")
            e(f"v_rsq_f32 {v(o)}, {v(b_)}")
            e(f"v_mul_f32 {v(o+1)}, -1.0, {v(a_)}")
            e(f"v_mul_f32 {v(o+1)}, {v(o+1)}, {v(o)}")
        e(f"s_and_saveexec_b64 {s(S_EX,2)}, vcc")
        e(f"buffer_store_dwordx2 v[76:77], v7, {s(SRD_WS,4)}, 0 offen sc1")
        e(f"buffer_store_dwordx2 v[78:79], v7, {s(SRD_WS,4)}, 0 offen offset:32 sc1")
        e(f"s_mov_b64 exec, {s(S_EX,2)}")
        self.lab(Lns)

    def p1_aux(self):
        e = self.e
        self.role = "X"
        self.lab("L_X1")
        e("s_waitcnt lgkmcnt(0)")
        self.srd(SRD_WS, S_WS, size=WS_SIZE)
        self.stat_part(1)
        self.bar("B0")
        e("s_waitcnt vmcnt(0)")
        self.stat_compute(1)
        e(f"s_mov_b32 {s(S_IT)}, 0")
        self.lab("L_X1LOOP")
        Lx = self.L(); Ly = self.L(); Lz = self.L()
        e(f"s_cmp_eq_u32 {s(S_IT)}, 1"); e(f"s_cbranch_scc1 {Lz}")
        e(f"s_cmp_lg_u32 {s(S_IT)}, 9"); e(f"s_cbranch_scc1 {Lx}")
        self.lab(Lz)
        e("s_waitcnt vmcnt(0)")
        self.lab(Lx)
        self.bar("B1loop")
        e(f"s_cmp_lg_u32 {s(S_IT)}, 7"); e(f"s_cbranch_scc1 {Ly}")
        e(f"s_lshl_b32 {s(S_TMP)}, {s(S_T0)}, 3")
        e(f"s_add_u32 {s(S_TMP)}, {s(S_TMP)}, {WS_ST1}")
        e("v_lshlrev_b32 v2, 4, v0")
        e(f"s_mov_b32 m0, {LDS_ST1}")
        e("s_nop 0")
        e(f"buffer_load_dwordx4 v2, {s(SRD_WS,4)}, {s(S_TMP)} offen sc1 lds")
        e(f"s_lshl_b32 {s(S_TMP)}, {s(S_N0)}, 2")
        e(f"s_add_u32 {s(S_TMP)}, {s(S_TMP)}, {WS_CSQ}")
        e(f"s_mov_b32 m0, {LDS_CSQ}")
        e("s_mov_b32 exec_hi, 0")
        e(f"buffer_load_dwordx4 v2, {s(SRD_WS,4)}, {s(S_TMP)} offen sc1 lds")
        e("s_mov_b64 exec, -1")
        self.lab(Ly)
        e(f"s_add_u32 {s(S_IT)}, {s(S_IT)}, 1")
        e(f"s_cmp_lt_u32 {s(S_IT)}, 10")
        e("s_cbranch_scc1 L_X1LOOP")
        self.bar("BE1")
        e("s_branch L_P2")

    def p1_compute(self):
        e = self.e
        self.role = "C"
        self.lab("L_C1")
        ACC = 64; FA_ = 128; FB_ = 144
        VB, VA = 16, 20; VBc, VAc = 24, 28
        STT = 56; CS = 160; VST = 60
        e("v_and_b32 v1, 31, v0")
        e("v_lshrrev_b32 v2, 5, v0")
        e("v_bfe_u32 v3, v0, 1, 3")
        e("v_xor_b32 v3, v3, v2")
        e("v_lshlrev_b32 v3, 4, v3")
        e(f"s_lshr_b32 {s(S_TMP)}, {s(S_WV)}, 1")
        e(f"s_lshl_b32 {s(S_TMP)}, {s(S_TMP)}, 13")
        e("v_lshl_add_u32 v3, v1, 7, v3")
        e(f"v_add_u32 {v(VB)}, {s(S_TMP)}, v3")
        for ks in range(1, 4):
            e(f"v_xor_b32 {v(VB+ks)}, {32*ks}, {v(VB)}")
        e("v_bfe_u32 v3, v0, 2, 2")
        e("v_lshl_add_u32 v4, v2, 3, v3")
        e("v_lshlrev_b32 v4, 8, v4")
        e("v_bfe_u32 v5, v0, 4, 1")
        e("v_lshlrev_b32 v5, 1, v5")
        e("v_bfe_u32 v6, v0, 1, 1")
        e("v_or_b32 v5, v5, v6")
        e(f"s_and_b32 {s(S_TMP)}, {s(S_WV)}, 1")
        e(f"s_lshl_b32 {s(S_TMP)}, {s(S_TMP)}, 3")
        e(f"v_or_b32 v5, {s(S_TMP)}, v5")
        e("v_lshlrev_b32 v6, 2, v3")
        e("v_xor_b32 v5, v5, v6")
        e("v_lshl_add_u32 v4, v5, 4, v4")
        e("v_and_b32 v6, 1, v0")
        e("v_lshl_add_u32 v4, v6, 3, v4")
        e(f"v_add_u32 {v(VA)}, 16384, v4")
        e(f"v_xor_b32 {v(VA+1)}, 64, {v(VA)}")
        for i in range(0, 64, 2):
            e(f"v_mov_b64 {v(ACC+i,2)}, 0")
        e(f"s_lshr_b32 {s(S_TMP)}, {s(S_WV)}, 1")
        e(f"s_lshl_b32 {s(S_TMP)}, {s(S_TMP)}, 6")
        e(f"s_add_u32 {s(S_TMP)}, {s(S_TMP)}, {s(S_T0)}")
        e("v_and_b32 v1, 31, v0")
        e(f"v_add_u32 v2, {s(S_TMP)}, v1")
        e(f"s_lshr_b32 {s(S_TMP4)}, {s(S_WV)}, 1")
        e(f"s_lshl_b32 {s(S_TMP4)}, {s(S_TMP4)}, 9")
        e(f"s_add_u32 {s(S_TMP4)}, {s(S_TMP4)}, {LDS_ST1}")
        e("v_lshlrev_b32 v61, 3, v1")
        e(f"v_add_u32 v61, {s(S_TMP4)}, v61")
        e(f"s_and_b32 {s(S_TMP2)}, {s(S_WV)}, 1")
        e(f"s_lshl_b32 {s(S_TMP2)}, {s(S_TMP2)}, 6")
        e(f"s_add_u32 {s(S_TMP2)}, {s(S_TMP2)}, {s(S_N0)}")
        e("v_lshrrev_b32 v4, 5, v0")
        e(f"v_lshlrev_b32 v62, 4, v4")
        e(f"s_and_b32 {s(S_TMP)}, {s(S_WV)}, 1")
        e(f"s_lshl_b32 {s(S_TMP)}, {s(S_TMP)}, 8")
        e(f"s_add_u32 {s(S_TMP)}, {s(S_TMP)}, {LDS_CSQ}")
        e(f"v_add_u32 v62, {s(S_TMP)}, v62")
        e(f"s_lshr_b32 {s(S_TMP2)}, {s(S_TMP2)}, 3")
        e(f"v_add_u32 v5, {s(S_TMP2)}, v4")
        e(f"v_lshlrev_b32 v5, 15, v5")
        e("v_lshl_add_u32 v5, v2, 4, v5")
        e(f"v_add_u32 {v(VST)}, {WS_QKV}, v5")
        def reads(ks, setn):
            fa = FA_ + 8 * setn; fb = FB_ + 8 * setn
            o = []
            for f in range(2):
                for u in range(2):
                    o.append(f"ds_read_b64_tr_b16 {v(fa+4*f+2*u,2)}, {v(VAc+f)} offset:{ks*4096+u*1024}")
            for tt in range(2):
                o.append(f"ds_read_b128 {v(fb+4*tt,4)}, {v(VBc+ks)} offset:{tt*4096}")
            return [o[0], o[1], o[4], o[5], o[2], o[3]]
        def mfmas(setn):
            fa = FA_ + 8 * setn; fb = FB_ + 8 * setn
            o = []
            for f, tt in ((0, 0), (0, 1), (1, 0), (1, 1)):
                d = ACC + 16 * (2 * f + tt)
                o.append(f"v_mfma_f32_32x32x16_bf16 {v(d,16)}, {v(fa+4*f,4)}, {v(fb+4*tt,4)}, {v(d,16)}")
            return o
        def set_slot():
            o = []
            for ks in range(4): o.append(f"v_add_u32 {v(VBc+ks)}, {s(S_SLOT)}, {v(VB+ks)}")
            for f in range(2): o.append(f"v_add_u32 {v(VAc+f)}, {s(S_SLOT)}, {v(VA+f)}")
            return o
        e(f"s_mov_b32 {s(S_SLOT)}, 0")
        e(f"s_mov_b32 {s(S_IT)}, 0")
        for t in set_slot(): e(t)
        e("s_waitcnt lgkmcnt(0)")
        self.srd(SRD_WS, S_WS, size=WS_SIZE)
        self.stamp()
        self.bar("B0")
        self.stamp()
        for t in reads(0, 0): e(t)
        self.lab("L_C1LOOP")
        for ks in range(3):
            cur = ks & 1; nxt = cur ^ 1
            r = reads(ks + 1, nxt); m = mfmas(cur)
            e("s_waitcnt lgkmcnt(0)")
            e(m[0]); e(r[0]); e(r[1]); e(m[1]); e(r[2]); e(r[3]); e(m[2]); e(r[4]); e(r[5])
            if ks == 2:
                e(f"s_add_u32 {s(S_SLOT)}, {s(S_SLOT)}, 32768")
                e(f"s_cmp_eq_u32 {s(S_SLOT)}, {NSLOT*32768}")
                e(f"s_cselect_b32 {s(S_SLOT)}, 0, {s(S_SLOT)}")
            e(m[3])
            if ks == 2:
                for t in set_slot(): e(t)
        m = mfmas(1)
        r = reads(0, 0)
        e("s_waitcnt lgkmcnt(0)")
        if self.exp & 2: self.itstamp(252)
        self.bar("B1loop")
        if self.exp & 2: self.itstamp(253)
        e(m[0]); e(r[0]); e(r[1]); e(m[1]); e(r[2]); e(r[3]); e(m[2]); e(r[4]); e(r[5]); e(m[3])
        e(f"s_add_u32 {s(S_IT)}, {s(S_IT)}, 1")
        e(f"s_cmp_lt_u32 {s(S_IT)}, 10")
        e("s_cbranch_scc1 L_C1LOOP")
        self.stamp()
        e(f"s_cmp_lt_u32 {s(S_T)}, 5")
        e(f"s_cselect_b32 {s(S_TMP)}, 0x3ea52b48, 1.0")
        e(f"ds_read_b64 {v(STT,2)}, v61")
        e(f"ds_read_b64 {v(STT+2,2)}, v61 offset:256")
        for f in range(2):
            for j in range(4):
                e(f"ds_read_b128 {v(CS+16*f+4*j,4)}, v62 offset:{(32*f+8*j)*4}")
        e("s_waitcnt lgkmcnt(0)")
        for tt in range(2):
            e(f"v_mul_f32 {v(STT+2*tt)}, {s(S_TMP)}, {v(STT+2*tt)}")
            e(f"v_mul_f32 {v(STT+2*tt+1)}, {s(S_TMP)}, {v(STT+2*tt+1)}")
        PK = 192
        nst = 0
        for f in range(2):
            for tt in range(2):
                d = ACC + 16 * (2 * f + tt)
                ab = STT + 2 * tt
                for i in range(0, 16, 2):
                    e(f"v_pk_mul_f32 {v(d+i,2)}, {v(d+i,2)}, {v(ab,2)} op_sel_hi:[1,0]")
                for i in range(0, 16, 2):
                    e(f"v_pk_fma_f32 {v(d+i,2)}, {v(CS+16*f+i,2)}, {v(ab,2)}, {v(d+i,2)} op_sel:[0,1,0] op_sel_hi:[1,1,1]")
                pk = PK + 8 * (nst & 1)
                for jj in range(2):
                    p = pk + 4 * jj
                    for q in range(4):
                        e(f"v_cvt_pk_bf16_f32 {v(p+q)}, {v(d+8*jj+2*q)}, {v(d+8*jj+2*q+1)}")
                    e(f"v_permlane32_swap_b32 {v(p)}, {v(p+2)}")
                    e(f"v_permlane32_swap_b32 {v(p+1)}, {v(p+3)}")
                    off = (4 * f + 2 * jj) * CH + tt * 512
                    hi, lo = off >> 12, off & 4095
                    e(f"s_mov_b32 {s(S_TMP)}, {hi << 12}")
                    e(f"buffer_store_dwordx4 {v(p,4)}, {v(VST)}, {s(SRD_WS,4)}, {s(S_TMP)} offen offset:{lo} sc1")
                nst += 1
        self.stamp("st_issued")
        e("s_waitcnt vmcnt(0)")
        self.stamp("st_drained")
        self.bar("BE1")
        e("s_branch L_P2")


    def store_mode(self, instr_list):
        e = self.e
        La = self.L("L_sm"); Lb = self.L("L_sm")
        e(f"s_cmp_eq_u32 {s(S_MODE)}, 1")
        e(f"s_cbranch_scc1 {La}")
        for t in instr_list: e(t if t.startswith("s_") or t.startswith("v_") else t + " sc1")
        e(f"s_branch {Lb}")
        self.lab(La)
        for t in instr_list: e(t)
        self.lab(Lb)

    def set_fb(self, val):
        e = self.e
        e(f"s_lshl_b32 {s(S_TMP)}, {s(S_G)}, 8")
        e(f"s_lshl_b32 {s(S_TMP2)}, {s(S_I)}, 2")
        e(f"s_add_u32 {s(S_TMP)}, {s(S_TMP)}, {s(S_TMP2)}")
        e(f"s_add_u32 {s(S_TMP)}, {s(S_TMP)}, {WS_FB}")
        e(f"v_mov_b32 v2, {val}")
        e(f"v_mov_b32 v3, 0")
        e("s_mov_b64 exec, 1")
        self.store_mode([f"buffer_store_dword v2, v3, {s(SRD_WS,4)}, {s(S_TMP)} offen"])
        e("s_mov_b64 exec, -1")

    def phase2(self):
        e = self.e
        self.role = "P2"
        S_P, S_R2, S_TQ, S_QT, S_HD = S_T, S_R, S_T0, S_KA, S_KW
        S_MK = 66
        VQ0, VQ1 = 8, 12
        KF = (16, 24); VF = (32, 40); OA = 48; BM = 64
        VK0, VK1, VV = 72, 73, 74
        T = [96 + 16 * j for j in range(9)]
        self.lab("L_P2")
        self.stamp("P2in")
        e(f"s_and_b32 {s(S_P)}, {s(S_I)}, 15")
        e(f"s_lshr_b32 {s(S_R2)}, {s(S_I)}, 4")
        e(f"s_lshl_b32 {s(S_TQ)}, {s(S_G)}, 8")
        e(f"s_lshl_b32 {s(S_TMP)}, {s(S_R2)}, 7")
        e(f"s_add_u32 {s(S_TQ)}, {s(S_TQ)}, {s(S_TMP)}")
        e(f"s_and_b32 {s(S_QT)}, {s(S_WV)}, 3")
        e(f"s_lshr_b32 {s(S_HD)}, {s(S_WV)}, 2")
        Lns = self.L("L_ns")
        e(f"s_cmp_lg_u32 {s(S_WV)}, 6")
        e(f"s_cbranch_scc1 {Lns}")
        self.s_hs_all()
        e("v_mul_u32_u24 v2, 43, v0")
        e("v_lshrrev_b32 v2, 8, v2")
        e("v_mul_u32_u24 v3, 6, v2")
        e("v_sub_u32 v3, v0, v3")
        e("v_lshrrev_b32 v4, 1, v3")
        e("v_and_b32 v3, 1, v3")
        e(f"s_lshl_b32 {s(S_TMP)}, {s(S_G)}, 1")
        e(f"s_add_u32 {s(S_TMP)}, {s(S_TMP)}, {s(S_R2)}")
        e(f"v_sub_u32 v5, {s(S_TMP)}, v4")
        e(f"s_mul_i32 {s(S_TMP)}, {s(S_P)}, 5")
        e(f"v_lshl_add_u32 v6, v3, 2, {s(S_TMP)}")
        e("v_lshrrev_b32 v6, 4, v6")
        e("v_mul_u32_u24 v7, 5, v2")
        e("v_add_u32 v6, v6, v7")
        e("v_and_b32 v7, 1, v5")
        e("v_mul_u32_u24 v7, 15, v7")
        e("v_add_u32 v6, v6, v7")
        e("v_lshlrev_b32 v6, 3, v6")
        e("v_ashrrev_i32 v7, 1, v5")
        e("v_add_u32 v6, v6, v7")
        e("v_lshlrev_b32 v8, 7, v6")
        e("v_cmp_gt_u32 vcc, 18, v0")
        e(f"v_cmp_le_i32 {s(S_M,2)}, 0, v5")
        e(f"s_and_b64 vcc, vcc, {s(S_M,2)}")
        e(f"v_cmp_eq_u32 {s(S_M,2)}, 0, v2")
        e(f"v_cmp_lt_u32 {s(S_EX,2)}, 0, v4")
        e(f"s_and_b64 {s(S_M,2)}, {s(S_M,2)}, {s(S_EX,2)}")
        e(f"s_andn2_b64 vcc, vcc, {s(S_M,2)}")
        e("v_cndmask_b32 v8, 0, v8, vcc")
        e("v_cndmask_b32 v9, 0, 2, vcc")
        self.poll(8, 9, 10)
        e(f"v_mov_b32 v2, {s(S_MODE)}")
        e(f"v_mov_b32 v3, {LDS_CTRL}")
        e("ds_write_b32 v3, v2")
        e("s_waitcnt lgkmcnt(0)")
        self.lab(Lns)
        self.wo_prefetch()
        Lno = self.L("L_no")
        e(f"s_cmp_ge_u32 {s(S_WV)}, 6")
        e(f"s_cbranch_scc1 {Lno}")
        e("v_mov_b32 v2, 0x3f80"); e("v_mov_b32 v3, 0"); e("v_mov_b32 v4, 0x3f80"); e("v_mov_b32 v5, 0")
        e(f"s_lshl_b32 {s(S_TMP)}, {s(S_WV)}, 10")
        e(f"s_add_u32 {s(S_TMP)}, {s(S_TMP)}, {LDS_ONES}")
        e(f"v_lshl_add_u32 v6, v0, 4, {s(S_TMP)}")
        e("ds_write_b128 v6, v[2:5]")
        self.lab(Lno)
        for r in range(16):
            k0 = 8 * (r >> 2) + (r & 3)
            lo = (0xffffffff << k0) & 0xffffffff
            hi = (0xffffffff << (k0 + 4)) & 0xffffffff
            e(f"s_mov_b32 s{S_MK+2*r}, {lo:#x}")
            e(f"s_mov_b32 s{S_MK+2*r+1}, {hi:#x}")
        e("v_mov_b32 v2, 0xffff"); e("v_mov_b32 v3, 0xffff0000")
        for q in range(8):
            e(f"v_cndmask_b32 v4, 0, v2, {s(S_MK+4*q,2)}")
            e(f"v_cndmask_b32 v5, 0, v3, {s(S_MK+4*q+2,2)}")
            e(f"v_or_b32 {v(BM+q)}, v4, v5")
        e("v_and_b32 v1, 31, v0")
        e("v_lshrrev_b32 v2, 5, v0")
        e(f"s_lshl_b32 {s(S_TMP)}, {s(S_QT)}, 5")
        e(f"v_add_u32 v3, {s(S_TMP)}, v1")
        e("v_lshlrev_b32 v3, 4, v3")
        e(f"s_mul_i32 {s(S_TMP)}, {s(S_HD)}, 3")
        e(f"v_add_u32 v4, {s(S_TMP)}, v2")
        e(f"v_mul_u32_u24 v4, {PL}, v4")
        e(f"v_add_u32 {v(VK0)}, v3, v4")
        e(f"v_add_u32 {v(VK1)}, {LDS_K + 2*PL}, v3")
        e("v_bfe_u32 v4, v0, 4, 1")
        e("v_lshlrev_b32 v4, 2, v4")
        e("v_and_b32 v5, 3, v0")
        e("v_or_b32 v4, v4, v5")
        e(f"s_mul_i32 {s(S_TMP)}, {s(S_HD)}, 5")
        e(f"v_add_u32 v5, {s(S_TMP)}, v4")
        e("v_lshrrev_b32 v6, 1, v5")
        e(f"v_mul_u32_u24 v6, {PL}, v6")
        e("v_and_b32 v5, 1, v5")
        e("v_lshl_add_u32 v6, v5, 3, v6")
        e(f"v_add_u32 v6, {LDS_V}, v6")
        e("v_cmp_gt_u32 vcc, 5, v4")
        e(f"v_mov_b32 v7, {LDS_ONES}")
        e("v_cndmask_b32 v6, v7, v6, vcc")
        e("v_bfe_u32 v5, v0, 2, 2")
        e("v_lshl_add_u32 v5, v2, 2, v5")
        e(f"s_lshl_b32 {s(S_TMP)}, {s(S_QT)}, 5")
        e(f"v_add_u32 v5, {s(S_TMP)}, v5")
        e(f"v_lshl_add_u32 {v(VV)}, v5, 4, v6")
        e(f"s_lshl_b32 {s(S_TMP)}, {s(S_QT)}, 5")
        e(f"s_add_u32 {s(S_TMP)}, {s(S_TMP)}, {s(S_TQ)}")
        e(f"v_add_u32 v3, {s(S_TMP)}, v1")
        e("v_lshlrev_b32 v3, 4, v3")
        e(f"s_mul_i32 {s(S_TMP)}, {s(S_P)}, 5")
        e(f"s_mul_i32 {s(S_TMP2)}, {s(S_HD)}, 3")
        e(f"s_add_u32 {s(S_TMP2)}, {s(S_TMP2)}, {s(S_TMP)}")
        e(f"v_add_u32 v4, {s(S_TMP2)}, v2")
        e("v_lshlrev_b32 v4, 15, v4")
        e("v_add_u32 v75, v3, v4")
        e(f"v_add_u32 v75, {WS_QKV}, v75")
        e(f"s_add_u32 {s(S_TMP)}, {s(S_TMP)}, 2")
        e(f"s_lshl_b32 {s(S_TMP)}, {s(S_TMP)}, 15")
        e(f"s_add_u32 {s(S_TMP)}, {s(S_TMP)}, {WS_QKV}")
        e(f"v_add_u32 v76, {s(S_TMP)}, v3")
        e(f"s_lshl_b32 {s(S_TMP)}, {s(S_HD)}, 4")
        e(f"s_add_u32 {s(S_TMP)}, {s(S_TMP)}, {s(S_P)}")
        e("v_mul_u32_u24 v4, 40, v2")
        e(f"v_add_u32 v4, {s(S_TMP)}, v4")
        e("v_lshlrev_b32 v4, 15, v4")
        e("v_add_u32 v77, v3, v4")
        e(f"v_add_u32 v77, {WS_O}, v77")
        e(f"s_cmp_lt_u32 {s(S_P)}, 8")
        e(f"s_cselect_b32 {s(S_TMP)}, 32, 64")
        e(f"s_add_u32 {s(S_TMP)}, {s(S_TMP)}, {s(S_P)}")
        e(f"s_lshl_b32 {s(S_TMP)}, {s(S_TMP)}, 15")
        e(f"s_lshl_b32 {s(S_TMP2)}, {s(S_HD)}, 3")
        e(f"s_add_u32 {s(S_TMP)}, {s(S_TMP)}, {s(S_TMP2)}")
        e(f"s_add_u32 {s(S_TMP)}, {s(S_TMP)}, {WS_O}")
        e(f"v_add_u32 v78, {s(S_TMP)}, v3")
        e("s_waitcnt lgkmcnt(0)")
        self.bar("BS1")
        self.stamp("polled")
        e(f"v_mov_b32 v3, {LDS_CTRL}")
        e("ds_read_b32 v2, v3")
        e(f"buffer_load_dwordx4 {v(VQ0,4)}, v75, {s(SRD_WS,4)}, 0 offen sc1")
        e(f"buffer_load_dwordx4 {v(VQ1,4)}, v76, {s(SRD_WS,4)}, 0 offen sc1")
        e("v_lshlrev_b32 v4, 4, v0")
        e(f"s_mov_b32 {s(S_IT)}, {s(S_WV)}")
        Ld = self.L("L_kv");
        self.lab(Ld)
        e(f"s_cmp_ge_u32 {s(S_IT)}, 30")
        e(f"s_cselect_b32 {s(S_TMP)}, 1, 0")
        e(f"s_mul_i32 {s(S_TMP2)}, {s(S_TMP)}, 30")
        e(f"s_sub_u32 {s(S_TMP2)}, {s(S_IT)}, {s(S_TMP2)}")
        e(f"s_mul_i32 {s(S_TMP3)}, {s(S_TMP2)}, 43")
        e(f"s_lshr_b32 {s(S_TMP3)}, {s(S_TMP3)}, 8")
        e(f"s_mul_i32 {s(S_TMP4)}, {s(S_TMP3)}, 6")
        e(f"s_sub_u32 {s(S_TMP2)}, {s(S_TMP2)}, {s(S_TMP4)}")
        e(f"s_mul_i32 {s(S_TMP4)}, {s(S_TMP)}, 5")
        e(f"s_add_u32 {s(S_TMP4)}, {s(S_TMP4)}, {s(S_TMP3)}")
        e(f"s_mul_i32 {s(S_TMP4)}, {s(S_TMP4)}, {PL}")
        e(f"s_lshl_b32 {s(S_SLOT)}, {s(S_TMP2)}, 10")
        e(f"s_add_u32 m0, {s(S_TMP4)}, {s(S_SLOT)}")
        e(f"s_add_u32 {s(S_TMP)}, {s(S_TMP)}, 1")
        e(f"s_mul_i32 {s(S_TMP)}, {s(S_TMP)}, 80")
        e(f"s_mul_i32 {s(S_TMP4)}, {s(S_P)}, 5")
        e(f"s_add_u32 {s(S_TMP)}, {s(S_TMP)}, {s(S_TMP4)}")
        e(f"s_add_u32 {s(S_TMP)}, {s(S_TMP)}, {s(S_TMP3)}")
        e(f"s_lshl_b32 {s(S_TMP)}, {s(S_TMP)}, 15")
        e(f"s_lshl_b32 {s(S_TMP2)}, {s(S_TMP2)}, 6")
        e(f"s_add_u32 {s(S_TMP2)}, {s(S_TMP2)}, {s(S_TQ)}")
        e(f"s_sub_u32 {s(S_TMP2)}, {s(S_TMP2)}, 256")
        e(f"s_lshl_b32 {s(S_TMP3)}, {s(S_TMP2)}, 4")
        e(f"s_add_u32 {s(S_TMP)}, {s(S_TMP)}, {s(S_TMP3)}")
        e(f"s_add_u32 {s(S_TMP)}, {s(S_TMP)}, {WS_QKV}")
        e(f"s_cmp_lt_i32 {s(S_TMP2)}, 0")
        e(f"s_cselect_b32 {s(S_TMP)}, 0x7f000000, {s(S_TMP)}")
        e(f"buffer_load_dwordx4 v4, {s(SRD_WS,4)}, {s(S_TMP)} offen sc1 lds")
        e(f"s_add_u32 {s(S_IT)}, {s(S_IT)}, 8")
        e(f"s_cmp_lt_u32 {s(S_IT)}, 60")
        e(f"s_cbranch_scc1 {Ld}")
        e("s_waitcnt lgkmcnt(0)")
        e(f"v_readfirstlane_b32 {s(S_MODE)}, v2")
        e("s_waitcnt vmcnt(0)")
        self.bar("BS2")
        self.stamp("kv_in")
        La = self.L("L_qa"); Lb = self.L("L_qb")
        e(f"s_mov_b32 {s(S_M)}, -1"); e(f"s_mov_b32 {s(S_M+1)}, 0")
        e(f"s_cmp_eq_u32 {s(S_HD)}, 0")
        e(f"s_cbranch_scc1 {La}")
        e(f"v_mov_b32 {v(VQ1)}, 0"); e(f"v_mov_b32 {v(VQ1+1)}, 0")
        e(f"v_cndmask_b32 {v(VQ1+2)}, 0, {v(VQ1+2)}, {s(S_M,2)}")
        e(f"v_cndmask_b32 {v(VQ1+3)}, 0, {v(VQ1+3)}, {s(S_M,2)}")
        e(f"s_branch {Lb}")
        self.lab(La)
        e(f"v_cndmask_b32 {v(VQ1)}, 0, {v(VQ1)}, {s(S_M,2)}")
        e(f"v_cndmask_b32 {v(VQ1+1)}, 0, {v(VQ1+1)}, {s(S_M,2)}")
        e(f"v_mov_b32 {v(VQ1+2)}, 0"); e(f"v_mov_b32 {v(VQ1+3)}, 0")
        self.lab(Lb)
        def kreads(j):
            b = KF[j & 1]
            return [f"ds_read_b128 {v(b,4)}, {v(VK0)} offset:{j*512}", f"ds_read_b128 {v(b+4,4)}, {v(VK1)} offset:{j*512}"]
        for t in kreads(0): e(t)
        for j in range(9):
            if j < 8:
                for t in kreads(j + 1): e(t)
                e("s_waitcnt lgkmcnt(2)")
            else:
                e("s_waitcnt lgkmcnt(0)")
            b = KF[j & 1]
            e(f"v_mfma_f32_32x32x16_bf16 {v(T[j],16)}, {v(b,4)}, {v(VQ0,4)}, 0")
            e(f"v_mfma_f32_32x32x16_bf16 {v(T[j],16)}, {v(b+4,4)}, {v(VQ1,4)}, {v(T[j],16)}")
        def vreads(j):
            b = VF[j & 1]
            return [f"ds_read_b64_tr_b16 {v(b+4*t+2*u,2)}, {v(VV)} offset:{j*512+256*t+128*u}" for t in range(2) for u in range(2)]
        for t in vreads(0): e(t)
        Lfix = self.L("L_fix"); Lret = self.L("L_ret")
        e(f"s_lshr_b32 {s(S_TMP)}, {s(S_TQ)}, 5")
        e(f"s_add_u32 {s(S_TMP)}, {s(S_TMP)}, {s(S_QT)}")
        e(f"s_cmp_lt_u32 {s(S_TMP)}, 8")
        e(f"s_cbranch_scc1 {Lfix}")
        self.lab(Lret)
        for r in range(16):
            e(f"v_cndmask_b32 {v(T[0]+r)}, {v(T[0]+r)}, {v(T[8]+r)}, {s(S_MK+2*r,2)}")
        MX = 80
        vals = [T[j] + r for j in range(8) for r in range(16)]
        for k in range(4):
            e(f"v_max3_f32 {v(MX+k)}, {v(vals[3*k])}, {v(vals[3*k+1])}, {v(vals[3*k+2])}")
        idx = 12; k = 0
        while idx + 1 < len(vals):
            e(f"v_max3_f32 {v(MX+k)}, {v(MX+k)}, {v(vals[idx])}, {v(vals[idx+1])}")
            idx += 2; k = (k + 1) & 3
        assert idx == len(vals)
        e(f"v_max3_f32 {v(MX)}, {v(MX)}, {v(MX+1)}, {v(MX+2)}")
        e(f"v_max_f32 {v(MX)}, {v(MX)}, {v(MX+3)}")
        e(f"v_mov_b32 {v(MX+1)}, {v(MX)}")
        e(f"v_permlane32_swap_b32 {v(MX)}, {v(MX+1)}")
        e(f"v_max_f32 {v(MX)}, {v(MX)}, {v(MX+1)}")
        e(f"v_sub_f32 {v(MX)}, 0, {v(MX)}")
        e(f"v_mov_b32 {v(MX+1)}, {v(MX)}")
        for i in range(0, 16, 2): e(f"v_mov_b64 {v(OA+i,2)}, 0")
        def softmax_tile(j):
            b = T[j]
            for i in range(0, 16, 2):
                e(f"v_pk_add_f32 {v(b+i,2)}, {v(b+i,2)}, {v(MX,2)}")
            for i in range(16):
                e(f"v_exp_f32 {v(b+i)}, {v(b+i)}")
            for t in range(2):
                for q in range(4):
                    e(f"v_cvt_pk_bf16_f32 {v(b+8*t+q)}, {v(b+8*t+2*q)}, {v(b+8*t+2*q+1)}")
        def pv(j, p0, p1):
            b = VF[j & 1]
            e(f"v_mfma_f32_32x32x16_bf16 {v(OA,16)}, {v(b,4)}, {v(p0,4)}, {v(OA,16)}")
            e(f"v_mfma_f32_32x32x16_bf16 {v(OA,16)}, {v(b+4,4)}, {v(p1,4)}, {v(OA,16)}")
        softmax_tile(0)
        for t in range(2):
            for q in range(4):
                src = T[0] + 8 * t + q
                e(f"v_and_b32 {v(T[8]+4*t+q)}, {v(BM+4*t+q)}, {v(src)}")
                e(f"v_bfi_b32 {v(src)}, {v(BM+4*t+q)}, 0, {v(src)}")
        for j in range(9):
            if j < 8:
                for t in vreads(j + 1): e(t)
            if 1 <= j < 8: softmax_tile(j)
            e("s_waitcnt lgkmcnt(4)" if j < 8 else "s_waitcnt lgkmcnt(0)")
            if j < 8: pv(j, T[j], T[j] + 8)
            else: pv(8, T[8], T[8] + 4)
        self.stamp("attn_done")
        e(f"v_mov_b32 v80, {v(OA+8)}")
        e(f"v_mov_b32 v81, {v(OA+8)}")
        e("v_permlane32_swap_b32 v80, v81")
        e("v_rcp_f32 v81, v81")
        for i in range(12): e(f"v_mul_f32 {v(OA+i)}, v81, {v(OA+i)}")
        for q in range(6): e(f"v_cvt_pk_bf16_f32 {v(84+q)}, {v(OA+2*q)}, {v(OA+2*q+1)}")
        self.store_mode([f"buffer_store_dwordx4 v[84:87], v77, {s(SRD_WS,4)}, 0 offen",
                         "s_mov_b32 exec_hi, 0",
                         f"buffer_store_dwordx2 v[88:89], v78, {s(SRD_WS,4)}, 0 offen",
                         "s_mov_b32 exec_hi, -1"])
        e("s_waitcnt vmcnt(0)")
        self.bar("BE2")
        Lw = self.L("L_w")
        e(f"s_cmp_lg_u32 {s(S_WV)}, 6")
        e(f"s_cbranch_scc1 {Lw}")
        self.set_fb(3)
        self.lab(Lw)
        self.stamp("P2end")
        e("s_branch L_P3")
        self.lab(Lfix)
        e("s_nop 15")
        e("v_mov_b32 v79, 0xf149f2ca")
        for j in range(8):
            Ls = self.L("L_fs")
            e(f"s_cmp_gt_u32 {s(S_TMP)}, {7-j}")
            e(f"s_cbranch_scc1 {Ls}")
            for r in range(16): e(f"v_mov_b32 {v(T[j]+r)}, v79")
            self.lab(Ls)
        e(f"s_branch {Lret}")


    def s_hs_all(self):
        e = self.e
        L = self.L("L_ha"); L2 = self.L("L_ha")
        for half in range(2):
            L = self.L("L_ha"); L2 = self.L("L_ha")
            e(f"s_load_dwordx16 s[{SH}:{SH+15}], {s(S_DBG,2)}, {128*half}")
            e(f"s_load_dwordx16 s[{SH+16}:{SH+31}], {s(S_DBG,2)}, {128*half+64}")
            e(f"s_branch {L2}")
            self.lab(L)
            e("s_sleep 8")
            e(f"s_load_dwordx16 s[{SH}:{SH+15}], {s(S_DBG,2)}, {128*half} glc")
            e(f"s_load_dwordx16 s[{SH+16}:{SH+31}], {s(S_DBG,2)}, {128*half+64} glc")
            self.lab(L2)
            e("s_waitcnt lgkmcnt(0)")
            e(f"s_mov_b32 {s(S_TMP)}, 0x80808080")
            for q in range(32): e(f"s_and_b32 {s(S_TMP)}, {s(S_TMP)}, s{SH+q}")
            e(f"s_cmp_eq_u32 {s(S_TMP)}, 0x80808080")
            e(f"s_cbranch_scc0 {L}")

    def wrow_voffsets(self, va, vb, rowbytes):
        e = self.e
        e("v_lshrrev_b32 v2, 3, v0")
        e("v_and_b32 v3, 7, v0")
        e("v_bfe_u32 v4, v0, 4, 1")
        e("v_lshlrev_b32 v4, 2, v4")
        e("v_xor_b32 v3, v3, v4")
        e("v_and_b32 v4, 3, v2")
        e("v_lshrrev_b32 v5, 2, v2")
        e("v_lshl_add_u32 v6, v5, 3, v4")
        e(f"v_mul_u32_u24 v6, {rowbytes}, v6")
        e(f"v_lshl_add_u32 {v(va)}, v3, 4, v6")
        if vb is not None:
            e("v_mul_u32_u24 v6, 20, v5")
            e("v_add_u32 v6, v6, v4")
            e(f"v_mul_u32_u24 v6, {rowbytes}, v6")
            e(f"v_lshl_add_u32 {v(vb)}, v3, 4, v6")

    def p3_decode(self):
        e = self.e
        e(f"s_mul_i32 {s(S_R)}, {s(S_I)}, 26")
        e(f"s_lshr_b32 {s(S_R)}, {s(S_R)}, 8")
        e(f"s_mul_i32 {s(S_TMP)}, {s(S_R)}, 10")
        e(f"s_sub_u32 {s(S_T)}, {s(S_I)}, {s(S_TMP)}")
        e(f"s_mul_i32 {s(S_TMP)}, {s(S_R)}, 96")
        e(f"s_lshl_b32 {s(S_T0)}, {s(S_G)}, 8")
        e(f"s_add_u32 {s(S_T0)}, {s(S_T0)}, {s(S_TMP)}")

    def wo_prefetch(self):
        e = self.e
        Lsk = self.L("L_wo")
        e(f"s_cmp_ge_u32 {s(S_WV)}, 4"); e(f"s_cbranch_scc1 {Lsk}")
        e(f"s_cmp_ge_u32 {s(S_I)}, 30"); e(f"s_cbranch_scc1 {Lsk}")
        e(f"s_mul_i32 {s(S_TMP)}, {s(S_I)}, 26")
        e(f"s_lshr_b32 {s(S_TMP)}, {s(S_TMP)}, 8")
        e(f"s_mul_i32 {s(S_TMP)}, {s(S_TMP)}, 10")
        e(f"s_sub_u32 {s(S_TMP)}, {s(S_I)}, {s(S_TMP)}")
        e(f"s_lshl_b32 {s(S_TMP)}, {s(S_TMP)}, 7")
        self.srd(SRD_W, S_WO, S_TMP, 640 * 1280)
        self.wrow_voffsets(8, 9, 1280)
        e(f"s_mul_i32 {s(S_IT)}, {s(S_WV)}, 20")
        e(f"s_add_u32 {s(S_FILL)}, {s(S_IT)}, 20")
        L = self.L("L_wol")
        self.lab(L)
        e(f"s_mov_b32 {s(S_TMP)}, 0"); e(f"s_mov_b32 {s(S_TMP2)}, 0"); e(f"s_mov_b32 {s(S_TMP3)}, 0")
        for lim, st, off, var in ((16, 16, 20, 0), (32, 32, 16, 1), (40, 40, 4, 0), (56, 56, 24, 0), (72, 64, 16, 1)):
            e(f"s_cmp_ge_u32 {s(S_IT)}, {lim}")
            e(f"s_cselect_b32 {s(S_TMP)}, {st}, {s(S_TMP)}")
            e(f"s_cselect_b32 {s(S_TMP2)}, {off}, {s(S_TMP2)}")
            e(f"s_cselect_b32 {s(S_TMP3)}, {var}, {s(S_TMP3)}")
        e(f"s_sub_u32 {s(S_TMP)}, {s(S_IT)}, {s(S_TMP)}")
        e(f"s_mul_i32 {s(S_TMP)}, {s(S_TMP)}, 40")
        e(f"s_add_u32 {s(S_TMP)}, {s(S_TMP)}, {s(S_TMP2)}")
        e(f"s_mul_i32 {s(S_TMP)}, {s(S_TMP)}, 1280")
        e(f"s_lshl_b32 {s(S_TMP2)}, {s(S_IT)}, 10")
        e(f"s_add_u32 m0, {s(S_TMP2)}, {LDS_WO}")
        Lb = self.L("L_wob"); Lc = self.L("L_woc")
        e(f"s_cmp_eq_u32 {s(S_TMP3)}, 1"); e(f"s_cbranch_scc1 {Lb}")
        e(f"buffer_load_dwordx4 v8, {s(SRD_W,4)}, {s(S_TMP)} offen lds")
        e(f"s_branch {Lc}")
        self.lab(Lb)
        e(f"buffer_load_dwordx4 v9, {s(SRD_W,4)}, {s(S_TMP)} offen lds")
        self.lab(Lc)
        e(f"s_add_u32 {s(S_IT)}, {s(S_IT)}, 1")
        e(f"s_cmp_lt_u32 {s(S_IT)}, {s(S_FILL)}")
        e(f"s_cbranch_scc1 {L}")
        self.lab(Lsk)

    def role_dispatch(self, ph):
        e = self.e
        e(f"s_cmp_lt_u32 {s(S_WV)}, 4"); e(f"s_cbranch_scc1 L_C{ph}")
        e(f"s_cmp_eq_u32 {s(S_WV)}, 6"); e(f"s_cbranch_scc1 L_S{ph}")
        e(f"s_cmp_eq_u32 {s(S_WV)}, 7"); e(f"s_cbranch_scc1 L_X{ph}")

    def poll_fb(self, val, need_mask_sgpr):
        e = self.e
        e(f"s_lshl_b32 {s(S_TMP2)}, {s(S_G)}, 8")
        e(f"s_add_u32 {s(S_TMP2)}, {s(S_TMP2)}, {WS_FB}")
        e("v_and_b32 v2, 31, v0")
        e(f"v_lshl_add_u32 v8, v2, 2, {s(S_TMP2)}")
        e(f"v_lshrrev_b32 v3, v2, {s(need_mask_sgpr)}") if False else None
        e(f"v_mov_b32 v3, {s(need_mask_sgpr)}")
        e("v_lshrrev_b32 v3, v2, v3")
        e("v_and_b32 v3, 1, v3")
        e(f"v_mul_u32_u24 v9, {val}, v3")
        self.poll(8, 9, 10)

    def frag_addr_w128(self, vdst, hstride, base):
        e = self.e
        e("v_lshrrev_b32 v2, 5, v0")
        e("v_bfe_u32 v3, v0, 2, 2")
        e("v_bfe_u32 v4, v0, 4, 1")
        e("v_lshlrev_b32 v4, 1, v4")
        e("v_bfe_u32 v5, v0, 1, 1")
        e("v_or_b32 v4, v4, v5")
        e(f"s_and_b32 {s(S_TMP)}, {s(S_WV)}, 1")
        e(f"s_lshl_b32 {s(S_TMP)}, {s(S_TMP)}, 2")
        e(f"v_or_b32 v4, {s(S_TMP)}, v4")
        e("v_bfe_u32 v5, v0, 3, 1")
        e("v_lshlrev_b32 v5, 2, v5")
        e("v_xor_b32 v4, v4, v5")
        e("v_lshlrev_b32 v4, 4, v4")
        e("v_lshl_add_u32 v4, v3, 7, v4")
        e("v_and_b32 v5, 1, v0")
        e("v_lshl_add_u32 v4, v5, 3, v4")
        e(f"v_mul_u32_u24 v5, {hstride}, v2")
        e("v_add_u32 v4, v4, v5")
        e(f"v_add_u32 {v(vdst)}, {base}, v4")

    HRES = 240

    def pair_reduce(self, ACC, xbase, RED):
        e = self.e
        Lk = self.L("L_k1"); Lj = self.L("L_kj")
        e(f"s_mul_i32 {s(S_TMP)}, {s(S_WV)}, 6144")
        e(f"s_add_u32 {s(S_TMP)}, {s(S_TMP)}, {xbase}")
        e(f"v_lshl_add_u32 v2, v0, 4, {s(S_TMP)}")
        e(f"s_xor_b32 {s(S_TMP)}, {s(S_WV)}, 2")
        e(f"s_mul_i32 {s(S_TMP)}, {s(S_TMP)}, 6144")
        e(f"s_add_u32 {s(S_TMP)}, {s(S_TMP)}, {xbase}")
        e(f"v_lshl_add_u32 v3, v0, 4, {s(S_TMP)}")
        e(f"s_cmp_ge_u32 {s(S_WV)}, 2"); e(f"s_cbranch_scc1 {Lk}")
        for kh, lab in ((0, None), (1, Lk)):
            if lab: self.lab(lab)
            for tt in range(3):
                o = ACC + 16 * tt + 8 * (1 - kh)
                e(f"ds_write_b128 v2, {v(o,4)} offset:{tt*2048}")
                e(f"ds_write_b128 v2, {v(o+4,4)} offset:{tt*2048+1024}")
            e("s_waitcnt lgkmcnt(0)")
            self.e("s_barrier") if kh == 1 else self.bar_pending("BR1")
            for tt in range(3):
                e(f"ds_read_b128 {v(RED+8*tt,4)}, v3 offset:{tt*2048}")
                e(f"ds_read_b128 {v(RED+8*tt+4,4)}, v3 offset:{tt*2048+1024}")
            e("s_waitcnt lgkmcnt(0)")
            for tt in range(3):
                k = ACC + 16 * tt + 8 * kh
                for i in range(0, 8, 2):
                    e(f"v_pk_add_f32 {v(RED+8*tt+i,2)}, {v(RED+8*tt+i,2)}, {v(k+i,2)}")
            if kh == 0: e(f"s_branch {Lj}")
        self.lab(Lj)

    def bar_pending(self, name):
        self.bars.setdefault(self.role, []).append(name)
        self.e("s_barrier")

    def gemm96_loop(self, tag, nst, slot_bytes, nslot, woff, aoff, wks, VW, VB, ACC, FA_, FB_, first_slot=0, wres=False):
        e = self.e
        VWc, VBc = VW + 1, VB + 1
        def reads(m, setn):
            fa = FA_ + 4 * setn; fb = FB_ + 12 * setn
            o = [f"ds_read_b64_tr_b16 {v(fa+2*u,2)}, {v(VWc)} offset:{m*2*wks+u*512}" for u in range(2)]
            o += [f"ds_read_b128 {v(fb+4*tt,4)}, {v(VBc)} offset:{m*6144+tt*1024}" for tt in range(3)]
            return o
        def mf(setn):
            fa = FA_ + 4 * setn; fb = FB_ + 12 * setn
            return [f"v_mfma_f32_32x32x16_bf16 {v(ACC+16*tt,16)}, {v(fa,4)}, {v(fb+4*tt,4)}, {v(ACC+16*tt,16)}" for tt in range(3)]
        def upd():
            o = [f"v_add_u32 {v(VBc)}, {s(S_SLOT)}, {v(VB)}"]
            o.append(f"v_add_u32 {v(VWc)}, {s(S_KW) if wres else s(S_SLOT)}, {v(VW)}")
            return o
        e(f"s_mov_b32 {s(S_SLOT)}, {first_slot*slot_bytes}")
        e(f"s_mov_b32 {s(S_KW)}, 0")
        e(f"s_mov_b32 {s(S_IT)}, 0")
        for t in upd(): e(t)
        self.bar(tag + "0")
        for t in reads(0, 0): e(t)
        L = f"L_{tag}LOOP"
        self.lab(L)
        for m in range(3):
            r = reads(m + 1, (m + 1) & 1); mm = mf(m & 1)
            e("s_waitcnt lgkmcnt(0)")
            e(mm[0]); e(r[0]); e(r[1]); e(mm[1]); e(r[2]); e(r[3]); e(r[4])
            if m == 2:
                e(f"s_add_u32 {s(S_SLOT)}, {s(S_SLOT)}, {slot_bytes}")
                e(f"s_cmp_eq_u32 {s(S_SLOT)}, {nslot*slot_bytes}")
                e(f"s_cselect_b32 {s(S_SLOT)}, 0, {s(S_SLOT)}")
                e(f"s_add_u32 {s(S_KW)}, {s(S_KW)}, {8*wks}")
            e(mm[2])
            if m == 2:
                for t in upd(): e(t)
        mm = mf(1); r = reads(0, 0)
        e("s_waitcnt lgkmcnt(0)")
        self.bar(tag + "loop")
        e(mm[0]); e(r[0]); e(r[1]); e(mm[1]); e(r[2]); e(r[3]); e(r[4]); e(mm[2])
        e(f"s_add_u32 {s(S_IT)}, {s(S_IT)}, 1")
        e(f"s_cmp_lt_u32 {s(S_IT)}, {nst}")
        e(f"s_cbranch_scc1 {L}")

    def simple_bar_loop(self, tag, nst, lab):
        e = self.e
        self.bar(tag + "0")
        e(f"s_mov_b32 {s(S_IT)}, 0")
        self.lab(lab)
        self.bar(tag + "loop")
        e(f"s_add_u32 {s(S_IT)}, {s(S_IT)}, 1")
        e(f"s_cmp_lt_u32 {s(S_IT)}, {nst}")
        e(f"s_cbranch_scc1 {lab}")

    def phase3(self):
        e = self.e
        self.role = "P3"
        self.lab("L_P3")
        e(f"s_cmp_ge_u32 {s(S_I)}, 30")
        e("s_cbranch_scc1 L_P4")
        self.p3_decode()
        self.role_dispatch(3)
        self.role = "L"; self.bars["L"] = self.bars.get("L", [])
        e("v_lshrrev_b32 v2, 5, v0"); e("v_and_b32 v3, 31, v0")
        e(f"s_mov_b32 {s(S_TMP)}, {40*CH}")
        e(f"v_mul_lo_u32 v2, v2, {s(S_TMP)}")
        e("v_lshl_add_u32 v8, v3, 4, v2")
        e(f"s_and_b32 {s(S_TMP3)}, {s(S_WV)}, 1")
        e(f"s_lshl_b32 {s(S_KA)}, {s(S_TMP3)}, 17")
        e(f"s_lshl_b32 {s(S_TMP)}, {s(S_T0)}, 4")
        e(f"s_add_u32 {s(S_KA)}, {s(S_KA)}, {s(S_TMP)}")
        e(f"s_add_u32 {s(S_KA)}, {s(S_KA)}, {WS_O}")
        e(f"s_mul_i32 {s(S_TMP3)}, {s(S_TMP3)}, {12*1024}")
        def a_stage(fill_imm):
            e(f"s_add_u32 m0, {s(S_TMP3)}, {fill_imm}")
            e(f"s_mov_b32 {s(S_TMP)}, {s(S_KA)}")
            for kk in range(4):
                for tt in range(3):
                    if kk or tt: e(f"s_add_u32 m0, m0, {s(S_C1024)}")
                    e(f"s_add_u32 {s(S_TMP2)}, {s(S_TMP)}, {tt*512}")
                    e(f"buffer_load_dwordx4 v8, {s(SRD_WS,4)}, {s(S_TMP2)} offen sc1 lds")
                if kk < 3: e(f"s_add_u32 {s(S_TMP)}, {s(S_TMP)}, {CH}")
            e(f"s_add_u32 {s(S_KA)}, {s(S_KA)}, {8*CH}")
        self.bar("BP3a")
        self.stamp("L3go")
        for st in range(3): a_stage(st * 24576)
        e("s_waitcnt vmcnt(24)"); self.bar("B30")
        e("s_waitcnt vmcnt(12)"); self.bar("B3loop"); a_stage(0)
        e("s_waitcnt vmcnt(12)"); e("s_barrier"); a_stage(24576)
        e("s_waitcnt vmcnt(12)"); e("s_barrier")
        e("s_waitcnt vmcnt(0)"); e("s_barrier")
        e("s_barrier")
        self.bar("BR1"); self.bar("BR2"); self.bar("BE3")
        e("s_branch L_P4")
        self.role = "S"
        self.lab("L_S3")
        e(f"s_mov_b32 {s(S_TMP)}, 0xffff")
        e(f"s_cmp_eq_u32 {s(S_R)}, 1"); e(f"s_cselect_b32 {s(S_TMP)}, -1, {s(S_TMP)}")
        e(f"s_cmp_eq_u32 {s(S_R)}, 2"); e(f"s_cselect_b32 {s(S_TMP)}, 0xffff0000, {s(S_TMP)}")
        e(f"s_mov_b32 {s(S_TMP4)}, {s(S_TMP)}")
        self.poll_fb(3, S_TMP4)
        self.bar("BP3a")
        self.simple_bar_loop("B3", 5, "L_S3LOOP")
        self.bar("BR1"); self.bar("BR2"); self.bar("BE3")
        self.set_fb(4)
        e("s_branch L_P4")
        self.role = "X"
        self.lab("L_X3")
        self.bar("BP3a")
        self.simple_bar_loop("B3", 5, "L_X3LOOP")
        self.bar("BR1"); self.bar("BR2")
        for ps in range(2):
            e(f"v_lshlrev_b32 v2, 3, v0")
            for w in range(4):
                e(f"ds_read_b64 {v(8+2*w,2)}, v2 offset:{w*768+ps*512}")
            e("s_waitcnt lgkmcnt(0)")
            e("v_add_f32 v8, v8, v10"); e("v_add_f32 v9, v9, v11")
            e("v_add_f32 v12, v12, v14"); e("v_add_f32 v13, v13, v15")
            e("v_add_f32 v8, v8, v12"); e("v_add_f32 v9, v9, v13")
            e(f"s_lshl_b32 {s(S_TMP)}, {s(S_T)}, 14")
            e(f"s_lshl_b32 {s(S_TMP2)}, {s(S_T0)}, 3")
            e(f"s_add_u32 {s(S_TMP)}, {s(S_TMP)}, {s(S_TMP2)}")
            e(f"s_add_u32 {s(S_TMP)}, {s(S_TMP)}, {WS_ST2+ps*512}")
            if ps == 1:
                Ls = self.L("L_x3")
                e(f"s_cmp_eq_u32 {s(S_R)}, 2"); e(f"s_cbranch_scc1 {Ls}")
                e("s_mov_b32 exec_hi, 0")
            self.store_mode([f"buffer_store_dwordx2 v[8:9], v2, {s(SRD_WS,4)}, {s(S_TMP)} offen"])
            if ps == 1:
                e("s_mov_b32 exec_hi, -1")
                self.lab(Ls)
        e("s_waitcnt vmcnt(0)")
        self.bar("BE3")
        e("s_branch L_P4")
        self.role = "C"
        self.lab("L_C3")
        ACC = 64; FA_ = 112; FB_ = 120; VW = 16; VB = 18; XR = 144; RED = 160
        HR = self.HRES
        e("v_and_b32 v1, 31, v0"); e("v_lshrrev_b32 v2, 5, v0")
        e(f"v_add_u32 v3, {s(S_T0)}, v1")
        e("v_mul_u32_u24 v4, 1280, v3")
        e(f"s_lshl_b32 {s(S_TMP)}, {s(S_T)}, 6")
        e(f"s_and_b32 {s(S_TMP2)}, {s(S_WV)}, 1"); e(f"s_lshl_b32 {s(S_TMP2)}, {s(S_TMP2)}, 5")
        e(f"s_add_u32 {s(S_TMP)}, {s(S_TMP)}, {s(S_TMP2)}")
        e(f"s_lshr_b32 {s(S_TMP2)}, {s(S_WV)}, 1"); e(f"s_lshl_b32 {s(S_TMP2)}, {s(S_TMP2)}, 4")
        e(f"s_add_u32 {s(S_N0)}, {s(S_TMP)}, {s(S_TMP2)}")
        e(f"v_lshl_add_u32 v5, v2, 2, {s(S_N0)}")
        e("v_lshl_add_u32 v4, v5, 1, v4")
        self.srd(SRD_T, S_X, size=2048 * 1280)
        for tt in range(3):
            e(f"s_mov_b32 {s(S_TMP)}, {tt*32*1280}")
            for jj in range(2):
                e(f"buffer_load_dwordx2 {v(XR+4*tt+2*jj,2)}, v4, {s(SRD_T,4)}, {s(S_TMP)} offen offset:{jj*16}")
        e(f"s_lshr_b32 {s(S_TMP)}, {s(S_N0)}, 3")
        e(f"v_add_u32 v5, {s(S_TMP)}, v2")
        e("v_lshlrev_b32 v5, 15, v5")
        e("v_lshl_add_u32 v5, v3, 4, v5")
        e(f"v_add_u32 v20, {WS_H}, v5")
        self.frag_addr_w128(VW, 40 * 1024, LDS_WO)
        e(f"s_lshr_b32 {s(S_TMP)}, {s(S_WV)}, 1")
        e(f"s_lshl_b32 {s(S_TMP2)}, {s(S_TMP)}, 10")
        e(f"v_add_u32 {v(VW)}, {s(S_TMP2)}, {v(VW)}")
        e(f"s_mul_i32 {s(S_TMP)}, {s(S_TMP)}, 3072")
        e(f"v_lshl_add_u32 {v(VB)}, v0, 4, {s(S_TMP)}")
        for i in range(0, 48, 2): e(f"v_mov_b64 {v(ACC+i,2)}, 0")
        self.bar("BP3a")
        self.stamp("C3go")
        self.gemm96_loop("B3", 5, 24576, 3, 0, 0, 1024, VW, VB, ACC, FA_, FB_, wres=True)
        self.stamp("C3loop")
        self.pair_reduce(ACC, 49152, RED)
        e("s_waitcnt vmcnt(0)")
        for tt in range(3):
            for q in range(4):
                x = XR + 4 * tt + q; d = RED + 8 * tt + 2 * q
                e(f"v_lshlrev_b32 v2, 16, {v(x)}")
                e(f"v_and_b32 v3, 0xffff0000, {v(x)}")
                e(f"v_add_f32 {v(d)}, {v(d)}, v2")
                e(f"v_add_f32 {v(d+1)}, {v(d+1)}, v3")
                e(f"v_cvt_pk_bf16_f32 {v(HR+4*tt+q)}, {v(d)}, {v(d+1)}")
        e("v_mov_b32 v4, 0x3f803f80")
        for tt in range(3):
            e(f"v_mov_b32 {v(24+2*tt)}, 0"); e(f"v_mov_b32 {v(25+2*tt)}, 0")
        for q in range(4):
            for tt in range(3):
                e(f"v_dot2_f32_bf16 {v(24+2*tt)}, {v(HR+4*tt+q)}, v4, {v(24+2*tt)}")
                e(f"v_dot2_f32_bf16 {v(25+2*tt)}, {v(HR+4*tt+q)}, {v(HR+4*tt+q)}, {v(25+2*tt)}")
        for r in range(24, 30):
            e(f"v_mov_b32 {v(r+8)}, {v(r)}")
        for r in range(24, 30):
            e(f"v_permlane32_swap_b32 {v(r)}, {v(r+8)}")
        for r in range(24, 30):
            e(f"v_add_f32 {v(r)}, {v(r)}, {v(r+8)}")
        e(f"s_mul_i32 {s(S_TMP)}, {s(S_WV)}, 768")
        e(f"v_lshl_add_u32 v2, v1, 3, {s(S_TMP)}")
        e("s_mov_b32 exec_hi, 0")
        for tt in range(3):
            e(f"ds_write_b64 v2, {v(24+2*tt,2)} offset:{tt*256}")
        e("s_mov_b32 exec_hi, -1")
        st = [f"buffer_store_dwordx4 {v(HR+4*tt,4)}, v20, {s(SRD_WS,4)}, 0 offen offset:{tt*512}" for tt in range(3)]
        Ls = self.L("L_c3s"); Lt = self.L("L_c3t")
        e(f"s_cmp_eq_u32 {s(S_R)}, 2"); e(f"s_cbranch_scc1 {Ls}")
        self.store_mode(st)
        e(f"s_branch {Lt}")
        self.lab(Ls)
        self.store_mode(st[:2])
        self.lab(Lt)
        e("s_waitcnt lgkmcnt(0)")
        self.bar("BR2")
        e("s_waitcnt vmcnt(0)")
        self.bar("BE3")
        self.stamp("C3end")
        e("s_branch L_P4")


    def phase4(self):
        e = self.e
        self.role = "P4"
        self.lab("L_P4")
        e(f"s_lshr_b32 {s(S_R)}, {s(S_I)}, 3")
        e(f"s_and_b32 {s(S_T)}, {s(S_I)}, 7")
        e(f"s_lshl_b32 {s(S_T0)}, {s(S_G)}, 8")
        e(f"s_lshl_b32 {s(S_TMP)}, {s(S_R)}, 6")
        e(f"s_add_u32 {s(S_T0)}, {s(S_T0)}, {s(S_TMP)}")
        e(f"s_mul_i32 {s(S_N0)}, {s(S_T)}, 192")
        self.role_dispatch(4)
        LST = 131072; LCS = LST + 512
        self.role = "L"
        for ev in range(3):
            e(f"v_add_u32 v2, {64*ev}, v0")
            e("v_mul_u32_u24 v3, 171, v2"); e("v_lshrrev_b32 v3, 12, v3")
            e("v_mul_u32_u24 v4, 24, v3"); e("v_sub_u32 v4, v2, v4")
            e("v_bfe_u32 v5, v3, 1, 1"); e("v_lshlrev_b32 v5, 2, v5"); e("v_xor_b32 v4, v4, v5")
            e("v_and_b32 v5, 3, v3"); e("v_lshrrev_b32 v6, 2, v3"); e("v_lshl_add_u32 v5, v6, 3, v5")
            e("v_mul_u32_u24 v5, 3072, v5")
            e(f"v_lshl_add_u32 {v(8+ev)}, v4, 4, v5")
        e("v_lshrrev_b32 v2, 5, v0"); e("v_and_b32 v3, 31, v0")
        e("v_lshlrev_b32 v2, 15, v2")
        e("v_lshl_add_u32 v11, v3, 4, v2")
        e(f"s_lshl_b32 {s(S_TMP)}, {s(S_N0)}, 1")
        self.srd(SRD_W, S_W1, S_TMP, 640 * 3072)
        e(f"s_mov_b32 {s(S_KW)}, 0")
        e(f"s_lshl_b32 {s(S_KA)}, {s(S_T0)}, 4")
        e(f"s_add_u32 {s(S_KA)}, {s(S_KA)}, {WS_H}")
        def wq(q):
            m, ev = q // 3, q % 3
            roff = (16 * (m >> 1) + 4 * (m & 1)) * 3072
            return [f"s_add_u32 {s(S_TMP)}, {s(S_KW)}, {roff}", f"buffer_load_dwordx4 {v(8+ev)}, {s(SRD_W,4)}, {s(S_TMP)} offen lds"]
        def stage4(fill, wave):
            if wave == 4:
                e(f"s_mov_b32 m0, {fill}" if isinstance(fill, int) else f"s_mov_b32 m0, {s(fill[1])}")
                for q in range(8):
                    if q: e(f"s_add_u32 m0, m0, {s(S_C1024)}")
                    for t in wq(q): e(t)
                e(f"s_add_u32 m0, m0, {24576 - 7*1024}")
                for idx in range(8):
                    if idx: e(f"s_add_u32 m0, m0, {s(S_C1024)}")
                    e(f"s_add_u32 {s(S_TMP)}, {s(S_KA)}, {(idx>>1)*2*CH + (idx&1)*512}")
                    e(f"buffer_load_dwordx4 v11, {s(SRD_WS,4)}, {s(S_TMP)} offen sc1 lds")
            else:
                if isinstance(fill, int): e(f"s_mov_b32 m0, {fill + 8192}")
                else: e(f"s_add_u32 m0, {s(fill[1])}, 8192")
                for q in range(8, 24):
                    if q > 8: e(f"s_add_u32 m0, m0, {s(S_C1024)}")
                    for t in wq(q): e(t)
            e(f"s_add_u32 {s(S_KW)}, {s(S_KW)}, {64*3072}")
            e(f"s_add_u32 {s(S_KA)}, {s(S_KA)}, {8*CH}")
        self.bar("BP4a")
        self.stamp("L4go")
        L5 = self.L("L_l5"); Lj = self.L("L_lj")
        e(f"s_cmp_eq_u32 {s(S_WV)}, 5"); e(f"s_cbranch_scc1 {L5}")
        for wave in (4, 5):
            if wave == 5: self.lab(L5)
            sv = list(self.bars["L"])
            self.ring_loader(lambda fill: stage4(fill, wave), 16, 10, 32768, "B4", f"L_L4LOOP{wave}")
            if wave == 4:
                self.bars["L"] = sv
                e(f"s_branch {Lj}")
        self.lab(Lj)
        self.bar("BE4")
        e("s_branch L_P5")
        self.role = "S"
        self.lab("L_S4")
        e(f"s_mov_b32 {s(S_TMP4)}, 0x3ff")
        e(f"s_cmp_eq_u32 {s(S_R)}, 1"); e(f"s_cselect_b32 {s(S_TMP4)}, 0xfffff, {s(S_TMP4)}")
        e(f"s_cmp_eq_u32 {s(S_R)}, 2"); e(f"s_cselect_b32 {s(S_TMP4)}, 0xffc00, {s(S_TMP4)}")
        e(f"s_cmp_eq_u32 {s(S_R)}, 3"); e(f"s_cselect_b32 {s(S_TMP4)}, 0x3ff00000, {s(S_TMP4)}")
        e("v_and_b32 v2, 1, v0"); e("v_add_u32 v2, 30, v2"); e("v_lshlrev_b32 v2, 3, v2")
        e("v_lshrrev_b32 v3, 1, v0"); e("v_or_b32 v2, v2, v3"); e("v_lshlrev_b32 v2, 7, v2")
        e("v_cmp_gt_u32 vcc, 12, v0")
        e("v_cndmask_b32 v8, 0, v2, vcc"); e("v_cndmask_b32 v9, 0, 2, vcc")
        self.poll(8, 9, 10)
        self.poll_fb(4, S_TMP4)
        self.bar("BP4a")
        self.simple_bar_loop("B4", 10, "L_S4LOOP")
        self.bar("BE4")
        self.set_fb(5)
        e("s_branch L_P5")
        self.role = "X"
        self.lab("L_X4")
        self.bar("BP4a")
        e(f"s_lshl_b32 {s(S_TMP)}, {s(S_T0)}, 3")
        e(f"s_add_u32 {s(S_TMP)}, {s(S_TMP)}, {WS_ST2}")
        e("v_lshlrev_b32 v2, 3, v0")
        for ct in range(10):
            e(f"buffer_load_dwordx2 {v(8+2*ct,2)}, v2, {s(SRD_WS,4)}, {s(S_TMP)} offen sc1")
            e(f"s_add_u32 {s(S_TMP)}, {s(S_TMP)}, 16384")
        e(f"s_lshl_b32 {s(S_TMP)}, {s(S_N0)}, 2")
        e(f"s_add_u32 {s(S_TMP)}, {s(S_TMP)}, {WS_CS1}")
        e("v_lshlrev_b32 v3, 4, v0")
        e(f"s_mov_b32 m0, {LCS}")
        e("s_mov_b32 exec_hi, 0xffff")
        e(f"buffer_load_dwordx4 v3, {s(SRD_WS,4)}, {s(S_TMP)} offen sc1 lds")
        e("s_mov_b32 exec_hi, -1")
        self.bar("B40")
        e("s_waitcnt vmcnt(0)")
        for ct in range(1, 10):
            e(f"v_add_f32 v8, v8, {v(8+2*ct)}"); e(f"v_add_f32 v9, v9, {v(9+2*ct)}")
        e("v_mul_f32 v8, 0x3acccccd, v8"); e("v_mul_f32 v9, 0x3acccccd, v9")
        e("v_fma_f32 v9, -v8, v8, v9"); e("v_max_f32 v9, 0, v9"); e("v_add_f32 v9, 0x3727c5ac, v9")
        e("v_rsq_f32 v10, v9"); e("v_mul_f32 v11, -1.0, v8"); e("v_mul_f32 v11, v11, v10")
        e(f"v_add_u32 v2, {LST}, v2")
        e("ds_write_b64 v2, v[10:11]")
        e("s_waitcnt lgkmcnt(0)")
        e(f"s_mov_b32 {s(S_IT)}, 0")
        self.lab("L_X4LOOP")
        self.bar("B4loop")
        e(f"s_add_u32 {s(S_IT)}, {s(S_IT)}, 1")
        e(f"s_cmp_lt_u32 {s(S_IT)}, 10")
        e("s_cbranch_scc1 L_X4LOOP")
        self.bar("BE4")
        e("s_branch L_P5")
        self.role = "C"
        self.lab("L_C4")
        ACC = 64; FA_ = 112; FB_ = 136; VW = 8; VWc = 12; VB = 16; VBc = 17; CS = 144; PK = 192
        e("v_lshrrev_b32 v2, 5, v0"); e("v_bfe_u32 v3, v0, 2, 2")
        e("v_lshl_add_u32 v6, v2, 3, v3"); e("v_mul_u32_u24 v6, 384, v6")
        e("v_and_b32 v5, 1, v0"); e("v_lshl_add_u32 v6, v5, 3, v6")
        e("v_bfe_u32 v4, v0, 4, 1"); e("v_lshlrev_b32 v4, 1, v4"); e("v_bfe_u32 v5, v0, 1, 1"); e("v_or_b32 v4, v4, v5")
        e(f"s_and_b32 {s(S_TMP)}, {s(S_WV)}, 1"); e(f"s_mul_i32 {s(S_TMP)}, {s(S_TMP)}, 12")
        e(f"v_add_u32 v4, {s(S_TMP)}, v4")
        e("v_bfe_u32 v5, v0, 3, 1"); e("v_lshlrev_b32 v5, 2, v5")
        for f in range(3):
            e(f"v_add_u32 v7, {4*f}, v4"); e("v_xor_b32 v7, v7, v5")
            e(f"v_lshl_add_u32 {v(VW+f)}, v7, 4, v6")
        e(f"s_lshr_b32 {s(S_TMP)}, {s(S_WV)}, 1"); e(f"s_lshl_b32 {s(S_TMP)}, {s(S_TMP)}, 10")
        e(f"s_add_u32 {s(S_TMP)}, {s(S_TMP)}, 24576")
        e(f"v_lshl_add_u32 {v(VB)}, v0, 4, {s(S_TMP)}")
        for i in range(0, 48, 2): e(f"v_mov_b64 {v(ACC+i,2)}, 0")
        e("v_and_b32 v1, 31, v0")
        e(f"s_lshr_b32 {s(S_TMP)}, {s(S_WV)}, 1"); e(f"s_lshl_b32 {s(S_TMP)}, {s(S_TMP)}, 5")
        e(f"v_add_u32 v3, {s(S_TMP)}, v1")
        e(f"v_lshlrev_b32 v20, 3, v3"); e(f"v_add_u32 v20, {LST}, v20")
        e(f"v_add_u32 v3, {s(S_T0)}, v3")
        e(f"s_and_b32 {s(S_TMP)}, {s(S_WV)}, 1"); e(f"s_mul_i32 {s(S_TMP)}, {s(S_TMP)}, 96")
        e(f"s_lshl_b32 {s(S_TMP2)}, {s(S_TMP)}, 2"); e(f"s_add_u32 {s(S_TMP2)}, {s(S_TMP2)}, {LCS}")
        e(f"v_lshl_add_u32 v21, v2, 4, {s(S_TMP2)}")
        e(f"s_add_u32 {s(S_TMP)}, {s(S_TMP)}, {s(S_N0)}"); e(f"s_lshr_b32 {s(S_TMP)}, {s(S_TMP)}, 3")
        e(f"v_add_u32 v4, {s(S_TMP)}, v2"); e("v_lshlrev_b32 v4, 15, v4")
        e("v_lshl_add_u32 v4, v3, 4, v4"); e(f"v_add_u32 v22, {WS_H1}, v4")
        def reads(ks, setn):
            fa = FA_ + 12 * setn; fb = FB_ + 4 * setn
            o = []
            for f in range(3):
                for u in range(2):
                    o.append(f"ds_read_b64_tr_b16 {v(fa+4*f+2*u,2)}, {v(VWc+f)} offset:{ks*6144+u*1536}")
            o.append(f"ds_read_b128 {v(fb,4)}, {v(VBc)} offset:{ks*2048}")
            return [o[6], o[0], o[1], o[2], o[3], o[4], o[5]]
        def mf(setn):
            fa = FA_ + 12 * setn; fb = FB_ + 4 * setn
            return [f"v_mfma_f32_32x32x16_bf16 {v(ACC+16*f,16)}, {v(fa+4*f,4)}, {v(fb,4)}, {v(ACC+16*f,16)}" for f in range(3)]
        def upd():
            return [f"v_add_u32 {v(VWc+f)}, {s(S_SLOT)}, {v(VW+f)}" for f in range(3)] + [f"v_add_u32 {v(VBc)}, {s(S_SLOT)}, {v(VB)}"]
        e(f"s_mov_b32 {s(S_SLOT)}, 0"); e(f"s_mov_b32 {s(S_IT)}, 0")
        for t in upd(): e(t)
        self.bar("BP4a")
        self.stamp("C4go")
        self.bar("B40")
        for t in reads(0, 0): e(t)
        self.lab("L_C4LOOP")
        for ks in range(3):
            r = reads(ks + 1, (ks + 1) & 1); m = mf(ks & 1)
            e("s_waitcnt lgkmcnt(0)")
            e(m[0]); e(r[0]); e(r[1]); e(r[2]); e(m[1]); e(r[3]); e(r[4]); e(r[5]); e(r[6])
            if ks == 2:
                e(f"s_add_u32 {s(S_SLOT)}, {s(S_SLOT)}, 32768")
                e(f"s_and_b32 {s(S_SLOT)}, {s(S_SLOT)}, {4*32768-1}")
            e(m[2])
            if ks == 2:
                for t in upd(): e(t)
        m = mf(1); r = reads(0, 0)
        e("s_waitcnt lgkmcnt(0)")
        self.bar("B4loop")
        e(m[0]); e(r[0]); e(r[1]); e(r[2]); e(m[1]); e(r[3]); e(r[4]); e(r[5]); e(r[6]); e(m[2])
        e(f"s_add_u32 {s(S_IT)}, {s(S_IT)}, 1")
        e(f"s_cmp_lt_u32 {s(S_IT)}, 10")
        e("s_cbranch_scc1 L_C4LOOP")
        self.stamp("C4loop")
        e("s_waitcnt lgkmcnt(0)")
        e("ds_read_b64 v[24:25], v20")
        for f in range(3):
            for j in range(4):
                e(f"ds_read_b128 {v(CS+16*f+4*j,4)}, v21 offset:{(32*f+8*j)*4}")
        e("s_waitcnt lgkmcnt(0)")
        e("v_mul_f32 v26, 0xbfb8aa3b, v24")
        e("v_mul_f32 v27, 0xbfb8aa3b, v25")
        e("v_mov_b32 v28, 1.0"); e("v_mov_b32 v29, 1.0")
        stores = []
        for f in range(3):
            d = ACC + 16 * f; c = CS + 16 * f
            for i in range(0, 16, 2):
                e(f"v_pk_mul_f32 {v(d+i,2)}, {v(d+i,2)}, v[24:25] op_sel_hi:[1,0]")
            for i in range(0, 16, 2):
                e(f"v_pk_fma_f32 {v(d+i,2)}, {v(c+i,2)}, v[24:25], {v(d+i,2)} op_sel:[0,1,0] op_sel_hi:[1,1,1]")
            for i in range(16):
                e(f"v_mul_f32 {v(c+i)}, 0xbfb8aa3b, {v(d+i)}")
            for i in range(16):
                e(f"v_exp_f32 {v(c+i)}, {v(c+i)}")
            for i in range(0, 16, 2):
                e(f"v_pk_add_f32 {v(c+i,2)}, {v(c+i,2)}, v[28:29]")
            for i in range(16):
                e(f"v_rcp_f32 {v(c+i)}, {v(c+i)}")
            for i in range(0, 16, 2):
                e(f"v_pk_mul_f32 {v(d+i,2)}, {v(d+i,2)}, {v(c+i,2)}")
            for t in range(2):
                p = PK + 8 * f + 4 * t
                for q in range(4):
                    e(f"v_cvt_pk_bf16_f32 {v(p+q)}, {v(d+8*t+2*q)}, {v(d+8*t+2*q+1)}")
            sts = []
            for t in range(2):
                p = PK + 8 * f + 4 * t
                sts.append(f"s_mov_b32 {s(S_TMP)}, {(4*f+2*t)*CH}")
                sts.append(f"buffer_store_dwordx4 {v(p,4)}, v22, {s(SRD_WS,4)}, {s(S_TMP)} offen")
            self.store_mode(sts)
        self.stamp("C4st")
        e("s_waitcnt vmcnt(0)")
        self.bar("BE4")
        self.stamp("C4end")
        e("s_branch L_P5")

    def ring_loader(self, stage, per, nst, slot_bytes, tag, lab, nslot=4):
        e = self.e
        for st in range(3): stage(st * slot_bytes)
        e(f"s_waitcnt vmcnt({2*per})")
        self.bar(tag + "0")
        stage(3 * slot_bytes)
        e(f"s_mov_b32 {s(S_IT)}, 0")
        e(f"s_mov_b32 {s(S_FILL)}, 0")
        self.lab(lab)
        La = self.L("L_a"); Lb = self.L("L_b"); Lt = self.L("L_t"); Ls = self.L("L_s")
        e(f"s_cmp_eq_u32 {s(S_IT)}, {nst-3}"); e(f"s_cbranch_scc1 {La}")
        e(f"s_cmp_gt_u32 {s(S_IT)}, {nst-3}"); e(f"s_cbranch_scc1 {Lb}")
        e(f"s_waitcnt vmcnt({2*per})"); e(f"s_branch {Lt}")
        self.lab(La); e(f"s_waitcnt vmcnt({per})"); e(f"s_branch {Lt}")
        self.lab(Lb); e("s_waitcnt vmcnt(0)")
        self.lab(Lt)
        self.bar(tag + "loop")
        e(f"s_cmp_gt_u32 {s(S_IT)}, {nst-5}")
        e(f"s_cbranch_scc1 {Ls}")
        stage(("sgpr", S_FILL))
        self.lab(Ls)
        e(f"s_add_u32 {s(S_FILL)}, {s(S_FILL)}, {slot_bytes}")
        e(f"s_cmp_eq_u32 {s(S_FILL)}, {nslot*slot_bytes}")
        e(f"s_cselect_b32 {s(S_FILL)}, 0, {s(S_FILL)}")
        e(f"s_add_u32 {s(S_IT)}, {s(S_IT)}, 1")
        e(f"s_cmp_lt_u32 {s(S_IT)}, {nst}")
        e(f"s_cbranch_scc1 {lab}")

    def phase5(self):
        e = self.e
        self.role = "P5"
        self.lab("L_P5")
        e(f"s_cmp_ge_u32 {s(S_I)}, 30")
        e("s_cbranch_scc1 L_FIN")
        self.p3_decode()
        self.role_dispatch(5)
        SL = 40960
        self.role = "L"
        self.wrow_voffsets(8, None, 1280)
        e("v_lshrrev_b32 v2, 5, v0"); e("v_and_b32 v3, 31, v0")
        e("v_lshlrev_b32 v2, 15, v2")
        e("v_lshl_add_u32 v11, v3, 4, v2")
        e(f"s_lshl_b32 {s(S_TMP)}, {s(S_T)}, 7")
        self.srd(SRD_W, S_W2, S_TMP, 1536 * 1280)
        e(f"s_mov_b32 {s(S_KW)}, 0")
        e(f"s_lshl_b32 {s(S_KA)}, {s(S_T0)}, 4")
        e(f"s_add_u32 {s(S_KA)}, {s(S_KA)}, {WS_H1}")
        def aidx(idx):
            ks, tt = idx // 3, idx % 3
            return [f"s_add_u32 {s(S_TMP)}, {s(S_KA)}, {ks*2*CH + tt*512}", f"buffer_load_dwordx4 v11, {s(SRD_WS,4)}, {s(S_TMP)} offen sc1 lds"]
        def stage5(fill, wave):
            base = 0 if wave == 4 else 16384 + 4096
            if isinstance(fill, int): e(f"s_mov_b32 m0, {fill + base}")
            else: e(f"s_add_u32 m0, {s(fill[1])}, {base}")
            first = True
            if wave == 4:
                for m in range(16):
                    if not first: e(f"s_add_u32 m0, m0, {s(S_C1024)}")
                    first = False
                    e(f"s_add_u32 {s(S_TMP)}, {s(S_KW)}, {(16*(m>>1)+4*(m&1))*1280}")
                    e(f"buffer_load_dwordx4 v8, {s(SRD_W,4)}, {s(S_TMP)} offen lds")
                rng = range(0, 4)
            else:
                rng = range(4, 24)
            for idx in rng:
                if not first: e(f"s_add_u32 m0, m0, {s(S_C1024)}")
                first = False
                for t in aidx(idx): e(t)
            e(f"s_add_u32 {s(S_KW)}, {s(S_KW)}, {128*1280}")
            e(f"s_add_u32 {s(S_KA)}, {s(S_KA)}, {16*CH}")
        self.bar("BP5a")
        self.stamp("L5go")
        L5 = self.L("L_l5"); Lj = self.L("L_lj")
        e(f"s_cmp_eq_u32 {s(S_WV)}, 5"); e(f"s_cbranch_scc1 {L5}")
        for wave in (4, 5):
            if wave == 5: self.lab(L5)
            sv = list(self.bars["L"])
            self.ring_loader(lambda fill: stage5(fill, wave), 20, 12, SL, "B5", f"L_L5LOOP{wave}")
            if wave == 4:
                self.bars["L"] = sv
                e(f"s_branch {Lj}")
        self.lab(Lj)
        self.bar("BR5")
        e("s_branch L_FIN")
        self.role = "S"
        self.lab("L_S5")
        e(f"s_mov_b32 {s(S_TMP4)}, 0xffff")
        e(f"s_cmp_eq_u32 {s(S_R)}, 1"); e(f"s_cselect_b32 {s(S_TMP4)}, 0xffff00, {s(S_TMP4)}")
        e(f"s_cmp_eq_u32 {s(S_R)}, 2"); e(f"s_cselect_b32 {s(S_TMP4)}, 0xff000000, {s(S_TMP4)}")
        self.poll_fb(5, S_TMP4)
        self.bar("BP5a")
        self.simple_bar_loop("B5", 12, "L_S5LOOP")
        self.bar("BR5")
        e("s_branch L_FIN")
        self.role = "X"
        self.lab("L_X5")
        self.bar("BP5a")
        self.simple_bar_loop("B5", 12, "L_X5LOOP")
        self.bar("BR5")
        e("s_branch L_FIN")
        self.role = "C"
        self.lab("L_C5")
        ACC = 64; FA_ = 112; FB_ = 120; VW = 16; VB = 18; RED = 160
        HR = self.HRES
        e("v_and_b32 v1, 31, v0")
        e(f"v_add_u32 v3, {s(S_T0)}, v1")
        e("v_mul_u32_u24 v4, 1280, v3")
        e(f"s_lshl_b32 {s(S_TMP)}, {s(S_T)}, 6")
        e(f"s_and_b32 {s(S_TMP2)}, {s(S_WV)}, 1"); e(f"s_lshl_b32 {s(S_TMP2)}, {s(S_TMP2)}, 5")
        e(f"s_add_u32 {s(S_TMP)}, {s(S_TMP)}, {s(S_TMP2)}")
        e(f"s_lshr_b32 {s(S_TMP2)}, {s(S_WV)}, 1"); e(f"s_lshl_b32 {s(S_TMP2)}, {s(S_TMP2)}, 4")
        e(f"s_add_u32 {s(S_N0)}, {s(S_TMP)}, {s(S_TMP2)}")
        e("v_lshrrev_b32 v2, 5, v0")
        e(f"v_lshl_add_u32 v5, v2, 3, {s(S_N0)}")
        e("v_lshl_add_u32 v20, v5, 1, v4")
        self.srd(SRD_T, S_OUT, size=2048 * 1280)
        self.frag_addr_w128(VW, 1024, 0)
        e(f"s_lshr_b32 {s(S_TMP)}, {s(S_WV)}, 1")
        e(f"s_lshl_b32 {s(S_TMP2)}, {s(S_TMP)}, 11")
        e(f"v_add_u32 {v(VW)}, {s(S_TMP2)}, {v(VW)}")
        e(f"s_mul_i32 {s(S_TMP)}, {s(S_TMP)}, 3072")
        e(f"s_add_u32 {s(S_TMP)}, {s(S_TMP)}, 16384")
        e(f"v_lshl_add_u32 {v(VB)}, v0, 4, {s(S_TMP)}")
        for i in range(0, 48, 2): e(f"v_mov_b64 {v(ACC+i,2)}, 0")
        self.bar("BP5a")
        self.stamp("C5go")
        self.gemm96_loop("B5", 12, SL, 4, 0, 0, 2048, VW, VB, ACC, FA_, FB_, wres=False)
        self.stamp("C5loop")
        sv = list(self.bars["C"])
        self.pair_reduce(ACC, 0, RED)
        self.bars["C"] = sv + ["BR5"]
        for tt in range(3):
            for q in range(4):
                x = HR + 4 * tt + q; d = RED + 8 * tt + 2 * q
                e(f"v_lshlrev_b32 v2, 16, {v(x)}")
                e(f"v_and_b32 v3, 0xffff0000, {v(x)}")
                e(f"v_add_f32 {v(d)}, {v(d)}, v2")
                e(f"v_add_f32 {v(d+1)}, {v(d+1)}, v3")
                e(f"v_cvt_pk_bf16_f32 {v(24+4*tt+q)}, {v(d)}, {v(d+1)}")
            e(f"v_permlane32_swap_b32 {v(24+4*tt)}, {v(24+4*tt+2)}")
            e(f"v_permlane32_swap_b32 {v(24+4*tt+1)}, {v(24+4*tt+3)}")
            if tt == 2:
                Ls = self.L("L_c5s")
                e(f"s_cmp_eq_u32 {s(S_R)}, 2"); e(f"s_cbranch_scc1 {Ls}")
            e(f"s_mov_b32 {s(S_TMP)}, {tt*32*1280}")
            e(f"buffer_store_dwordx4 {v(24+4*tt,4)}, v20, {s(SRD_T,4)}, {s(S_TMP)} offen")
            if tt == 2: self.lab(Ls)
        self.stamp("C5end")
        e("s_branch L_FIN")

    def colsum_role(self):
        e = self.e
        self.role = "CS"
        self.lab("L_COLSUM")
        e("s_waitcnt lgkmcnt(0)")
        self.srd(SRD_WS, S_WS, size=WS_SIZE)
        e(f"s_getreg_b32 {s(S_XCC)}, hwreg(HW_REG_XCC_ID, 0, 4)")
        e(f"s_lshl_b32 {s(S_T)}, {s(S_G)}, 1")
        e(f"s_add_u32 {s(S_T)}, {s(S_T)}, {s(S_I)}")
        e(f"s_sub_u32 {s(S_T)}, {s(S_T)}, 30")
        Lw = self.L("L_w")
        e(f"s_cmp_lg_u32 {s(S_WV)}, 6")
        e(f"s_cbranch_scc1 {Lw}")
        self.clear_flags()
        e("s_waitcnt vmcnt(0)")
        if not (self.exp & 4): self.handshake_store()
        self.lab(Lw)
        def colsum(wptr, rowbytes, ntiles, wsoff, total, flagval):
            Lskip = self.L("L_cs_skip")
            e(f"s_cmp_ge_u32 {s(S_T)}, {ntiles}")
            e(f"s_cbranch_scc1 {Lskip}")
            e(f"s_lshl_b32 {s(S_TMP)}, {s(S_T)}, 8")
            self.srd(SRD_W, wptr, S_TMP, total)
            e("v_lshrrev_b32 v1, 4, v0")
            e(f"s_lshl_b32 {s(S_TMP)}, {s(S_WV)}, 2")
            e(f"v_add_u32 v1, {s(S_TMP)}, v1")
            e(f"s_mov_b32 {s(S_TMP)}, {rowbytes}")
            e(f"v_mul_lo_u32 v2, v1, {s(S_TMP)}")
            e("v_and_b32 v3, 15, v0")
            e("v_lshl_add_u32 v2, v3, 4, v2")
            for i in range(8): e(f"v_mov_b32 {v(8+i)}, 0")
            e(f"s_mov_b32 {s(S_KW)}, 0")
            NB = 20
            for b in range(NB):
                e(f"buffer_load_dwordx4 {v(32+4*b,4)}, v2, {s(SRD_W,4)}, {s(S_KW)} offen")
                e(f"s_add_u32 {s(S_KW)}, {s(S_KW)}, {32*rowbytes}")
            for b in range(NB):
                if b % 4 == 0: e(f"s_waitcnt vmcnt({NB-4-b})")
                for q in range(4):
                    e(f"v_lshlrev_b32 v4, 16, {v(32+4*b+q)}")
                    e(f"v_and_b32 v5, 0xffff0000, {v(32+4*b+q)}")
                    e(f"v_add_f32 {v(8+2*q)}, {v(8+2*q)}, v4")
                    e(f"v_add_f32 {v(8+2*q+1)}, {v(8+2*q+1)}, v5")
            e("v_lshlrev_b32 v4, 9, v1")
            e("v_lshl_add_u32 v4, v3, 5, v4")
            e("ds_write_b128 v4, v[8:11]")
            e("ds_write_b128 v4, v[12:15] offset:16")
            e("s_waitcnt lgkmcnt(0)")
            e("s_barrier")
            Lw = self.L("L_w")
            e(f"s_cmp_ge_u32 {s(S_WV)}, 2")
            e(f"s_cbranch_scc1 {Lw}")
            e(f"s_lshl_b32 {s(S_TMP)}, {s(S_WV)}, 6")
            e(f"v_add_u32 v1, {s(S_TMP)}, v0")
            e("v_lshlrev_b32 v2, 2, v1")
            for k in range(32):
                e(f"ds_read_b32 {v(32+k)}, v2 offset:{512*k}")
            e("s_waitcnt lgkmcnt(0)")
            for k in range(1, 32):
                e(f"v_add_f32 v32, v32, {v(32+k)}")
            e(f"s_lshl_b32 {s(S_TMP)}, {s(S_T)}, 9")
            e(f"s_add_u32 {s(S_TMP)}, {s(S_TMP)}, {wsoff}")
            e(f"v_add_u32 v2, {s(S_TMP)}, v2")
            e(f"buffer_store_dword v32, v2, {s(SRD_WS,4)}, 0 offen sc1")
            e("s_waitcnt vmcnt(0)")
            self.lab(Lw)
            e("s_barrier")
            self.lab(Lskip)
            Lw = self.L("L_w")
            e(f"s_cmp_lg_u32 {s(S_WV)}, 6")
            e(f"s_cbranch_scc1 {Lw}")
            self.set_fa(flagval)
            self.lab(Lw)
        colsum(S_WQKV, 3840, 15, WS_CSQ, 640 * 3840, 1)
        colsum(S_W1, 3072, 12, WS_CS1, 640 * 3072, 2)
        Lw = self.L("L_w")
        e(f"s_cmp_lg_u32 {s(S_WV)}, 6")
        e(f"s_cbranch_scc1 {Lw}")
        self.s_hs_issue(first=True)
        self.s_hs_verify()
        self.lab(Lw)
        e("s_branch L_P2")

    def finish(self):
        e = self.e
        self.lab("L_FIN")
        if self.prof:
            e("s_memtime s[98:99]")
            e("s_waitcnt lgkmcnt(0)")
            e("v_writelane_b32 v255, s98, 63")
            e("s_memrealtime s[98:99]")
            e("s_waitcnt lgkmcnt(0)")
            e("v_writelane_b32 v255, s98, 62")
            e(f"s_lshl_b32 {s(S_TMP)}, s2, 11")
            e(f"s_lshl_b32 {s(S_TMP2)}, {s(S_WV)}, 8")
            e(f"s_add_u32 {s(S_TMP)}, {s(S_TMP)}, {s(S_TMP2)}")
            e(f"s_add_u32 {s(S_TMP)}, {s(S_TMP)}, {WS_PROF}")
            e("v_mbcnt_lo_u32_b32 v1, -1, 0")
            e("v_mbcnt_hi_u32_b32 v1, -1, v1")
            e("v_lshlrev_b32 v1, 2, v1")
            e(f"buffer_store_dword v255, v1, {s(SRD_WS,4)}, {s(S_TMP)} offen")
        self.lab("L_END")
        e("s_endpgm")

    def build(self):
        self.entry()
        self.p1_loader()
        self.p1_sync()
        self.p1_aux()
        self.p1_compute()
        self.colsum_role()
        self.phase2()
        self.bars_p1 = {r: list(self.bars[r]) for r in ("C", "L", "S", "X")}
        self.phase3()
        self.phase4()
        self.phase5()
        self.finish()
        def norm(lst):
            out = []
            for b in lst:
                if out and out[-1] == b and b.endswith("loop"): continue
                out.append(b)
            return out
        ref = norm(self.bars["C"])
        for r in ("L", "S", "X"):
            assert norm(self.bars[r]) == ref, (r, norm(self.bars[r]), ref)
        body = self.A.finalize()
        hdr = open("cdna_kernels/" + NAME + ".s.ref").read().split("; Override")[0]
        out = hdr + "; @launch grid=(256,1,1) block=(512,1,1) lds=163840\n"
        out += '.amdgcn_target "amdgcn-amd-amdhsa--gfx950"\n.text\n'
        k = NAME + "_kernel"
        out += f".globl {k}\n.p2align 8\n.type {k},@function\n{k}:\n"
        out += body
        out += f""".section .rodata,"a"
.p2align 6
.amdhsa_kernel {k}
  .amdhsa_next_free_vgpr 256
  .amdhsa_next_free_sgpr 102
  .amdhsa_accum_offset 256
  .amdhsa_group_segment_fixed_size 0
  .amdhsa_kernarg_size 72
  .amdhsa_user_sgpr_count 2
  .amdhsa_user_sgpr_kernarg_segment_ptr 1
  .amdhsa_system_sgpr_workgroup_id_x 1
  .amdhsa_float_denorm_mode_32 3
.end_amdhsa_kernel
"""
        return out

if __name__ == "__main__":
    import argparse, subprocess
    ap = argparse.ArgumentParser()
    ap.add_argument("-o", default="k.s")
    ap.add_argument("--stop", type=int, default=99)
    ap.add_argument("--prof", action="store_true")
    ap.add_argument("--exp", type=int, default=0)
    a_ = ap.parse_args()
    g = Gen(stop=a_.stop, prof=a_.prof); g.exp = a_.exp
    txt = g.build()
    open(a_.o, "w").write(txt)
    print("nops inserted:", g.A.nops_inserted, "lines:", txt.count("\n"), "stamps:", g.stampnames)
    import json; json.dump(g.stampnames, open(a_.o + ".stamps.json", "w"))
    r = subprocess.run(["clang", "-x", "assembler", "-target", "amdgcn-amd-amdhsa", "-mcpu=gfx950", "-c", a_.o, "-o", "k.o"], capture_output=True, text=True)
    if r.returncode: print(r.stderr[:3000]); sys.exit(1)
    r = subprocess.run("llvm-objdump -h k.o | grep text", shell=True, capture_output=True, text=True); print(r.stdout.strip())
```

```python
import sys
from asmgen import *

NAME = "sequential_preLN__sliding_block__dense_activation_silu__prompt"

WS_FA    = 0x0; WS_FB = 0x8000; WS_ST1 = 0x10000; WS_CSQ = 0x14000; WS_CS1 = 0x16000; WS_ST2 = 0x20000
WS_QKV   = 0x100000; WS_O = WS_QKV; WS_H = WS_QKV + 80 * 32768; WS_H1 = WS_QKV; WS_PROF = 0x2000000
WS_SIZE  = 0x10000000
CH = 2048 * 16
NSLOT = 4
PL = 6208
LDS_K = 0; LDS_V = 5 * PL; LDS_ONES = 10 * PL
LDS_ST1 = 69632
LDS_CSQ = LDS_ST1 + 1024
LDS_CTRL = 71680
LDS_P3ST = 155648
LDS_P4ST = 161792
LDS_WO = 81920

S_X, S_WQKV, S_WO, S_BX, S_W1, S_W2, S_OUT, S_DBG, S_WS = 4, 6, 8, 10, 12, 14, 16, 18, 20
SRD_A, SRD_W, SRD_WS, SRD_T = 24, 28, 32, 36
S_G, S_I, S_WV, S_T0, S_N0, S_R, S_T = 40, 41, 42, 43, 44, 45, 46
S_KA, S_KW, S_SLOT, S_FILL, S_IT, S_TMP, S_TMP2, S_TMP3 = 47, 48, 49, 50, 51, 52, 53, 54
S_XCC, S_MODE = 55, 56
S_EX = 58; S_M = 60; S_C1024 = 62; S_TMP4 = 63
S_STAMP = 64
SH = 64

class Gen:
    def __init__(self, stop=99, prof=False):
        self.A = Asm(); self.stop = stop; self.prof = prof
        self.nstamp = {}; self.role = None; self.exp = 0; self.itphase = None; self.h1it = 5
        self.bars = {}
        self.stampnames = {}

    def e(self, t): self.A.e(t)
    def L(self, p="L"): return self.A.newlabel(p)
    def lab(self, n): self.A.label(n)

    def bar(self, name):
        self.bars.setdefault(self.role, []).append(name)
        self.e("s_barrier")

    def stamp(self, name=None):
        if not self.prof: return
        n = self.nstamp.get(self.role, {"P2": 16, "P3": 24, "P4": 32, "P5": 40}.get(self.role, 1))
        assert n < 60
        self.e("s_memtime s[98:99]")
        self.e("s_waitcnt lgkmcnt(0)")
        self.e(f"v_writelane_b32 v255, s98, {n}")
        self.stampnames.setdefault(self.role, []).append(name or f"s{n}")
        self.nstamp[self.role] = n + 1

    def itstamp(self, vreg, tag="B1"):
        if not self.prof or self.itphase != tag: return
        e = self.e
        e("s_memtime s[96:97]"); e("s_waitcnt lgkmcnt(0)"); e(f"s_mov_b32 m0, {s(S_IT)}"); e("s_nop 1"); e(f"v_writelane_b32 {v(vreg)}, s96, m0")

    def srd(self, q, ptr, off_sgpr=None, size=None, off_imm=0):
        e = self.e
        if off_sgpr is not None:
            e(f"s_add_u32 {s(q)}, {s(ptr)}, {s(off_sgpr)}")
            e(f"s_addc_u32 {s(q+1)}, {s(ptr+1)}, 0")
        else:
            e(f"s_mov_b32 {s(q)}, {s(ptr)}"); e(f"s_mov_b32 {s(q+1)}, {s(ptr+1)}")
        if off_imm:
            e(f"s_add_u32 {s(q)}, {s(q)}, {off_imm}"); e(f"s_addc_u32 {s(q+1)}, {s(q+1)}, 0")
        if off_sgpr is not None: e(f"s_sub_u32 {s(q+2)}, {size - off_imm}, {s(off_sgpr)}")
        else: e(f"s_mov_b32 {s(q+2)}, {size - off_imm}")
        e(f"s_mov_b32 {s(q+3)}, 0x20000")

    def p1_decode(self):
        e = self.e
        e(f"s_cmp_ge_u32 {s(S_I)}, 15")
        e(f"s_cselect_b32 {s(S_R)}, 1, 0")
        e(f"s_mul_i32 {s(S_TMP)}, {s(S_R)}, 15")
        e(f"s_sub_u32 {s(S_T)}, {s(S_I)}, {s(S_TMP)}")
        e(f"s_lshl_b32 {s(S_T0)}, {s(S_G)}, 8")
        e(f"s_lshl_b32 {s(S_TMP)}, {s(S_R)}, 7")
        e(f"s_add_u32 {s(S_T0)}, {s(S_T0)}, {s(S_TMP)}")
        e(f"s_lshl_b32 {s(S_N0)}, {s(S_T)}, 7")

    def clear_flags(self):
        e = self.e
        e("v_mov_b32 v2, 0")
        e(f"s_lshl_b32 {s(S_TMP)}, s2, 7")
        e(f"v_mov_b32 v3, {s(S_TMP)}")
        e(f"s_lshl_b32 {s(S_TMP)}, {s(S_G)}, 8")
        e(f"s_lshl_b32 {s(S_TMP2)}, {s(S_I)}, 2")
        e(f"s_add_u32 {s(S_TMP)}, {s(S_TMP)}, {s(S_TMP2)}")
        e(f"s_add_u32 {s(S_TMP)}, {s(S_TMP)}, {WS_FB}")
        e(f"v_mov_b32 v4, {s(S_TMP)}")
        e("v_cmp_eq_u32 vcc, 0, v0")
        e("v_cndmask_b32 v3, v4, v3, vcc")
        e("s_mov_b64 exec, 3")
        e(f"buffer_store_dword v2, v3, {s(SRD_WS,4)}, 0 offen sc1")
        e("s_mov_b64 exec, -1")

    def handshake_store(self):
        e = self.e
        e(f"s_lshl_b32 {s(S_TMP)}, {s(S_G)}, 5")
        e(f"s_add_u32 {s(S_TMP)}, {s(S_TMP)}, {s(S_I)}")
        e(f"s_and_b32 {s(S_TMP2)}, {s(S_TMP)}, 3")
        e(f"s_lshl_b32 {s(S_TMP2)}, {s(S_TMP2)}, 3")
        e(f"s_and_b32 {s(S_TMP)}, {s(S_TMP)}, 0xfc")
        e(f"s_or_b32 {s(S_TMP4)}, {s(S_XCC)}, 0x80")
        e(f"s_lshl_b32 {s(S_TMP4)}, {s(S_TMP4)}, {s(S_TMP2)}")
        e(f"s_atomic_or {s(S_TMP4)}, {s(S_DBG,2)}, {s(S_TMP)}")

    def set_fa(self, val):
        e = self.e
        e(f"s_lshl_b32 {s(S_TMP)}, s2, 7")
        e(f"v_mov_b32 v3, {s(S_TMP)}")
        e(f"v_mov_b32 v2, {val}")
        e("s_mov_b64 exec, 1")
        e(f"buffer_store_dword v2, v3, {s(SRD_WS,4)}, 0 offen sc1")
        e("s_mov_b64 exec, -1")

    def poll(self, vaddr, vneed, vtmp, preloaded=False):
        e = self.e
        L = self.L("L_poll"); L2 = self.L("L_poll")
        if preloaded: e(f"s_branch {L2}")
        self.lab(L)
        e(f"buffer_load_dword {v(vtmp)}, {v(vaddr)}, {s(SRD_WS,4)}, 0 offen sc1")
        self.lab(L2)
        e("s_waitcnt vmcnt(0)")
        e(f"v_cmp_lt_u32 {s(S_M,2)}, {v(vtmp)}, {v(vneed)}")
        e(f"s_cmp_eq_u64 {s(S_M,2)}, 0")
        e(f"s_cbranch_scc0 {L}")

    def wait_handshake(self, vhs, preloaded=False):
        e = self.e
        L = self.L("L_hs"); L2 = self.L("L_hs")
        if preloaded: e(f"s_branch {L2}")
        self.lab(L)
        e("v_lshlrev_b32 v2, 2, v0")
        e(f"global_load_dword {v(vhs)}, v2, {s(S_DBG,2)} sc1")
        self.lab(L2)
        e("s_waitcnt vmcnt(0)")
        e(f"v_and_b32 v4, 0x80808080, {v(vhs)}")
        e("v_cmp_ne_u32 vcc, 0x80808080, v4")
        e("s_cmp_eq_u64 vcc, 0")
        e(f"s_cbranch_scc0 {L}")
        e(f"s_or_b32 {s(S_TMP)}, {s(S_XCC)}, 0x80")
        e(f"s_mul_i32 {s(S_TMP)}, {s(S_TMP)}, 0x01010101")
        e(f"v_cmp_ne_u32 {s(S_M,2)}, {s(S_TMP)}, {v(vhs)}")
        e(f"s_lshl_b32 {s(S_TMP)}, {s(S_G)}, 3")
        e(f"s_lshr_b64 {s(S_M,2)}, {s(S_M,2)}, {s(S_TMP)}")
        e(f"s_and_b32 {s(S_M)}, {s(S_M)}, 0xff")
        e(f"s_cselect_b32 {s(S_MODE)}, 0, 1")

    def entry(self):
        e = self.e
        self.role = "all"
        e("s_cmp_ge_u32 s2, 256")
        e("s_cbranch_scc1 L_END")
        if self.prof: e(f"s_memtime s[98:99]")
        e(f"s_load_dwordx16 s[4:19], s[0:1], 0")
        e(f"s_load_dwordx2 s[20:21], s[0:1], 64")
        e("v_lshrrev_b32 v1, 6, v0")
        e("v_and_b32 v0, 63, v0")
        e(f"s_and_b32 {s(S_G)}, s2, 7")
        e(f"v_readfirstlane_b32 {s(S_WV)}, v1")
        e(f"s_lshr_b32 {s(S_I)}, s2, 3")
        e(f"s_mov_b32 {s(S_C1024)}, 1024")
        if self.prof:
            e("s_waitcnt lgkmcnt(0)")
            e("v_writelane_b32 v255, s98, 0")
            e("s_memrealtime s[98:99]")
            e("s_waitcnt lgkmcnt(0)")
            e("v_writelane_b32 v255, s98, 61")
        e(f"s_cmp_ge_u32 {s(S_I)}, 30")
        e("s_cbranch_scc1 L_COLSUM")
        self.p1_decode()
        e(f"s_cmp_lt_u32 {s(S_WV)}, 4")
        e("s_cbranch_scc1 L_C1")
        e(f"s_cmp_eq_u32 {s(S_WV)}, 6")
        e("s_cbranch_scc1 L_S1")
        e(f"s_cmp_eq_u32 {s(S_WV)}, 7")
        e("s_cbranch_scc1 L_X1")

    def p1_loader(self):
        e = self.e
        self.role = "L"
        V = 8
        Lw = self.L("L_w5"); Lj = self.L("L_j")
        e(f"s_cmp_eq_u32 {s(S_WV)}, 5")
        e(f"s_cbranch_scc1 {Lw}")
        e("v_lshrrev_b32 v1, 3, v0")
        e("v_mul_u32_u24 v1, 1280, v1")
        e("v_lshrrev_b32 v2, 4, v0")
        e("v_and_b32 v3, 7, v0")
        e("v_xor_b32 v4, v3, v2")
        e("v_xor_b32 v5, 4, v4")
        e(f"v_lshl_add_u32 {v(V)}, v4, 4, v1")
        e(f"v_lshl_add_u32 {v(V+1)}, v5, 4, v1")
        e(f"v_add_u32 {v(V+1)}, 10240, {v(V+1)}")
        for q in range(2, 16):
            e(f"v_add_u32 {v(V+q)}, 20480, {v(V+q-2)}")
        e(f"s_mul_i32 {s(S_TMP)}, {s(S_T0)}, 1280")
        e(f"s_mov_b32 {s(S_KW)}, 128")
        e(f"s_mov_b32 {s(S_TMP3)}, 0")
        e("s_waitcnt lgkmcnt(0)")
        self.srd(SRD_A, S_X, S_TMP, 2048 * 1280)
        e(f"s_branch {Lj}")
        self.lab(Lw)
        e("v_lshrrev_b32 v2, 4, v0")
        e("v_mul_u32_u24 v1, 3840, v2")
        e("v_and_b32 v3, 15, v0")
        e("v_lshlrev_b32 v4, 2, v2")
        e("v_xor_b32 v3, v3, v4")
        e(f"v_lshl_add_u32 {v(V)}, v3, 4, v1")
        for q in range(1, 16):
            e(f"v_add_u32 {v(V+q)}, 15360, {v(V+q-1)}")
        e(f"s_lshl_b32 {s(S_TMP)}, {s(S_N0)}, 1")
        e(f"s_mov_b32 {s(S_KW)}, {64*3840}")
        e(f"s_mov_b32 {s(S_TMP3)}, 16384")
        e("s_waitcnt lgkmcnt(0)")
        self.srd(SRD_A, S_WQKV, S_TMP, 640 * 3840)
        self.lab(Lj)
        e(f"s_mov_b32 {s(S_KA)}, 0")
        def stage(m0init):
            e(m0init)
            for q in range(16):
                if q: e(f"s_add_u32 m0, m0, {s(S_C1024)}")
                e(f"buffer_load_dwordx4 {v(V+q)}, {s(SRD_A,4)}, {s(S_KA)} offen lds")
            e(f"s_add_u32 {s(S_KA)}, {s(S_KA)}, {s(S_KW)}")
        self.stamp()
        for st in range(2): stage(f"s_add_u32 m0, {s(S_TMP3)}, {st*32768}")
        self.srd(SRD_WS, S_WS, size=WS_SIZE)
        self.stamp()
        e("s_waitcnt vmcnt(16)")
        self.bar("B0")
        for st in range(2, 4): stage(f"s_add_u32 m0, {s(S_TMP3)}, {st*32768}")
        e(f"s_mov_b32 {s(S_IT)}, 0")
        e(f"s_mov_b32 {s(S_FILL)}, 0")
        self.lab("L_L1LOOP")
        La = self.L("L_a"); Lb = self.L("L_b"); Lt = self.L("L_t"); Ls = self.L("L_s")
        self.itstamp(250)
        e(f"s_cmp_eq_u32 {s(S_IT)}, 7"); e(f"s_cbranch_scc1 {La}")
        e(f"s_cmp_gt_u32 {s(S_IT)}, 7"); e(f"s_cbranch_scc1 {Lb}")
        e("s_waitcnt vmcnt(32)"); e(f"s_branch {Lt}")
        self.lab(La); e("s_waitcnt vmcnt(16)"); e(f"s_branch {Lt}")
        self.lab(Lb); e("s_waitcnt vmcnt(0)")
        self.lab(Lt)
        self.itstamp(251)
        self.bar("B1loop")
        self.itstamp(252)
        e(f"s_cmp_gt_u32 {s(S_IT)}, 5")
        e(f"s_cbranch_scc1 {Ls}")
        stage(f"s_add_u32 m0, {s(S_TMP3)}, {s(S_FILL)}")
        self.lab(Ls)
        self.itstamp(253)
        e(f"s_add_u32 {s(S_FILL)}, {s(S_FILL)}, 32768")
        e(f"s_and_b32 {s(S_FILL)}, {s(S_FILL)}, {NSLOT*32768-1}")
        e(f"s_add_u32 {s(S_IT)}, {s(S_IT)}, 1")
        e(f"s_cmp_lt_u32 {s(S_IT)}, 10")
        e("s_cbranch_scc1 L_L1LOOP")
        self.stamp("L1end")
        self.bar("BE1")
        e("s_branch L_P2")

    def p1_sync(self):
        e = self.e
        self.role = "S"
        self.lab("L_S1")
        e("s_waitcnt lgkmcnt(0)")
        self.srd(SRD_WS, S_WS, size=WS_SIZE)
        e(f"s_getreg_b32 {s(S_XCC)}, hwreg(HW_REG_XCC_ID, 0, 4)")
        self.clear_flags()
        self.stat_part(0)
        self.bar("B0")
        e("s_waitcnt vmcnt(0)")
        if not (self.exp & 4): self.handshake_store()
        self.stat_compute(0)
        e(f"s_mov_b32 {s(S_IT)}, 0")
        self.lab("L_S1LOOP")
        La = self.L(); Lb = self.L(); Lc = self.L(); Lx = self.L(); Ly = self.L(); Lp = self.L(); Lq = self.L(); Lr = self.L()
        e(f"s_cmp_eq_u32 {s(S_IT)}, 1"); e(f"s_cbranch_scc1 {La}")
        e(f"s_cmp_eq_u32 {s(S_IT)}, 5"); e(f"s_cbranch_scc1 {Lb}")
        e(f"s_cmp_eq_u32 {s(S_IT)}, 7"); e(f"s_cbranch_scc1 {Lc}")
        L8 = self.L(); L9 = self.L()
        e(f"s_cmp_eq_u32 {s(S_IT)}, 8"); e(f"s_cbranch_scc1 {L8}")
        e(f"s_cmp_eq_u32 {s(S_IT)}, 9"); e(f"s_cbranch_scc1 {L9}")
        e(f"s_branch {Lx}")
        self.lab(L8); self.s_hs_half_verify(0); self.s_hs_half_issue(1); e(f"s_branch {Lx}")
        self.lab(L9); self.s_hs_half_verify(1); e(f"s_branch {Lx}")
        self.lab(La); e("s_waitcnt vmcnt(0)"); e(f"s_branch {Lx}")
        self.lab(Lb)
        if not (self.exp & 12): self.s_hs_verify(); self.s_flags_issue()
        e(f"s_branch {Lx}")
        self.lab(Lc)
        if not (self.exp & 12): self.s_flags_verify()
        self.s_hs_half_issue(0)
        self.lab(Lx)
        self.bar("B1loop")
        e(f"s_cmp_eq_u32 {s(S_IT)}, 1"); e(f"s_cbranch_scc1 {Lp}")
        e(f"s_cmp_eq_u32 {s(S_IT)}, 3"); e(f"s_cbranch_scc1 {Lq}")
        e(f"s_branch {Ly}")
        self.lab(Lp)
        e(f"s_cmp_ge_u32 {s(S_T)}, 8"); e(f"s_cbranch_scc1 {Ly}")
        self.set_fa(1)
        e(f"s_branch {Ly}")
        self.lab(Lq)
        if not (self.exp & 12): self.s_hs_issue(first=True)
        self.lab(Ly)
        e(f"s_add_u32 {s(S_IT)}, {s(S_IT)}, 1")
        e(f"s_cmp_lt_u32 {s(S_IT)}, 10")
        e("s_cbranch_scc1 L_S1LOOP")
        self.bar("BE1")
        self.set_fa(2)
        e("s_branch L_P2")

    def s_hs_issue(self, first=False):
        e = self.e
        glc = "" if first else " glc"
        if not first: e("s_sleep 8")
        e(f"s_lshl_b32 {s(S_TMP)}, {s(S_G)}, 5")
        e(f"s_load_dwordx8 s[{SH}:{SH+7}], {s(S_DBG,2)}, {s(S_TMP)}{glc}")
        e(f"s_add_u32 {s(S_TMP)}, {s(S_G)}, 7")
        e(f"s_and_b32 {s(S_TMP)}, {s(S_TMP)}, 7")
        e(f"s_lshl_b32 {s(S_TMP)}, {s(S_TMP)}, 5")
        e(f"s_load_dwordx8 s[{SH+8}:{SH+15}], {s(S_DBG,2)}, {s(S_TMP)}{glc}")
        e(f"s_lshr_b32 {s(S_TMP)}, {s(S_T)}, 1")
        e(f"s_lshl_b32 {s(S_TMP)}, {s(S_TMP)}, 5")
        e(f"s_add_u32 {s(S_TMP)}, {s(S_TMP)}, 28")
        e(f"s_load_dword s{SH+16}, {s(S_DBG,2)}, {s(S_TMP)}{glc}")

    def s_hs_verify(self):
        e = self.e
        L = self.L("L_hs"); L2 = self.L("L_hs")
        e(f"s_branch {L2}")
        self.lab(L)
        self.s_hs_issue()
        self.lab(L2)
        e(f"s_or_b32 {s(S_TMP3)}, {s(S_XCC)}, 0x80")
        e(f"s_mul_i32 {s(S_TMP3)}, {s(S_TMP3)}, 0x01010101")
        e("s_waitcnt lgkmcnt(0)")
        e(f"s_or_b32 {s(S_TMP)}, s{SH+16}, 0x00008080")
        for q in range(16): e(f"s_and_b32 {s(S_TMP)}, {s(S_TMP)}, s{SH+q}")
        e(f"s_and_b32 {s(S_TMP)}, {s(S_TMP)}, 0x80808080")
        e(f"s_cmp_eq_u32 {s(S_TMP)}, 0x80808080")
        e(f"s_cbranch_scc0 {L}")
        e(f"s_mov_b32 {s(S_TMP2)}, 0")
        for q in range(8):
            e(f"s_xor_b32 {s(S_TMP4)}, s{SH+q}, {s(S_TMP3)}")
            e(f"s_and_b32 {s(S_TMP4)}, {s(S_TMP4)}, 0xbfbfbfbf")
            e(f"s_or_b32 {s(S_TMP2)}, {s(S_TMP2)}, {s(S_TMP4)}")
        e(f"s_cmp_eq_u32 {s(S_TMP2)}, 0")
        e(f"s_cselect_b32 {s(S_MODE)}, 1, 0")

    def s_flags_issue(self, first=True):
        e = self.e
        glc = "" if first else " glc"
        if not first: e("s_sleep 8")
        e(f"s_mul_i32 {s(S_TMP)}, {s(S_R)}, 15")
        e(f"s_lshl_b32 {s(S_TMP)}, {s(S_TMP)}, 3")
        e(f"s_or_b32 {s(S_TMP)}, {s(S_TMP)}, {s(S_G)}")
        e(f"s_lshl_b32 {s(S_TMP)}, {s(S_TMP)}, 7")
        e(f"s_add_u32 {s(S_M)}, {s(S_WS)}, {s(S_TMP)}")
        e(f"s_addc_u32 {s(S_M+1)}, {s(S_WS+1)}, 0")
        for q in range(8):
            e(f"s_load_dword s{SH+q}, {s(S_M,2)}, {q*8*128}{glc}")
        e(f"s_and_b32 {s(S_TMP)}, {s(S_T)}, 1")
        e(f"s_add_u32 {s(S_TMP)}, {s(S_TMP)}, 30")
        e(f"s_lshl_b32 {s(S_TMP)}, {s(S_TMP)}, 3")
        e(f"s_lshr_b32 {s(S_TMP2)}, {s(S_T)}, 1")
        e(f"s_or_b32 {s(S_TMP)}, {s(S_TMP)}, {s(S_TMP2)}")
        e(f"s_lshl_b32 {s(S_TMP)}, {s(S_TMP)}, 7")
        e(f"s_load_dword s{SH+8}, {s(S_WS,2)}, {s(S_TMP)}{glc}")

    def s_flags_verify(self):
        e = self.e
        L = self.L("L_fl"); L2 = self.L("L_fl")
        e(f"s_branch {L2}")
        self.lab(L)
        self.s_flags_issue(first=False)
        self.lab(L2)
        e("s_waitcnt lgkmcnt(0)")
        e(f"s_mov_b32 {s(S_TMP)}, -1")
        for q in range(9): e(f"s_min_u32 {s(S_TMP)}, {s(S_TMP)}, s{SH+q}")
        e(f"s_cmp_ge_u32 {s(S_TMP)}, 1")
        e(f"s_cbranch_scc0 {L}")

    def stat_part(self, half):
        e = self.e
        Lns = self.L("L_nostat")
        self.srd(SRD_T, S_X, size=2048 * 1280)
        e(f"s_cmp_ge_u32 {s(S_T)}, 8")
        e(f"s_cbranch_scc1 {Lns}")
        e(f"s_lshl_b32 {s(S_TMP)}, {s(S_T)}, 4")
        e(f"s_add_u32 {s(S_TMP)}, {s(S_TMP)}, {s(S_T0)}")
        e(f"s_add_u32 {s(S_TMP)}, {s(S_TMP)}, {8*half}")
        e(f"v_lshrrev_b32 v1, 4, v0")
        e(f"v_add_u32 v7, {s(S_TMP)}, v1")
        e(f"v_mul_u32_u24 v2, 1280, v7")
        e(f"v_and_b32 v1, 15, v0")
        e(f"v_lshl_add_u32 v2, v1, 4, v2")
        e(f"v_add_u32 v5, {4*1280}, v2")
        for p in range(2):
            for m in range(5):
                e(f"buffer_load_dwordx4 {v(32+20*p+4*m,4)}, {'v2' if p == 0 else 'v5'}, {s(SRD_T,4)}, 0 offen offset:{256*m}")
        self.lab(Lns)

    def stat_compute(self, half):
        e = self.e
        Lns = self.L("L_nostat")
        e(f"s_cmp_ge_u32 {s(S_T)}, 8")
        e(f"s_cbranch_scc1 {Lns}")
        for p in range(2):
            a_, b_ = 72 + 2 * p, 73 + 2 * p
            e(f"v_mov_b32 {v(a_)}, 0"); e(f"v_mov_b32 {v(b_)}, 0")
        e("v_mov_b32 v4, 0x3f803f80")
        for i in range(20):
            for p in range(2):
                a_, b_ = 72 + 2 * p, 73 + 2 * p
                e(f"v_dot2_f32_bf16 {v(a_)}, {v(32+20*p+i)}, v4, {v(a_)}")
                e(f"v_dot2_f32_bf16 {v(b_)}, {v(32+20*p+i)}, {v(32+20*p+i)}, {v(b_)}")
        for sh in (8, 4, 2, 1):
            for r in range(72, 76):
                e(f"v_add_f32_dpp {v(r)}, {v(r)}, {v(r)} row_ror:{sh} row_mask:0xf bank_mask:0xf")
        e("v_lshlrev_b32 v7, 3, v7")
        e(f"v_add_u32 v7, {WS_ST1}, v7")
        e("v_and_b32 v6, 15, v0")
        e("v_cmp_eq_u32 vcc, 0, v6")
        for p in range(2):
            a_, b_ = 72 + 2 * p, 73 + 2 * p
            o = 76 + 2 * p
            e(f"v_mul_f32 {v(a_)}, 0x3acccccd, {v(a_)}")
            e(f"v_mul_f32 {v(b_)}, 0x3acccccd, {v(b_)}")
            e(f"v_fma_f32 {v(b_)}, -{v(a_)}, {v(a_)}, {v(b_)}")
            e(f"v_max_f32 {v(b_)}, 0, {v(b_)}")
            e(f"v_add_f32 {v(b_)}, 0x3727c5ac, {v(b_)}")
            e(f"v_rsq_f32 {v(o)}, {v(b_)}")
            e(f"v_mul_f32 {v(o+1)}, -1.0, {v(a_)}")
            e(f"v_mul_f32 {v(o+1)}, {v(o+1)}, {v(o)}")
        e(f"s_and_saveexec_b64 {s(S_EX,2)}, vcc")
        e(f"buffer_store_dwordx2 v[76:77], v7, {s(SRD_WS,4)}, 0 offen sc1")
        e(f"buffer_store_dwordx2 v[78:79], v7, {s(SRD_WS,4)}, 0 offen offset:32 sc1")
        e(f"s_mov_b64 exec, {s(S_EX,2)}")
        self.lab(Lns)

    def p1_aux(self):
        e = self.e
        self.role = "X"
        self.lab("L_X1")
        e("s_waitcnt lgkmcnt(0)")
        if not (self.exp & 256):
            Ltl = self.L("L_tlb")
            e(f"s_cmp_ge_u32 {s(S_I)}, 2"); e(f"s_cbranch_scc1 {Ltl}")
            for k in range(1, 11):
                e(f"s_mov_b32 {s(S_TMP)}, {k*0x280000 if False else k*0x200000}")
                e(f"s_load_dword s100, {s(S_WS,2)}, {s(S_TMP)}")
            for ptr, offs in ((S_OUT, (0, 0x200000)), (S_WO, (0,)), (S_W1, (0, 0x1d0000)), (S_W2, (0, 0x1d0000)), (S_WQKV, (0x200000,)), (S_X, (0x200000,))):
                for o in offs:
                    e(f"s_mov_b32 {s(S_TMP)}, {o}")
                    e(f"s_load_dword s100, {s(ptr,2)}, {s(S_TMP)}")
            self.lab(Ltl)
        self.srd(SRD_WS, S_WS, size=WS_SIZE)
        self.stat_part(1)
        self.bar("B0")
        e("s_waitcnt vmcnt(0)")
        self.stat_compute(1)
        e(f"s_mov_b32 {s(S_IT)}, 0")
        self.lab("L_X1LOOP")
        Lx = self.L(); Ly = self.L(); Lz = self.L()
        L9 = self.L()
        e(f"s_cmp_eq_u32 {s(S_IT)}, 1"); e(f"s_cbranch_scc1 {Lz}")
        e(f"s_cmp_eq_u32 {s(S_IT)}, 9"); e(f"s_cbranch_scc1 {L9}")
        e(f"s_branch {Lx}")
        self.lab(L9)
        e("s_waitcnt vmcnt(0)")
        e(f"s_branch {Lx}")
        self.lab(Lz)
        e("s_waitcnt vmcnt(0)")
        self.lab(Lx)
        self.bar("B1loop")
        Lw2 = self.L()
        e(f"s_cmp_lg_u32 {s(S_IT)}, 3"); e(f"s_cbranch_scc1 {Lw2}")
        self.srd(SRD_T, S_W2, size=1536 * 1280)
        e(f"s_mul_i32 {s(S_TMP)}, {s(S_G)}, 30")
        e(f"s_add_u32 {s(S_TMP)}, {s(S_TMP)}, {s(S_I)}")
        e(f"s_lshl_b32 {s(S_TMP)}, {s(S_TMP)}, 13")
        e("v_lshlrev_b32 v2, 7, v0")
        e(f"buffer_load_dword v100, v2, {s(SRD_T,4)}, {s(S_TMP)} offen")
        self.lab(Lw2)
        e(f"s_cmp_lg_u32 {s(S_IT)}, 7"); e(f"s_cbranch_scc1 {Ly}")
        e(f"s_lshl_b32 {s(S_TMP)}, {s(S_T0)}, 3")
        e(f"s_add_u32 {s(S_TMP)}, {s(S_TMP)}, {WS_ST1}")
        e("v_lshlrev_b32 v2, 4, v0")
        e(f"s_mov_b32 m0, {LDS_ST1}")
        e("s_nop 0")
        e(f"buffer_load_dwordx4 v2, {s(SRD_WS,4)}, {s(S_TMP)} offen sc1 lds")
        e(f"s_lshl_b32 {s(S_TMP)}, {s(S_N0)}, 2")
        e(f"s_add_u32 {s(S_TMP)}, {s(S_TMP)}, {WS_CSQ}")
        e(f"s_mov_b32 m0, {LDS_CSQ}")
        e("s_mov_b32 exec_hi, 0")
        e(f"buffer_load_dwordx4 v2, {s(SRD_WS,4)}, {s(S_TMP)} offen sc1 lds")
        e("s_mov_b64 exec, -1")
        self.lab(Ly)
        e(f"s_add_u32 {s(S_IT)}, {s(S_IT)}, 1")
        e(f"s_cmp_lt_u32 {s(S_IT)}, 10")
        e("s_cbranch_scc1 L_X1LOOP")
        self.bar("BE1")
        e("s_branch L_P2")

    def p1_compute(self):
        e = self.e
        self.role = "C"
        self.lab("L_C1")
        ACC = 64; FA_ = 128; FB_ = 144
        VB, VA = 16, 20; VBc, VAc = 24, 28
        STT = 56; CS = 160; VST = 60
        e("v_and_b32 v1, 31, v0")
        e("v_lshrrev_b32 v2, 5, v0")
        e("v_bfe_u32 v3, v0, 1, 3")
        e("v_xor_b32 v3, v3, v2")
        e("v_lshlrev_b32 v3, 4, v3")
        e(f"s_lshr_b32 {s(S_TMP)}, {s(S_WV)}, 1")
        e(f"s_lshl_b32 {s(S_TMP)}, {s(S_TMP)}, 13")
        e("v_lshl_add_u32 v3, v1, 7, v3")
        e(f"v_add_u32 {v(VB)}, {s(S_TMP)}, v3")
        for ks in range(1, 4):
            e(f"v_xor_b32 {v(VB+ks)}, {32*ks}, {v(VB)}")
        e("v_bfe_u32 v3, v0, 2, 2")
        e("v_lshl_add_u32 v4, v2, 3, v3")
        e("v_lshlrev_b32 v4, 8, v4")
        e("v_bfe_u32 v5, v0, 4, 1")
        e("v_lshlrev_b32 v5, 1, v5")
        e("v_bfe_u32 v6, v0, 1, 1")
        e("v_or_b32 v5, v5, v6")
        e(f"s_and_b32 {s(S_TMP)}, {s(S_WV)}, 1")
        e(f"s_lshl_b32 {s(S_TMP)}, {s(S_TMP)}, 3")
        e(f"v_or_b32 v5, {s(S_TMP)}, v5")
        e("v_lshlrev_b32 v6, 2, v3")
        e("v_xor_b32 v5, v5, v6")
        e("v_lshl_add_u32 v4, v5, 4, v4")
        e("v_and_b32 v6, 1, v0")
        e("v_lshl_add_u32 v4, v6, 3, v4")
        e(f"v_add_u32 {v(VA)}, 16384, v4")
        e(f"v_xor_b32 {v(VA+1)}, 64, {v(VA)}")
        for i in range(0, 64, 2):
            e(f"v_mov_b64 {v(ACC+i,2)}, 0")
        e(f"s_lshr_b32 {s(S_TMP)}, {s(S_WV)}, 1")
        e(f"s_lshl_b32 {s(S_TMP)}, {s(S_TMP)}, 6")
        e(f"s_add_u32 {s(S_TMP)}, {s(S_TMP)}, {s(S_T0)}")
        e("v_and_b32 v1, 31, v0")
        e(f"v_add_u32 v2, {s(S_TMP)}, v1")
        e(f"s_lshr_b32 {s(S_TMP4)}, {s(S_WV)}, 1")
        e(f"s_lshl_b32 {s(S_TMP4)}, {s(S_TMP4)}, 9")
        e(f"s_add_u32 {s(S_TMP4)}, {s(S_TMP4)}, {LDS_ST1}")
        e("v_lshlrev_b32 v61, 3, v1")
        e(f"v_add_u32 v61, {s(S_TMP4)}, v61")
        e(f"s_and_b32 {s(S_TMP2)}, {s(S_WV)}, 1")
        e(f"s_lshl_b32 {s(S_TMP2)}, {s(S_TMP2)}, 6")
        e(f"s_add_u32 {s(S_TMP2)}, {s(S_TMP2)}, {s(S_N0)}")
        e("v_lshrrev_b32 v4, 5, v0")
        e(f"v_lshlrev_b32 v62, 4, v4")
        e(f"s_and_b32 {s(S_TMP)}, {s(S_WV)}, 1")
        e(f"s_lshl_b32 {s(S_TMP)}, {s(S_TMP)}, 8")
        e(f"s_add_u32 {s(S_TMP)}, {s(S_TMP)}, {LDS_CSQ}")
        e(f"v_add_u32 v62, {s(S_TMP)}, v62")
        e(f"s_lshr_b32 {s(S_TMP2)}, {s(S_TMP2)}, 3")
        e(f"v_add_u32 v5, {s(S_TMP2)}, v4")
        e(f"v_lshlrev_b32 v5, 15, v5")
        e("v_lshl_add_u32 v5, v2, 4, v5")
        e(f"v_add_u32 {v(VST)}, {WS_QKV}, v5")
        def reads(ks, setn):
            fa = FA_ + 8 * setn; fb = FB_ + 8 * setn
            o = []
            for f in range(2):
                for u in range(2):
                    o.append(f"ds_read_b64_tr_b16 {v(fa+4*f+2*u,2)}, {v(VAc+f)} offset:{ks*4096+u*1024}")
            for tt in range(2):
                o.append(f"ds_read_b128 {v(fb+4*tt,4)}, {v(VBc+ks)} offset:{tt*4096}")
            return [o[0], o[1], o[4], o[5], o[2], o[3]]
        def mfmas(setn):
            fa = FA_ + 8 * setn; fb = FB_ + 8 * setn
            o = []
            for f, tt in ((0, 0), (0, 1), (1, 0), (1, 1)):
                d = ACC + 16 * (2 * f + tt)
                o.append(f"v_mfma_f32_32x32x16_bf16 {v(d,16)}, {v(fa+4*f,4)}, {v(fb+4*tt,4)}, {v(d,16)}")
            return o
        def set_slot():
            o = []
            for ks in range(4): o.append(f"v_add_u32 {v(VBc+ks)}, {s(S_SLOT)}, {v(VB+ks)}")
            for f in range(2): o.append(f"v_add_u32 {v(VAc+f)}, {s(S_SLOT)}, {v(VA+f)}")
            return o
        e(f"s_mov_b32 {s(S_SLOT)}, 0")
        e(f"s_mov_b32 {s(S_IT)}, 0")
        for t in set_slot(): e(t)
        e("s_waitcnt lgkmcnt(0)")
        self.srd(SRD_WS, S_WS, size=WS_SIZE)
        self.stamp()
        self.bar("B0")
        self.stamp()
        for t in reads(0, 0): e(t)
        self.lab("L_C1LOOP")
        for ks in range(3):
            cur = ks & 1; nxt = cur ^ 1
            r = reads(ks + 1, nxt); m = mfmas(cur)
            e("s_waitcnt lgkmcnt(0)")
            e(m[0]); e(r[0]); e(r[1]); e(m[1]); e(r[2]); e(r[3]); e(m[2]); e(r[4]); e(r[5])
            if ks == 2:
                e(f"s_add_u32 {s(S_SLOT)}, {s(S_SLOT)}, 32768")
                e(f"s_cmp_eq_u32 {s(S_SLOT)}, {NSLOT*32768}")
                e(f"s_cselect_b32 {s(S_SLOT)}, 0, {s(S_SLOT)}")
            e(m[3])
            if ks == 2:
                for t in set_slot(): e(t)
        m = mfmas(1)
        r = reads(0, 0)
        e("s_waitcnt lgkmcnt(0)")
        self.itstamp(252)
        self.bar("B1loop")
        self.itstamp(253)
        e(m[0]); e(r[0]); e(r[1]); e(m[1]); e(r[2]); e(r[3]); e(m[2]); e(r[4]); e(r[5]); e(m[3])
        e(f"s_add_u32 {s(S_IT)}, {s(S_IT)}, 1")
        e(f"s_cmp_lt_u32 {s(S_IT)}, 10")
        e("s_cbranch_scc1 L_C1LOOP")
        self.stamp()
        e(f"s_cmp_lt_u32 {s(S_T)}, 5")
        e(f"s_cselect_b32 {s(S_TMP)}, 0x3ea52b48, 1.0")
        e(f"ds_read_b64 {v(STT,2)}, v61")
        e(f"ds_read_b64 {v(STT+2,2)}, v61 offset:256")
        for f in range(2):
            for j in range(4):
                e(f"ds_read_b128 {v(CS+16*f+4*j,4)}, v62 offset:{(32*f+8*j)*4}")
        e("s_waitcnt lgkmcnt(0)")
        for tt in range(2):
            e(f"v_mul_f32 {v(STT+2*tt)}, {s(S_TMP)}, {v(STT+2*tt)}")
            e(f"v_mul_f32 {v(STT+2*tt+1)}, {s(S_TMP)}, {v(STT+2*tt+1)}")
        PK = 192
        nst = 0
        for f in range(2):
            for tt in range(2):
                d = ACC + 16 * (2 * f + tt)
                ab = STT + 2 * tt
                for i in range(0, 16, 2):
                    e(f"v_pk_mul_f32 {v(d+i,2)}, {v(d+i,2)}, {v(ab,2)} op_sel_hi:[1,0]")
                for i in range(0, 16, 2):
                    e(f"v_pk_fma_f32 {v(d+i,2)}, {v(CS+16*f+i,2)}, {v(ab,2)}, {v(d+i,2)} op_sel:[0,1,0] op_sel_hi:[1,1,1]")
                pk = PK + 8 * (nst & 1)
                for jj in range(2):
                    p = pk + 4 * jj
                    for q in range(4):
                        e(f"v_cvt_pk_bf16_f32 {v(p+q)}, {v(d+8*jj+2*q)}, {v(d+8*jj+2*q+1)}")
                    e(f"v_permlane32_swap_b32 {v(p)}, {v(p+2)}")
                    e(f"v_permlane32_swap_b32 {v(p+1)}, {v(p+3)}")
                    off = (4 * f + 2 * jj) * CH + tt * 512
                    hi, lo = off >> 12, off & 4095
                    e(f"s_mov_b32 {s(S_TMP)}, {hi << 12}")
                    e(f"buffer_store_dwordx4 {v(p,4)}, {v(VST)}, {s(SRD_WS,4)}, {s(S_TMP)} offen offset:{lo} sc1")
                nst += 1
        self.stamp("st_issued")
        e("s_waitcnt vmcnt(0)")
        self.stamp("st_drained")
        self.bar("BE1")
        e("s_branch L_P2")


    def store_mode(self, instr_list):
        e = self.e
        La = self.L("L_sm"); Lb = self.L("L_sm")
        e(f"s_cmp_eq_u32 {s(S_MODE)}, 1")
        e(f"s_cbranch_scc1 {La}")
        for t in instr_list: e(t if t.startswith("s_") or t.startswith("v_") else t + " sc1")
        e(f"s_branch {Lb}")
        self.lab(La)
        for t in instr_list: e(t)
        self.lab(Lb)

    def set_fb(self, val):
        e = self.e
        e(f"s_lshl_b32 {s(S_TMP)}, {s(S_G)}, 8")
        e(f"s_lshl_b32 {s(S_TMP2)}, {s(S_I)}, 2")
        e(f"s_add_u32 {s(S_TMP)}, {s(S_TMP)}, {s(S_TMP2)}")
        e(f"s_add_u32 {s(S_TMP)}, {s(S_TMP)}, {WS_FB}")
        e(f"v_mov_b32 v2, {val}")
        e(f"v_mov_b32 v3, 0")
        e("s_mov_b64 exec, 1")
        self.store_mode([f"buffer_store_dword v2, v3, {s(SRD_WS,4)}, {s(S_TMP)} offen"])
        e("s_mov_b64 exec, -1")

    def phase2(self):
        e = self.e
        self.role = "P2"
        S_P, S_R2, S_TQ, S_QT, S_HD = S_T, S_R, S_T0, S_KA, S_KW
        S_MK = 66
        VQ0, VQ1 = 8, 12
        KF = (16, 24); VF = (32, 40); OA = 48; BM = 64
        VK0, VK1, VV = 72, 73, 74
        T = [96 + 16 * j for j in range(9)]
        self.lab("L_P2")
        self.stamp("P2in")
        e(f"s_and_b32 {s(S_P)}, {s(S_I)}, 15")
        e(f"s_lshr_b32 {s(S_R2)}, {s(S_I)}, 4")
        e(f"s_lshl_b32 {s(S_TQ)}, {s(S_G)}, 8")
        e(f"s_lshl_b32 {s(S_TMP)}, {s(S_R2)}, 7")
        e(f"s_add_u32 {s(S_TQ)}, {s(S_TQ)}, {s(S_TMP)}")
        e(f"s_and_b32 {s(S_QT)}, {s(S_WV)}, 3")
        e(f"s_lshr_b32 {s(S_HD)}, {s(S_WV)}, 2")
        Lns = self.L("L_ns")
        e(f"s_cmp_lg_u32 {s(S_WV)}, 6")
        e(f"s_cbranch_scc1 {Lns}")
        e("v_mul_u32_u24 v2, 43, v0")
        e("v_lshrrev_b32 v2, 8, v2")
        e("v_mul_u32_u24 v3, 6, v2")
        e("v_sub_u32 v3, v0, v3")
        e("v_lshrrev_b32 v4, 1, v3")
        e("v_and_b32 v3, 1, v3")
        e(f"s_lshl_b32 {s(S_TMP)}, {s(S_G)}, 1")
        e(f"s_add_u32 {s(S_TMP)}, {s(S_TMP)}, {s(S_R2)}")
        e(f"v_sub_u32 v5, {s(S_TMP)}, v4")
        e(f"s_mul_i32 {s(S_TMP)}, {s(S_P)}, 5")
        e(f"v_lshl_add_u32 v6, v3, 2, {s(S_TMP)}")
        e("v_lshrrev_b32 v6, 4, v6")
        e("v_mul_u32_u24 v7, 5, v2")
        e("v_add_u32 v6, v6, v7")
        e("v_and_b32 v7, 1, v5")
        e("v_mul_u32_u24 v7, 15, v7")
        e("v_add_u32 v6, v6, v7")
        e("v_lshlrev_b32 v6, 3, v6")
        e("v_ashrrev_i32 v7, 1, v5")
        e("v_add_u32 v6, v6, v7")
        e("v_lshlrev_b32 v8, 7, v6")
        e("v_cmp_gt_u32 vcc, 18, v0")
        e(f"v_cmp_le_i32 {s(S_M,2)}, 0, v5")
        e(f"s_and_b64 vcc, vcc, {s(S_M,2)}")
        e(f"v_cmp_eq_u32 {s(S_M,2)}, 0, v2")
        e(f"v_cmp_lt_u32 {s(S_EX,2)}, 0, v4")
        e(f"s_and_b64 {s(S_M,2)}, {s(S_M,2)}, {s(S_EX,2)}")
        e(f"s_andn2_b64 vcc, vcc, {s(S_M,2)}")
        e("v_cndmask_b32 v8, 0, v8, vcc")
        e("v_cndmask_b32 v9, 0, 2, vcc")
        self.poll(8, 9, 10)
        e(f"v_mov_b32 v2, {s(S_MODE)}")
        e(f"v_mov_b32 v3, {LDS_CTRL}")
        e("ds_write_b32 v3, v2")
        e("s_waitcnt lgkmcnt(0)")
        self.lab(Lns)
        Lno = self.L("L_no")
        e(f"s_cmp_ge_u32 {s(S_WV)}, 6")
        e(f"s_cbranch_scc1 {Lno}")
        e("v_mov_b32 v2, 0x3f80"); e("v_mov_b32 v3, 0"); e("v_mov_b32 v4, 0x3f80"); e("v_mov_b32 v5, 0")
        e(f"s_lshl_b32 {s(S_TMP)}, {s(S_WV)}, 10")
        e(f"s_add_u32 {s(S_TMP)}, {s(S_TMP)}, {LDS_ONES}")
        e(f"v_lshl_add_u32 v6, v0, 4, {s(S_TMP)}")
        e("ds_write_b128 v6, v[2:5]")
        self.lab(Lno)
        e("v_and_b32 v1, 31, v0")
        e("v_lshrrev_b32 v2, 5, v0")
        e(f"s_lshl_b32 {s(S_TMP)}, {s(S_QT)}, 5")
        e(f"v_add_u32 v3, {s(S_TMP)}, v1")
        e("v_lshlrev_b32 v3, 4, v3")
        e(f"s_mul_i32 {s(S_TMP)}, {s(S_HD)}, 3")
        e(f"v_add_u32 v4, {s(S_TMP)}, v2")
        e(f"v_mul_u32_u24 v4, {PL}, v4")
        e(f"v_add_u32 {v(VK0)}, v3, v4")
        e(f"v_add_u32 {v(VK1)}, {LDS_K + 2*PL}, v3")
        e("v_bfe_u32 v4, v0, 4, 1")
        e("v_lshlrev_b32 v4, 2, v4")
        e("v_and_b32 v5, 3, v0")
        e("v_or_b32 v4, v4, v5")
        e(f"s_mul_i32 {s(S_TMP)}, {s(S_HD)}, 5")
        e(f"v_add_u32 v5, {s(S_TMP)}, v4")
        e("v_lshrrev_b32 v6, 1, v5")
        e(f"v_mul_u32_u24 v6, {PL}, v6")
        e("v_and_b32 v5, 1, v5")
        e("v_lshl_add_u32 v6, v5, 3, v6")
        e(f"v_add_u32 v6, {LDS_V}, v6")
        e("v_cmp_gt_u32 vcc, 5, v4")
        e(f"v_mov_b32 v7, {LDS_ONES}")
        e("v_cndmask_b32 v6, v7, v6, vcc")
        e("v_bfe_u32 v5, v0, 2, 2")
        e("v_lshl_add_u32 v5, v2, 2, v5")
        e(f"s_lshl_b32 {s(S_TMP)}, {s(S_QT)}, 5")
        e(f"v_add_u32 v5, {s(S_TMP)}, v5")
        e(f"v_lshl_add_u32 {v(VV)}, v5, 4, v6")
        e(f"s_lshl_b32 {s(S_TMP)}, {s(S_QT)}, 5")
        e(f"s_add_u32 {s(S_TMP)}, {s(S_TMP)}, {s(S_TQ)}")
        e(f"v_add_u32 v3, {s(S_TMP)}, v1")
        e("v_lshlrev_b32 v3, 4, v3")
        e(f"s_mul_i32 {s(S_TMP)}, {s(S_P)}, 5")
        e(f"s_mul_i32 {s(S_TMP2)}, {s(S_HD)}, 3")
        e(f"s_add_u32 {s(S_TMP2)}, {s(S_TMP2)}, {s(S_TMP)}")
        e(f"v_add_u32 v4, {s(S_TMP2)}, v2")
        e("v_lshlrev_b32 v4, 15, v4")
        e("v_add_u32 v75, v3, v4")
        e(f"v_add_u32 v75, {WS_QKV}, v75")
        e(f"s_add_u32 {s(S_TMP)}, {s(S_TMP)}, 2")
        e(f"s_lshl_b32 {s(S_TMP)}, {s(S_TMP)}, 15")
        e(f"s_add_u32 {s(S_TMP)}, {s(S_TMP)}, {WS_QKV}")
        e(f"v_add_u32 v76, {s(S_TMP)}, v3")
        e(f"s_mul_i32 {s(S_TMP)}, {s(S_P)}, 5")
        e(f"s_lshl_b32 {s(S_TMP2)}, {s(S_HD)}, 1")
        e(f"s_add_u32 {s(S_TMP2)}, {s(S_TMP2)}, {s(S_TMP)}")
        e(f"v_add_u32 v4, {s(S_TMP2)}, v2")
        e("v_lshlrev_b32 v4, 15, v4")
        e("v_add_u32 v77, v3, v4")
        e(f"v_add_u32 v77, {WS_O}, v77")
        e(f"s_add_u32 {s(S_TMP)}, {s(S_TMP)}, 4")
        e(f"s_lshl_b32 {s(S_TMP)}, {s(S_TMP)}, 15")
        e(f"s_lshl_b32 {s(S_TMP2)}, {s(S_HD)}, 3")
        e(f"s_add_u32 {s(S_TMP)}, {s(S_TMP)}, {s(S_TMP2)}")
        e(f"s_add_u32 {s(S_TMP)}, {s(S_TMP)}, {WS_O}")
        e(f"v_add_u32 v78, {s(S_TMP)}, v3")
        e(f"v_lshl_add_u32 v2, v0, 3, {s(S_WV)}")
        e("v_cmp_le_u32 vcc, 30, v2")
        e("v_cndmask_b32 v3, 0, 1, vcc")
        e("v_mul_u32_u24 v4, 30, v3"); e("v_sub_u32 v4, v2, v4")
        e("v_mul_u32_u24 v5, 43, v4"); e("v_lshrrev_b32 v5, 8, v5")
        e("v_mul_u32_u24 v6, 6, v5"); e("v_sub_u32 v6, v4, v6")
        e("v_mul_u32_u24 v7, 5, v3"); e("v_add_u32 v7, v7, v5")
        e(f"v_mul_u32_u24 v7, {PL}, v7"); e("v_lshl_add_u32 v91, v6, 10, v7")
        e("v_add_u32 v7, 1, v3"); e("v_mul_u32_u24 v7, 80, v7"); e("v_add_u32 v7, v7, v5")
        e(f"s_mul_i32 {s(S_TMP)}, {s(S_P)}, 5"); e(f"v_add_u32 v7, {s(S_TMP)}, v7")
        e("v_lshlrev_b32 v7, 15, v7")
        e(f"s_sub_u32 {s(S_TMP)}, {s(S_TQ)}, 256")
        e(f"v_lshl_add_u32 v6, v6, 6, {s(S_TMP)}")
        e("v_lshl_add_u32 v7, v6, 4, v7"); e(f"v_add_u32 v7, {WS_QKV}, v7")
        e("v_cmp_gt_i32 vcc, 0, v6")
        e("v_mov_b32 v5, 0x7f000000")
        e("v_cndmask_b32 v90, v7, v5, vcc")
        for n in range(8):
            e(f"v_readlane_b32 s{66+n}, v90, {n}")
            e(f"v_readlane_b32 s{74+n}, v91, {n}")
        e("s_waitcnt lgkmcnt(0)")
        self.bar("BS1")
        self.stamp("polled")
        e(f"v_mov_b32 v3, {LDS_CTRL}")
        e("ds_read_b32 v2, v3")
        e(f"buffer_load_dwordx4 {v(VQ0,4)}, v75, {s(SRD_WS,4)}, 0 offen sc1")
        e(f"buffer_load_dwordx4 {v(VQ1,4)}, v76, {s(SRD_WS,4)}, 0 offen sc1")
        e("v_lshlrev_b32 v4, 4, v0")
        for n in range(8):
            Lk = self.L("L_kv")
            if n == 7:
                e(f"s_cmp_ge_u32 {s(S_WV)}, 4"); e(f"s_cbranch_scc1 {Lk}")
            e(f"s_mov_b32 m0, s{74+n}")
            e(f"buffer_load_dwordx4 v4, {s(SRD_WS,4)}, s{66+n} offen sc1 lds")
            if n == 7: self.lab(Lk)
        for r in range(16):
            k0 = 8 * (r >> 2) + (r & 3)
            lo = (0xffffffff << k0) & 0xffffffff
            hi = (0xffffffff << (k0 + 4)) & 0xffffffff
            e(f"s_mov_b32 s{S_MK+2*r}, {lo:#x}")
            e(f"s_mov_b32 s{S_MK+2*r+1}, {hi:#x}")
        e("v_mov_b32 v6, 0xffff"); e("v_mov_b32 v7, 0xffff0000")
        for q in range(8):
            e(f"v_cndmask_b32 v79, 0, v6, {s(S_MK+4*q,2)}")
            e(f"v_cndmask_b32 v80, 0, v7, {s(S_MK+4*q+2,2)}")
            e(f"v_or_b32 {v(BM+q)}, v79, v80")
        e("s_waitcnt lgkmcnt(0)")
        e(f"v_readfirstlane_b32 {s(S_MODE)}, v2")
        e("s_waitcnt vmcnt(0)")
        self.bar("BS2")
        self.stamp("kv_in")
        Lkf = self.L("L_kfs")
        e(f"s_cmp_lg_u32 {s(S_WV)}, 6"); e(f"s_cbranch_scc1 {Lkf}")
        self.kvflag_set()
        self.lab(Lkf)
        self.p2_prefetch(S_P, S_TQ)
        self.stamp("pf_iss")
        La = self.L("L_qa"); Lb = self.L("L_qb")
        e(f"s_mov_b32 {s(S_M)}, -1"); e(f"s_mov_b32 {s(S_M+1)}, 0")
        e(f"s_cmp_eq_u32 {s(S_HD)}, 0")
        e(f"s_cbranch_scc1 {La}")
        e(f"v_mov_b32 {v(VQ1)}, 0"); e(f"v_mov_b32 {v(VQ1+1)}, 0")
        e(f"v_cndmask_b32 {v(VQ1+2)}, 0, {v(VQ1+2)}, {s(S_M,2)}")
        e(f"v_cndmask_b32 {v(VQ1+3)}, 0, {v(VQ1+3)}, {s(S_M,2)}")
        e(f"s_branch {Lb}")
        self.lab(La)
        e(f"v_cndmask_b32 {v(VQ1)}, 0, {v(VQ1)}, {s(S_M,2)}")
        e(f"v_cndmask_b32 {v(VQ1+1)}, 0, {v(VQ1+1)}, {s(S_M,2)}")
        e(f"v_mov_b32 {v(VQ1+2)}, 0"); e(f"v_mov_b32 {v(VQ1+3)}, 0")
        self.lab(Lb)
        def kreads(j):
            b = KF[j & 1]
            return [f"ds_read_b128 {v(b,4)}, {v(VK0)} offset:{j*512}", f"ds_read_b128 {v(b+4,4)}, {v(VK1)} offset:{j*512}"]
        for t in kreads(0): e(t)
        for j in range(9):
            if j < 8:
                for t in kreads(j + 1): e(t)
                e("s_waitcnt lgkmcnt(2)")
            else:
                e("s_waitcnt lgkmcnt(0)")
            b = KF[j & 1]
            e(f"v_mfma_f32_32x32x16_bf16 {v(T[j],16)}, {v(b,4)}, {v(VQ0,4)}, 0")
            e(f"v_mfma_f32_32x32x16_bf16 {v(T[j],16)}, {v(b+4,4)}, {v(VQ1,4)}, {v(T[j],16)}")
        def vreads(j):
            b = VF[j & 1]
            return [f"ds_read_b64_tr_b16 {v(b+4*t+2*u,2)}, {v(VV)} offset:{j*512+256*t+128*u}" for t in range(2) for u in range(2)]
        for t in vreads(0): e(t)
        Lfix = self.L("L_fix"); Lret = self.L("L_ret")
        e(f"s_lshr_b32 {s(S_TMP)}, {s(S_TQ)}, 5")
        e(f"s_add_u32 {s(S_TMP)}, {s(S_TMP)}, {s(S_QT)}")
        e(f"s_cmp_lt_u32 {s(S_TMP)}, 8")
        e(f"s_cbranch_scc1 {Lfix}")
        self.lab(Lret)
        for r in range(16):
            e(f"v_cndmask_b32 {v(T[0]+r)}, {v(T[0]+r)}, {v(T[8]+r)}, {s(S_MK+2*r,2)}")
        MX = 80
        vals = [T[j] + r for j in range(8) for r in range(16)]
        for k in range(4):
            e(f"v_max3_f32 {v(MX+k)}, {v(vals[3*k])}, {v(vals[3*k+1])}, {v(vals[3*k+2])}")
        idx = 12; k = 0
        while idx + 1 < len(vals):
            e(f"v_max3_f32 {v(MX+k)}, {v(MX+k)}, {v(vals[idx])}, {v(vals[idx+1])}")
            idx += 2; k = (k + 1) & 3
        assert idx == len(vals)
        e(f"v_max3_f32 {v(MX)}, {v(MX)}, {v(MX+1)}, {v(MX+2)}")
        e(f"v_max_f32 {v(MX)}, {v(MX)}, {v(MX+3)}")
        e(f"v_mov_b32 {v(MX+1)}, {v(MX)}")
        e(f"v_permlane32_swap_b32 {v(MX)}, {v(MX+1)}")
        e(f"v_max_f32 {v(MX)}, {v(MX)}, {v(MX+1)}")
        e(f"v_sub_f32 {v(MX)}, 0, {v(MX)}")
        e(f"v_mov_b32 {v(MX+1)}, {v(MX)}")
        for i in range(0, 16, 2): e(f"v_mov_b64 {v(OA+i,2)}, 0")
        def softmax_tile(j):
            b = T[j]
            for i in range(0, 16, 2):
                e(f"v_pk_add_f32 {v(b+i,2)}, {v(b+i,2)}, {v(MX,2)}")
            for i in range(16):
                e(f"v_exp_f32 {v(b+i)}, {v(b+i)}")
            for t in range(2):
                for q in range(4):
                    e(f"v_cvt_pk_bf16_f32 {v(b+8*t+q)}, {v(b+8*t+2*q)}, {v(b+8*t+2*q+1)}")
        def pv(j, p0, p1):
            b = VF[j & 1]
            e(f"v_mfma_f32_32x32x16_bf16 {v(OA,16)}, {v(b,4)}, {v(p0,4)}, {v(OA,16)}")
            e(f"v_mfma_f32_32x32x16_bf16 {v(OA,16)}, {v(b+4,4)}, {v(p1,4)}, {v(OA,16)}")
        softmax_tile(0)
        for t in range(2):
            for q in range(4):
                src = T[0] + 8 * t + q
                e(f"v_and_b32 {v(T[8]+4*t+q)}, {v(BM+4*t+q)}, {v(src)}")
                e(f"v_bfi_b32 {v(src)}, {v(BM+4*t+q)}, 0, {v(src)}")
        for j in range(9):
            if j < 8:
                for t in vreads(j + 1): e(t)
            if 1 <= j < 8: softmax_tile(j)
            e("s_waitcnt lgkmcnt(4)" if j < 8 else "s_waitcnt lgkmcnt(0)")
            if j < 8: pv(j, T[j], T[j] + 8)
            else: pv(8, T[8], T[8] + 4)
        self.stamp("attn_done")
        e(f"v_mov_b32 v80, {v(OA+8)}")
        e(f"v_mov_b32 v81, {v(OA+8)}")
        e("v_permlane32_swap_b32 v80, v81")
        e("v_rcp_f32 v81, v81")
        for i in range(12): e(f"v_mul_f32 {v(OA+i)}, v81, {v(OA+i)}")
        for q in range(6): e(f"v_cvt_pk_bf16_f32 {v(84+q)}, {v(OA+2*q)}, {v(OA+2*q+1)}")
        self.store_mode([f"buffer_store_dwordx4 v[84:87], v77, {s(SRD_WS,4)}, 0 offen",
                         "s_mov_b32 exec_hi, 0",
                         f"buffer_store_dwordx2 v[88:89], v78, {s(SRD_WS,4)}, 0 offen",
                         "s_mov_b32 exec_hi, -1"])
        self.stamp("o_iss")
        e("s_waitcnt vmcnt(0)")
        self.stamp("o_drn")
        self.bar("BE2")
        Lw = self.L("L_w")
        e(f"s_cmp_lg_u32 {s(S_WV)}, 6")
        e(f"s_cbranch_scc1 {Lw}")
        self.set_fb(3)
        self.lab(Lw)
        self.stamp("P2end")
        e("s_branch L_P3")
        self.lab(Lfix)
        e("s_nop 15")
        e("v_mov_b32 v79, 0xf149f2ca")
        for j in range(8):
            Ls = self.L("L_fs")
            e(f"s_cmp_gt_u32 {s(S_TMP)}, {7-j}")
            e(f"s_cbranch_scc1 {Ls}")
            for r in range(16): e(f"v_mov_b32 {v(T[j]+r)}, v79")
            self.lab(Ls)
        e(f"s_branch {Lret}")


    def s_hs_half_issue(self, half, glc=False):
        e = self.e
        g = " glc" if glc else ""
        e(f"s_load_dwordx16 s[{SH}:{SH+15}], {s(S_DBG,2)}, {128*half}{g}")
        e(f"s_load_dwordx16 s[{SH+16}:{SH+31}], {s(S_DBG,2)}, {128*half+64}{g}")

    def s_hs_half_verify(self, half):
        e = self.e
        L = self.L("L_ha"); L2 = self.L("L_ha")
        e(f"s_branch {L2}")
        self.lab(L)
        e("s_sleep 8")
        self.s_hs_half_issue(half, glc=True)
        self.lab(L2)
        e("s_waitcnt lgkmcnt(0)")
        e(f"s_mov_b32 {s(S_TMP)}, 0x80808080")
        for q in range(32): e(f"s_and_b32 {s(S_TMP)}, {s(S_TMP)}, s{SH+q}")
        e(f"s_cmp_eq_u32 {s(S_TMP)}, 0x80808080")
        e(f"s_cbranch_scc0 {L}")

    def s_hs_all(self):
        for half in range(2):
            self.s_hs_half_issue(half)
            self.s_hs_half_verify(half)

    def wrow_voffsets(self, va, vb, rowbytes):
        e = self.e
        e("v_lshrrev_b32 v2, 3, v0")
        e("v_and_b32 v3, 7, v0")
        e("v_bfe_u32 v4, v0, 4, 1")
        e("v_lshlrev_b32 v4, 2, v4")
        e("v_xor_b32 v3, v3, v4")
        e("v_and_b32 v4, 3, v2")
        e("v_lshrrev_b32 v5, 2, v2")
        e("v_lshl_add_u32 v6, v5, 3, v4")
        e(f"v_mul_u32_u24 v6, {rowbytes}, v6")
        e(f"v_lshl_add_u32 {v(va)}, v3, 4, v6")
        if vb is not None:
            e("v_mul_u32_u24 v6, 20, v5")
            e("v_add_u32 v6, v6, v4")
            e(f"v_mul_u32_u24 v6, {rowbytes}, v6")
            e(f"v_lshl_add_u32 {v(vb)}, v3, 4, v6")

    def p3_decode(self):
        e = self.e
        e(f"s_mul_i32 {s(S_R)}, {s(S_I)}, 26")
        e(f"s_lshr_b32 {s(S_R)}, {s(S_R)}, 8")
        e(f"s_mul_i32 {s(S_TMP)}, {s(S_R)}, 10")
        e(f"s_sub_u32 {s(S_T)}, {s(S_I)}, {s(S_TMP)}")
        e(f"s_mul_i32 {s(S_TMP)}, {s(S_R)}, 96")
        e(f"s_lshl_b32 {s(S_T0)}, {s(S_G)}, 8")
        e(f"s_add_u32 {s(S_T0)}, {s(S_T0)}, {s(S_TMP)}")

    def wo_setup(self):
        e = self.e
        e(f"s_mul_i32 {s(S_TMP)}, {s(S_I)}, 26")
        e(f"s_lshr_b32 {s(S_TMP)}, {s(S_TMP)}, 8")
        e(f"s_mul_i32 {s(S_TMP)}, {s(S_TMP)}, 10")
        e(f"s_sub_u32 {s(S_TMP)}, {s(S_I)}, {s(S_TMP)}")
        e(f"s_lshl_b32 {s(S_TMP)}, {s(S_TMP)}, 7")
        self.srd(SRD_W, S_WO, S_TMP, 640 * 1280)
        self.wrow_voffsets(40, 41, 1280)

    def wo_range(self, s_u, s_end):
        e = self.e
        L = self.L("L_wol")
        self.lab(L)
        e(f"s_mov_b32 {s(S_TMP)}, 0"); e(f"s_mov_b32 {s(S_TMP2)}, 0"); e(f"s_mov_b32 {s(S_TMP4)}, 0")
        for lim, st, off, var in ((16, 16, 20, 0), (32, 32, 16, 1), (40, 40, 4, 0), (56, 56, 24, 0), (72, 64, 16, 1)):
            e(f"s_cmp_ge_u32 {s(s_u)}, {lim}")
            e(f"s_cselect_b32 {s(S_TMP)}, {st}, {s(S_TMP)}")
            e(f"s_cselect_b32 {s(S_TMP2)}, {off}, {s(S_TMP2)}")
            e(f"s_cselect_b32 {s(S_TMP4)}, {var}, {s(S_TMP4)}")
        e(f"s_sub_u32 {s(S_TMP)}, {s(s_u)}, {s(S_TMP)}")
        e(f"s_mul_i32 {s(S_TMP)}, {s(S_TMP)}, 40")
        e(f"s_add_u32 {s(S_TMP)}, {s(S_TMP)}, {s(S_TMP2)}")
        e(f"s_mul_i32 {s(S_TMP)}, {s(S_TMP)}, 1280")
        e(f"s_lshl_b32 {s(S_TMP2)}, {s(s_u)}, 10")
        e(f"s_add_u32 m0, {s(S_TMP2)}, {LDS_WO}")
        Lb = self.L("L_wob"); Lc = self.L("L_woc")
        e(f"s_cmp_eq_u32 {s(S_TMP4)}, 1"); e(f"s_cbranch_scc1 {Lb}")
        e(f"buffer_load_dwordx4 v40, {s(SRD_W,4)}, {s(S_TMP)} offen lds")
        e(f"s_branch {Lc}")
        self.lab(Lb)
        e(f"buffer_load_dwordx4 v41, {s(SRD_W,4)}, {s(S_TMP)} offen lds")
        self.lab(Lc)
        e(f"s_add_u32 {s(s_u)}, {s(s_u)}, 1")
        e(f"s_cmp_lt_u32 {s(s_u)}, {s(s_end)}")
        e(f"s_cbranch_scc1 {L}")

    def touch_planes(self, nplanes, lines_per_plane, base_sgpr, vdst):
        e = self.e
        tot = nplanes * lines_per_plane
        n = (tot + 63) // 64
        for k in range(n):
            e(f"v_add_u32 v2, {64*k}, v0")
            if lines_per_plane == 8:
                e("v_lshrrev_b32 v3, 3, v2"); e("v_and_b32 v4, 7, v2")
            elif lines_per_plane == 16:
                e("v_lshrrev_b32 v3, 4, v2"); e("v_and_b32 v4, 15, v2")
            else:
                e("v_mul_u32_u24 v3, 171, v2"); e("v_lshrrev_b32 v3, 11, v3"); e("v_mul_u32_u24 v4, 12, v3"); e("v_sub_u32 v4, v2, v4")
            e("v_lshlrev_b32 v3, 15, v3")
            e("v_lshl_add_u32 v3, v4, 7, v3")
            if tot - 64 * k < 64:
                e(f"v_cmp_gt_u32 vcc, {tot-64*k}, v0")
                e("v_cndmask_b32 v3, 0, v3, vcc")
            e(f"buffer_load_dword {v(vdst+k)}, v3, {s(SRD_WS,4)}, {s(base_sgpr)} offen")

    def touch_o(self, s_p, s_tq):
        e = self.e
        e(f"s_cmp_lt_u32 {s(s_p)}, 8"); e(f"s_cselect_b32 {s(S_TMP)}, 32, 64"); e(f"s_add_u32 {s(S_TMP)}, {s(S_TMP)}, {s(s_p)}")
        e(f"s_lshl_b32 {s(S_TMP2)}, {s(s_tq)}, 4"); e(f"s_add_u32 {s(S_TMP2)}, {s(S_TMP2)}, {WS_O}")
        e("v_lshrrev_b32 v2, 4, v0"); e("v_and_b32 v4, 15, v0")
        e("v_lshrrev_b32 v3, 1, v2"); e("v_lshlrev_b32 v3, 4, v3"); e("v_and_b32 v5, 1, v2"); e("v_mul_u32_u24 v5, 40, v5")
        e("v_add_u32 v3, v3, v5"); e(f"v_add_u32 v3, {s(s_p)}, v3")
        e("v_lshlrev_b32 v3, 15, v3"); e("v_lshl_add_u32 v3, v4, 7, v3")
        e(f"buffer_load_dword v252, v3, {s(SRD_WS,4)}, {s(S_TMP2)} offen")
        e(f"s_lshl_b32 {s(S_TMP)}, {s(S_TMP)}, 15"); e(f"s_add_u32 {s(S_TMP2)}, {s(S_TMP2)}, {s(S_TMP)}")
        e("v_lshlrev_b32 v3, 7, v4")
        e(f"buffer_load_dword v253, v3, {s(SRD_WS,4)}, {s(S_TMP2)} offen")

    def touch_h(self):
        e = self.e
        e(f"s_mul_i32 {s(S_TMP)}, {s(S_I)}, 26"); e(f"s_lshr_b32 {s(S_TMP)}, {s(S_TMP)}, 8")
        e(f"s_mul_i32 {s(S_TMP2)}, {s(S_TMP)}, 10"); e(f"s_sub_u32 {s(S_TMP2)}, {s(S_I)}, {s(S_TMP2)}")
        e(f"s_mul_i32 {s(S_TMP)}, {s(S_TMP)}, 96"); e(f"s_lshl_b32 {s(S_TMP3)}, {s(S_G)}, 8"); e(f"s_add_u32 {s(S_TMP)}, {s(S_TMP)}, {s(S_TMP3)}")
        e(f"s_lshl_b32 {s(S_TMP3)}, {s(S_TMP2)}, 14"); e(f"s_lshl_b32 {s(S_TMP4)}, {s(S_TMP)}, 3")
        e(f"s_add_u32 {s(S_TMP3)}, {s(S_TMP3)}, {s(S_TMP4)}"); e(f"s_add_u32 {s(S_TMP3)}, {s(S_TMP3)}, {WS_ST2}")
        e("v_and_b32 v3, 7, v0"); e("v_lshlrev_b32 v3, 7, v3")
        e(f"buffer_load_dword v249, v3, {s(SRD_WS,4)}, {s(S_TMP3)} offen")
        e(f"s_lshl_b32 {s(S_TMP2)}, {s(S_TMP2)}, 18"); e(f"s_lshl_b32 {s(S_TMP)}, {s(S_TMP)}, 4")
        e(f"s_add_u32 {s(S_TMP)}, {s(S_TMP)}, {s(S_TMP2)}"); e(f"s_add_u32 {s(S_TMP4)}, {s(S_TMP)}, {WS_H}")
        self.touch_planes(8, 12, S_TMP4, 250)

    def touch_h1(self, dst=100):
        e = self.e
        e(f"s_and_b32 {s(S_TMP)}, {s(S_I)}, 7"); e(f"s_mul_i32 {s(S_TMP)}, {s(S_TMP)}, 24"); e(f"s_lshl_b32 {s(S_TMP)}, {s(S_TMP)}, 15")
        e(f"s_lshr_b32 {s(S_TMP2)}, {s(S_I)}, 3"); e(f"s_lshl_b32 {s(S_TMP2)}, {s(S_TMP2)}, 6")
        e(f"s_lshl_b32 {s(S_TMP3)}, {s(S_G)}, 8"); e(f"s_add_u32 {s(S_TMP2)}, {s(S_TMP2)}, {s(S_TMP3)}"); e(f"s_lshl_b32 {s(S_TMP2)}, {s(S_TMP2)}, 4")
        e(f"s_add_u32 {s(S_TMP)}, {s(S_TMP)}, {s(S_TMP2)}")
        e(f"s_add_u32 {s(S_TMP4)}, {s(S_TMP)}, {WS_H1}")
        self.touch_planes(24, 8, S_TMP4, dst)

    def touch_w1(self, k0, k1):
        e = self.e
        self.srd(SRD_T, S_W1, size=640 * 3072)
        e("v_lshlrev_b32 v2, 7, v0")
        for k in range(k0, k1):
            e(f"s_lshl_b32 {s(S_TMP)}, {s(S_I)}, 3")
            e(f"s_add_u32 {s(S_TMP)}, {s(S_TMP)}, {k}")
            e(f"s_mul_i32 {s(S_TMP)}, {s(S_TMP)}, {60*128}")
            e(f"buffer_load_dword {v(104+k)}, v2, {s(SRD_T,4)}, {s(S_TMP)} offen")

    def p2_prefetch(self, s_p, s_tq):
        e = self.e
        Lsk = self.L("L_pf"); Lnw = self.L("L_pf")
        e(f"s_cmp_ge_u32 {s(S_WV)}, 4"); e(f"s_cbranch_scc1 {Lsk}")
        e(f"s_and_b32 {s(S_TMP)}, {s(S_I)}, 7")
        e(f"s_cmp_lt_u32 {s(S_TMP)}, 6"); e(f"s_cbranch_scc1 {Lnw}")
        e(f"s_cmp_lg_u32 {s(S_WV)}, 3"); e(f"s_cbranch_scc1 {Lnw}")
        e(f"s_lshr_b32 {s(S_TMP2)}, {s(S_I)}, 3"); e(f"s_lshl_b32 {s(S_TMP2)}, {s(S_TMP2)}, 6")
        e(f"s_lshl_b32 {s(S_TMP3)}, {s(S_G)}, 8"); e(f"s_add_u32 {s(S_TMP2)}, {s(S_TMP2)}, {s(S_TMP3)}"); e(f"s_lshl_b32 {s(S_TMP2)}, {s(S_TMP2)}, 4")
        e(f"s_add_u32 {s(S_TMP4)}, {s(S_TMP2)}, {WS_QKV + 240*CH}")
        L7 = self.L("L_pf")
        e(f"s_cmp_eq_u32 {s(S_TMP)}, 7"); e(f"s_cbranch_scc1 {L7}")
        self.touch_planes(8, 8, S_TMP4, 250)
        e(f"s_branch {Lnw}")
        self.lab(L7)
        e(f"s_add_u32 {s(S_TMP4)}, {s(S_TMP4)}, {8*CH}")
        self.touch_planes(24, 8, S_TMP4, 250)
        self.lab(Lnw)
        e(f"s_cmp_ge_u32 {s(S_I)}, 30"); e(f"s_cbranch_scc1 {Lsk}")
        self.wo_setup()
        e(f"s_mul_i32 {s(S_TMP2)}, {s(S_WV)}, {160*1280}")
        e(f"s_mul_i32 {s(S_TMP4)}, {s(S_WV)}, {20*1024}"); e(f"s_add_u32 m0, {s(S_TMP4)}, {LDS_WO}")
        for r in range(20):
            p, m = r // 5, r % 5
            row0 = 40 * p + (0, 4, 20, 24, 16)[m]
            if r: e(f"s_add_u32 m0, m0, {s(S_C1024)}")
            e(f"s_add_u32 {s(S_TMP)}, {s(S_TMP2)}, {row0*1280}")
            e(f"buffer_load_dwordx4 {'v41' if m == 4 else 'v40'}, {s(SRD_W,4)}, {s(S_TMP)} offen lds")
        self.lab(Lsk)

    def kvflag_set(self):
        e = self.e
        e(f"s_lshl_b32 {s(S_TMP)}, {s(S_G)}, 5")
        e(f"s_add_u32 {s(S_TMP)}, {s(S_TMP)}, {s(S_I)}")
        e(f"s_and_b32 {s(S_TMP2)}, {s(S_TMP)}, 3")
        e(f"s_lshl_b32 {s(S_TMP2)}, {s(S_TMP2)}, 3")
        e(f"s_and_b32 {s(S_TMP)}, {s(S_TMP)}, 0xfc")
        e(f"s_lshl_b32 {s(S_TMP4)}, 0x40, {s(S_TMP2)}")
        e(f"s_atomic_or {s(S_TMP4)}, {s(S_DBG,2)}, {s(S_TMP)}")

    def kvflag_issue(self, glc=False):
        e = self.e
        g = " glc" if glc else ""
        e(f"s_lshl_b32 {s(S_TMP)}, {s(S_G)}, 5")
        e(f"s_load_dwordx8 s[{SH}:{SH+7}], {s(S_DBG,2)}, {s(S_TMP)}{g}")
        e(f"s_add_u32 {s(S_TMP)}, {s(S_G)}, 1"); e(f"s_min_u32 {s(S_TMP)}, {s(S_TMP)}, 7"); e(f"s_lshl_b32 {s(S_TMP)}, {s(S_TMP)}, 5")
        e(f"s_load_dwordx8 s[{SH+8}:{SH+15}], {s(S_DBG,2)}, {s(S_TMP)}{g}")

    def kvflag_verify(self):
        e = self.e
        L = self.L("L_kf"); L2 = self.L("L_kf")
        e(f"s_branch {L2}")
        self.lab(L)
        e("s_sleep 8")
        self.kvflag_issue(glc=True)
        self.lab(L2)
        e("s_waitcnt lgkmcnt(0)")
        e(f"s_mov_b32 {s(S_TMP)}, 0x40404040")
        for q in range(16): e(f"s_and_b32 {s(S_TMP)}, {s(S_TMP)}, s{SH+q}")
        e(f"s_cmp_eq_u32 {s(S_TMP)}, 0x40404040")
        e(f"s_cbranch_scc0 {L}")

    def role_dispatch(self, ph):
        e = self.e
        e(f"s_cmp_lt_u32 {s(S_WV)}, 4"); e(f"s_cbranch_scc1 L_C{ph}")
        e(f"s_cmp_eq_u32 {s(S_WV)}, 6"); e(f"s_cbranch_scc1 L_S{ph}")
        e(f"s_cmp_eq_u32 {s(S_WV)}, 7"); e(f"s_cbranch_scc1 L_X{ph}")

    def poll_fb(self, val, need_mask_sgpr):
        e = self.e
        e(f"s_lshl_b32 {s(S_TMP2)}, {s(S_G)}, 8")
        e(f"s_add_u32 {s(S_TMP2)}, {s(S_TMP2)}, {WS_FB}")
        e("v_and_b32 v2, 31, v0")
        e(f"v_lshl_add_u32 v8, v2, 2, {s(S_TMP2)}")
        e(f"v_lshrrev_b32 v3, v2, {s(need_mask_sgpr)}") if False else None
        e(f"v_mov_b32 v3, {s(need_mask_sgpr)}")
        e("v_lshrrev_b32 v3, v2, v3")
        e("v_and_b32 v3, 1, v3")
        e(f"v_mul_u32_u24 v9, {val}, v3")
        self.poll(8, 9, 10)

    def frag_addr_w128(self, vdst, hstride, base):
        e = self.e
        e("v_lshrrev_b32 v2, 5, v0")
        e("v_bfe_u32 v3, v0, 2, 2")
        e("v_bfe_u32 v4, v0, 4, 1")
        e("v_lshlrev_b32 v4, 1, v4")
        e("v_bfe_u32 v5, v0, 1, 1")
        e("v_or_b32 v4, v4, v5")
        e(f"s_and_b32 {s(S_TMP)}, {s(S_WV)}, 1")
        e(f"s_lshl_b32 {s(S_TMP)}, {s(S_TMP)}, 2")
        e(f"v_or_b32 v4, {s(S_TMP)}, v4")
        e("v_bfe_u32 v5, v0, 3, 1")
        e("v_lshlrev_b32 v5, 2, v5")
        e("v_xor_b32 v4, v4, v5")
        e("v_lshlrev_b32 v4, 4, v4")
        e("v_lshl_add_u32 v4, v3, 7, v4")
        e("v_and_b32 v5, 1, v0")
        e("v_lshl_add_u32 v4, v5, 3, v4")
        e(f"v_mul_u32_u24 v5, {hstride}, v2")
        e("v_add_u32 v4, v4, v5")
        e(f"v_add_u32 {v(vdst)}, {base}, v4")

    HRES = 240

    def pair_reduce(self, ACC, xbase, RED):
        e = self.e
        Lk = self.L("L_k1"); Lj = self.L("L_kj")
        e(f"s_mul_i32 {s(S_TMP)}, {s(S_WV)}, 6144")
        e(f"s_add_u32 {s(S_TMP)}, {s(S_TMP)}, {xbase}")
        e(f"v_lshl_add_u32 v2, v0, 4, {s(S_TMP)}")
        e(f"s_xor_b32 {s(S_TMP)}, {s(S_WV)}, 2")
        e(f"s_mul_i32 {s(S_TMP)}, {s(S_TMP)}, 6144")
        e(f"s_add_u32 {s(S_TMP)}, {s(S_TMP)}, {xbase}")
        e(f"v_lshl_add_u32 v3, v0, 4, {s(S_TMP)}")
        e(f"s_cmp_ge_u32 {s(S_WV)}, 2"); e(f"s_cbranch_scc1 {Lk}")
        for kh, lab in ((0, None), (1, Lk)):
            if lab: self.lab(lab)
            for tt in range(3):
                o = ACC + 16 * tt + 8 * (1 - kh)
                e(f"ds_write_b128 v2, {v(o,4)} offset:{tt*2048}")
                e(f"ds_write_b128 v2, {v(o+4,4)} offset:{tt*2048+1024}")
            e("s_waitcnt lgkmcnt(0)")
            self.e("s_barrier") if kh == 1 else self.bar_pending("BR1")
            for tt in range(3):
                e(f"ds_read_b128 {v(RED+8*tt,4)}, v3 offset:{tt*2048}")
                e(f"ds_read_b128 {v(RED+8*tt+4,4)}, v3 offset:{tt*2048+1024}")
            e("s_waitcnt lgkmcnt(0)")
            for tt in range(3):
                k = ACC + 16 * tt + 8 * kh
                for i in range(0, 8, 2):
                    e(f"v_pk_add_f32 {v(RED+8*tt+i,2)}, {v(RED+8*tt+i,2)}, {v(k+i,2)}")
            if kh == 0: e(f"s_branch {Lj}")
        self.lab(Lj)

    def bar_pending(self, name):
        self.bars.setdefault(self.role, []).append(name)
        self.e("s_barrier")

    def gemm96_loop(self, tag, nst, slot_bytes, nslot, woff, aoff, wks, VW, VB, ACC, FA_, FB_, first_slot=0, wres=False):
        e = self.e
        VWc, VBc = VW + 1, VB + 1
        def reads(m, setn):
            fa = FA_ + 4 * setn; fb = FB_ + 12 * setn
            o = [f"ds_read_b64_tr_b16 {v(fa+2*u,2)}, {v(VWc)} offset:{m*2*wks+u*512}" for u in range(2)]
            o += [f"ds_read_b128 {v(fb+4*tt,4)}, {v(VBc)} offset:{m*6144+tt*1024}" for tt in range(3)]
            return o
        def mf(setn):
            fa = FA_ + 4 * setn; fb = FB_ + 12 * setn
            return [f"v_mfma_f32_32x32x16_bf16 {v(ACC+16*tt,16)}, {v(fa,4)}, {v(fb+4*tt,4)}, {v(ACC+16*tt,16)}" for tt in range(3)]
        def upd():
            o = [f"v_add_u32 {v(VBc)}, {s(S_SLOT)}, {v(VB)}"]
            o.append(f"v_add_u32 {v(VWc)}, {s(S_KW) if wres else s(S_SLOT)}, {v(VW)}")
            return o
        e(f"s_mov_b32 {s(S_SLOT)}, {first_slot*slot_bytes}")
        e(f"s_mov_b32 {s(S_KW)}, 0")
        e(f"s_mov_b32 {s(S_IT)}, 0")
        for t in upd(): e(t)
        self.bar(tag + "0")
        for t in reads(0, 0): e(t)
        L = f"L_{tag}LOOP"
        self.lab(L)
        for m in range(3):
            r = reads(m + 1, (m + 1) & 1); mm = mf(m & 1)
            e("s_waitcnt lgkmcnt(0)")
            e(mm[0]); e(r[0]); e(r[1]); e(mm[1]); e(r[2]); e(r[3]); e(r[4])
            if m == 2:
                e(f"s_add_u32 {s(S_SLOT)}, {s(S_SLOT)}, {slot_bytes}")
                e(f"s_cmp_eq_u32 {s(S_SLOT)}, {nslot*slot_bytes}")
                e(f"s_cselect_b32 {s(S_SLOT)}, 0, {s(S_SLOT)}")
                e(f"s_add_u32 {s(S_KW)}, {s(S_KW)}, {8*wks}")
            e(mm[2])
            if m == 2:
                for t in upd(): e(t)
        mm = mf(1); r = reads(0, 0)
        e("s_waitcnt lgkmcnt(0)")
        self.itstamp(252, tag)
        self.bar(tag + "loop")
        self.itstamp(253, tag)
        e(mm[0]); e(r[0]); e(r[1]); e(mm[1]); e(r[2]); e(r[3]); e(r[4]); e(mm[2])
        e(f"s_add_u32 {s(S_IT)}, {s(S_IT)}, 1")
        e(f"s_cmp_lt_u32 {s(S_IT)}, {nst}")
        e(f"s_cbranch_scc1 {L}")

    def simple_bar_loop(self, tag, nst, lab):
        e = self.e
        self.bar(tag + "0")
        e(f"s_mov_b32 {s(S_IT)}, 0")
        self.lab(lab)
        self.bar(tag + "loop")
        e(f"s_add_u32 {s(S_IT)}, {s(S_IT)}, 1")
        e(f"s_cmp_lt_u32 {s(S_IT)}, {nst}")
        e(f"s_cbranch_scc1 {lab}")

    def phase3(self):
        e = self.e
        self.role = "P3"
        self.lab("L_P3")
        e(f"s_cmp_ge_u32 {s(S_I)}, 30")
        e("s_cbranch_scc1 L_P4")
        self.p3_decode()
        self.role_dispatch(3)
        self.role = "L"
        e("v_lshrrev_b32 v2, 5, v0"); e("v_and_b32 v3, 31, v0")
        e("v_lshlrev_b32 v2, 15, v2")
        e("v_lshl_add_u32 v8, v3, 4, v2")
        for idx in range(1, 12):
            e(f"v_add_u32 {v(8+idx)}, {(idx//3)*2*CH + (idx%3)*512}, v8")
        e(f"s_and_b32 {s(S_TMP3)}, {s(S_WV)}, 1")
        e(f"s_lshl_b32 {s(S_KA)}, {s(S_TMP3)}, 18")
        e(f"s_lshl_b32 {s(S_TMP)}, {s(S_T0)}, 4")
        e(f"s_add_u32 {s(S_KA)}, {s(S_KA)}, {s(S_TMP)}")
        e(f"s_add_u32 {s(S_KA)}, {s(S_KA)}, {WS_O}")
        e(f"s_mul_i32 {s(S_TMP4)}, {s(S_TMP3)}, {12*1024}")
        ait3 = [(8 + q, SRD_WS, S_KA, q * 1024, True) for q in range(12)]
        def a_stage(slot):
            e(f"s_add_u32 {s(S_TMP)}, {s(S_TMP4)}, {slot*24576}")
            self.dma_group(ait3, S_TMP)
            e(f"s_add_u32 {s(S_KA)}, {s(S_KA)}, {16*CH}")
        self.bar("BP3a")
        self.stamp("L3go")
        a_stage(0); a_stage(1)
        e("s_waitcnt vmcnt(12)"); self.bar("B30")
        a_stage(2)
        e("s_waitcnt vmcnt(12)"); self.bar("B3loop"); a_stage(0)
        e("s_waitcnt vmcnt(12)"); e("s_barrier"); a_stage(1)
        e("s_waitcnt vmcnt(12)"); e("s_barrier")
        e("s_waitcnt vmcnt(0)"); e("s_barrier")
        e("s_barrier")
        wit, ait = self.l4_setup()
        self.bar("BR1")
        self.ring_pre(wit, 64 * 3072, 32768, between={1: lambda: self.bar("BR2")})
        self.bar("BE3")
        e("s_branch L_L4B")
        self.role = "S"
        self.lab("L_S3")
        e(f"s_mov_b32 {s(S_TMP)}, 0xffff")
        e(f"s_cmp_eq_u32 {s(S_R)}, 1"); e(f"s_cselect_b32 {s(S_TMP)}, -1, {s(S_TMP)}")
        e(f"s_cmp_eq_u32 {s(S_R)}, 2"); e(f"s_cselect_b32 {s(S_TMP)}, 0xffff0000, {s(S_TMP)}")
        e(f"s_mov_b32 {s(S_TMP4)}, {s(S_TMP)}")
        self.kvflag_issue()
        self.poll_fb(3, S_TMP4)
        self.bar("BP3a")
        self.kvflag_verify()
        self.simple_bar_loop("B3", 5, "L_S3LOOP")
        self.bar("BR1"); self.bar("BR2"); self.bar("BE3")
        self.set_fb(4)
        e("s_branch L_P4")
        self.role = "X"
        self.lab("L_X3")
        self.bar("BP3a")
        self.simple_bar_loop("B3", 5, "L_X3LOOP")
        self.bar("BR1"); self.bar("BR2")
        for ps in range(2):
            e(f"v_lshlrev_b32 v2, 3, v0")
            e(f"v_add_u32 v3, {LDS_P3ST}, v2")
            for w in range(4):
                e(f"ds_read_b64 {v(8+2*w,2)}, v3 offset:{w*768+ps*512}")
            e("s_waitcnt lgkmcnt(0)")
            e("v_add_f32 v8, v8, v10"); e("v_add_f32 v9, v9, v11")
            e("v_add_f32 v12, v12, v14"); e("v_add_f32 v13, v13, v15")
            e("v_add_f32 v8, v8, v12"); e("v_add_f32 v9, v9, v13")
            e(f"s_lshl_b32 {s(S_TMP)}, {s(S_T)}, 14")
            e(f"s_lshl_b32 {s(S_TMP2)}, {s(S_T0)}, 3")
            e(f"s_add_u32 {s(S_TMP)}, {s(S_TMP)}, {s(S_TMP2)}")
            e(f"s_add_u32 {s(S_TMP)}, {s(S_TMP)}, {WS_ST2+ps*512}")
            if ps == 1:
                Ls = self.L("L_x3")
                e(f"s_cmp_eq_u32 {s(S_R)}, 2"); e(f"s_cbranch_scc1 {Ls}")
                e("s_mov_b32 exec_hi, 0")
            e(f"buffer_store_dwordx2 v[8:9], v2, {s(SRD_WS,4)}, {s(S_TMP)} offen sc1")
            if ps == 1:
                e("s_mov_b32 exec_hi, -1")
                self.lab(Ls)
        e("s_waitcnt vmcnt(0)")
        self.bar("BE3")
        e("s_branch L_P4")
        self.role = "C"
        self.lab("L_C3")
        ACC = 64; FA_ = 112; FB_ = 120; VW = 16; VB = 18; XR = 144; RED = 160
        HR = self.HRES
        e("v_and_b32 v1, 31, v0"); e("v_lshrrev_b32 v2, 5, v0")
        e(f"v_add_u32 v3, {s(S_T0)}, v1")
        e("v_mul_u32_u24 v4, 1280, v3")
        e(f"s_lshl_b32 {s(S_TMP)}, {s(S_T)}, 6")
        e(f"s_and_b32 {s(S_TMP2)}, {s(S_WV)}, 1"); e(f"s_lshl_b32 {s(S_TMP2)}, {s(S_TMP2)}, 5")
        e(f"s_add_u32 {s(S_TMP)}, {s(S_TMP)}, {s(S_TMP2)}")
        e(f"s_lshr_b32 {s(S_TMP2)}, {s(S_WV)}, 1"); e(f"s_lshl_b32 {s(S_TMP2)}, {s(S_TMP2)}, 4")
        e(f"s_add_u32 {s(S_N0)}, {s(S_TMP)}, {s(S_TMP2)}")
        e(f"v_lshl_add_u32 v5, v2, 2, {s(S_N0)}")
        e("v_lshl_add_u32 v4, v5, 1, v4")
        self.srd(SRD_T, S_X, size=2048 * 1280)
        for tt in range(3):
            e(f"s_mov_b32 {s(S_TMP)}, {tt*32*1280}")
            for jj in range(2):
                e(f"buffer_load_dwordx2 {v(XR+4*tt+2*jj,2)}, v4, {s(SRD_T,4)}, {s(S_TMP)} offen offset:{jj*16}")
        e(f"s_lshr_b32 {s(S_TMP)}, {s(S_N0)}, 3")
        e(f"v_add_u32 v5, {s(S_TMP)}, v2")
        e("v_lshlrev_b32 v5, 15, v5")
        e("v_lshl_add_u32 v5, v3, 4, v5")
        e(f"v_add_u32 v20, {WS_H}, v5")
        self.frag_addr_w128(VW, 1024, LDS_WO)
        e(f"s_lshr_b32 {s(S_TMP)}, {s(S_WV)}, 1")
        e(f"s_lshl_b32 {s(S_TMP2)}, {s(S_TMP)}, 11")
        e(f"v_add_u32 {v(VW)}, {s(S_TMP2)}, {v(VW)}")
        e(f"s_mul_i32 {s(S_TMP)}, {s(S_TMP)}, 3072")
        e(f"v_lshl_add_u32 {v(VB)}, v0, 4, {s(S_TMP)}")
        for i in range(0, 48, 2): e(f"v_mov_b64 {v(ACC+i,2)}, 0")
        self.bar("BP3a")
        self.stamp("C3go")
        self.gemm96_loop("B3", 5, 24576, 3, 0, 0, 2048, VW, VB, ACC, FA_, FB_, wres=True)
        self.stamp("C3loop")
        self.pair_reduce(ACC, 131072, RED)
        e("s_waitcnt vmcnt(0)")
        for tt in range(3):
            for q in range(4):
                x = XR + 4 * tt + q; d = RED + 8 * tt + 2 * q
                e(f"v_lshlrev_b32 v2, 16, {v(x)}")
                e(f"v_and_b32 v3, 0xffff0000, {v(x)}")
                e(f"v_add_f32 {v(d)}, {v(d)}, v2")
                e(f"v_add_f32 {v(d+1)}, {v(d+1)}, v3")
                e(f"v_cvt_pk_bf16_f32 {v(HR+4*tt+q)}, {v(d)}, {v(d+1)}")
        e("v_mov_b32 v4, 0x3f803f80")
        for tt in range(3):
            e(f"v_mov_b32 {v(24+2*tt)}, 0"); e(f"v_mov_b32 {v(25+2*tt)}, 0")
        for q in range(4):
            for tt in range(3):
                e(f"v_dot2_f32_bf16 {v(24+2*tt)}, {v(HR+4*tt+q)}, v4, {v(24+2*tt)}")
                e(f"v_dot2_f32_bf16 {v(25+2*tt)}, {v(HR+4*tt+q)}, {v(HR+4*tt+q)}, {v(25+2*tt)}")
        for r in range(24, 30):
            e(f"v_mov_b32 {v(r+8)}, {v(r)}")
        for r in range(24, 30):
            e(f"v_permlane32_swap_b32 {v(r)}, {v(r+8)}")
        for r in range(24, 30):
            e(f"v_add_f32 {v(r)}, {v(r)}, {v(r+8)}")
        e(f"s_mul_i32 {s(S_TMP)}, {s(S_WV)}, 768")
        e(f"s_add_u32 {s(S_TMP)}, {s(S_TMP)}, {LDS_P3ST}")
        e(f"v_lshl_add_u32 v2, v1, 3, {s(S_TMP)}")
        e("s_mov_b32 exec_hi, 0")
        for tt in range(3):
            e(f"ds_write_b64 v2, {v(24+2*tt,2)} offset:{tt*256}")
        e("s_mov_b32 exec_hi, -1")
        st = [f"buffer_store_dwordx4 {v(HR+4*tt,4)}, v20, {s(SRD_WS,4)}, 0 offen offset:{tt*512}" for tt in range(3)]
        Ls = self.L("L_c3s"); Lt = self.L("L_c3t")
        e(f"s_cmp_eq_u32 {s(S_R)}, 2"); e(f"s_cbranch_scc1 {Ls}")
        self.store_mode(st)
        e(f"s_branch {Lt}")
        self.lab(Ls)
        self.store_mode(st[:2])
        self.lab(Lt)
        e("s_waitcnt lgkmcnt(0)")
        self.bar("BR2")
        e("s_waitcnt vmcnt(0)")
        self.bar("BE3")
        self.stamp("C3end")
        e("s_branch L_P4")


    def phase4(self):
        e = self.e
        self.role = "P4"
        self.lab("L_P4")
        e(f"s_lshr_b32 {s(S_R)}, {s(S_I)}, 3")
        e(f"s_and_b32 {s(S_T)}, {s(S_I)}, 7")
        e(f"s_lshl_b32 {s(S_T0)}, {s(S_G)}, 8")
        e(f"s_lshl_b32 {s(S_TMP)}, {s(S_R)}, 6")
        e(f"s_add_u32 {s(S_T0)}, {s(S_T0)}, {s(S_TMP)}")
        e(f"s_mul_i32 {s(S_N0)}, {s(S_T)}, 192")
        self.role_dispatch(4)
        LST = LDS_P4ST; LCS = LST + 512
        self.role = "L"
        wit, ait = self.l4_setup()
        self.ring_pre(wit, 64 * 3072, 32768)
        self.lab("L_L4B")
        self.bar("BP4a")
        self.stamp("L4go")
        self.ring_main(wit, ait, 64 * 3072, 8 * CH, 10, 32768, "B4", "L_L4LOOP")
        Lno = self.L("L_no5")
        e(f"s_cmp_ge_u32 {s(S_I)}, 30"); e(f"s_cbranch_scc1 {Lno}")
        wit5, ait5 = self.l5_setup()
        self.ring_pre(wit5, 128 * 1280, 40960)
        self.lab(Lno)
        self.bar("BE4")
        e(f"s_cmp_ge_u32 {s(S_I)}, 30"); e("s_cbranch_scc1 L_FIN")
        e("s_branch L_L5B")
        self.wit5, self.ait5 = wit5, ait5
        self.role = "S"
        self.lab("L_S4")
        e(f"s_mov_b32 {s(S_TMP4)}, 0x3ff")
        e(f"s_cmp_eq_u32 {s(S_R)}, 1"); e(f"s_cselect_b32 {s(S_TMP4)}, 0xfffff, {s(S_TMP4)}")
        e(f"s_cmp_eq_u32 {s(S_R)}, 2"); e(f"s_cselect_b32 {s(S_TMP4)}, 0xffc00, {s(S_TMP4)}")
        e(f"s_cmp_eq_u32 {s(S_R)}, 3"); e(f"s_cselect_b32 {s(S_TMP4)}, 0x3ff00000, {s(S_TMP4)}")
        e("v_and_b32 v2, 1, v0"); e("v_add_u32 v2, 30, v2"); e("v_lshlrev_b32 v2, 3, v2")
        e("v_lshrrev_b32 v3, 1, v0"); e("v_or_b32 v2, v2, v3"); e("v_lshlrev_b32 v2, 7, v2")
        e("v_cmp_gt_u32 vcc, 12, v0")
        e("v_cndmask_b32 v8, 0, v2, vcc"); e("v_cndmask_b32 v9, 0, 2, vcc")
        self.poll(8, 9, 10)
        Lkq = self.L("L_kq")
        e(f"s_cmp_lt_u32 {s(S_I)}, 30"); e(f"s_cbranch_scc1 {Lkq}")
        self.kvflag_issue()
        self.kvflag_verify()
        self.lab(Lkq)
        self.poll_fb(4, S_TMP4)
        self.bar("BP4a")
        self.simple_bar_loop("B4", 10, "L_S4LOOP")
        self.bar("BE4")
        self.set_fb(5)
        e("s_branch L_P5")
        self.role = "X"
        self.lab("L_X4")
        self.bar("BP4a")
        e(f"s_lshl_b32 {s(S_TMP)}, {s(S_T0)}, 3")
        e(f"s_add_u32 {s(S_TMP)}, {s(S_TMP)}, {WS_ST2}")
        e("v_lshlrev_b32 v2, 3, v0")
        for ct in range(10):
            e(f"buffer_load_dwordx2 {v(8+2*ct,2)}, v2, {s(SRD_WS,4)}, {s(S_TMP)} offen sc1")
            e(f"s_add_u32 {s(S_TMP)}, {s(S_TMP)}, 16384")
        e(f"s_lshl_b32 {s(S_TMP)}, {s(S_N0)}, 2")
        e(f"s_add_u32 {s(S_TMP)}, {s(S_TMP)}, {WS_CS1}")
        e("v_lshlrev_b32 v3, 4, v0")
        e(f"s_mov_b32 m0, {LCS}")
        e("s_mov_b32 exec_hi, 0xffff")
        e(f"buffer_load_dwordx4 v3, {s(SRD_WS,4)}, {s(S_TMP)} offen sc1 lds")
        e("s_mov_b32 exec_hi, -1")
        self.bar("B40")
        e("s_waitcnt vmcnt(0)")
        for ct in range(1, 10):
            e(f"v_add_f32 v8, v8, {v(8+2*ct)}"); e(f"v_add_f32 v9, v9, {v(9+2*ct)}")
        e("v_mul_f32 v8, 0x3acccccd, v8"); e("v_mul_f32 v9, 0x3acccccd, v9")
        e("v_fma_f32 v9, -v8, v8, v9"); e("v_max_f32 v9, 0, v9"); e("v_add_f32 v9, 0x3727c5ac, v9")
        e("v_rsq_f32 v10, v9"); e("v_mul_f32 v11, -1.0, v8"); e("v_mul_f32 v11, v11, v10")
        e(f"v_add_u32 v2, {LST}, v2")
        e("ds_write_b64 v2, v[10:11]")
        e("s_waitcnt lgkmcnt(0)")
        e(f"s_mov_b32 {s(S_IT)}, 0")
        self.lab("L_X4LOOP")
        self.bar("B4loop")

        e(f"s_add_u32 {s(S_IT)}, {s(S_IT)}, 1")
        e(f"s_cmp_lt_u32 {s(S_IT)}, 10")
        e("s_cbranch_scc1 L_X4LOOP")
        self.bar("BE4")
        e("s_branch L_P5")
        self.role = "C"
        self.lab("L_C4")
        ACC = 64; FA_ = 112; FB_ = 136; VW = 8; VWc = 12; VB = 16; VBc = 17; CS = 144; PK = 192
        e("v_lshrrev_b32 v2, 5, v0"); e("v_bfe_u32 v3, v0, 2, 2")
        e("v_lshl_add_u32 v6, v2, 3, v3"); e("v_mul_u32_u24 v6, 384, v6")
        e("v_and_b32 v5, 1, v0"); e("v_lshl_add_u32 v6, v5, 3, v6")
        e("v_bfe_u32 v4, v0, 4, 1"); e("v_lshlrev_b32 v4, 1, v4"); e("v_bfe_u32 v5, v0, 1, 1"); e("v_or_b32 v4, v4, v5")
        e(f"s_and_b32 {s(S_TMP)}, {s(S_WV)}, 1"); e(f"s_mul_i32 {s(S_TMP)}, {s(S_TMP)}, 12")
        e(f"v_add_u32 v4, {s(S_TMP)}, v4")
        e("v_bfe_u32 v5, v0, 3, 1"); e("v_lshlrev_b32 v5, 2, v5")
        for f in range(3):
            e(f"v_add_u32 v7, {4*f}, v4"); e("v_xor_b32 v7, v7, v5")
            e(f"v_lshl_add_u32 {v(VW+f)}, v7, 4, v6")
        e(f"s_lshr_b32 {s(S_TMP)}, {s(S_WV)}, 1"); e(f"s_lshl_b32 {s(S_TMP)}, {s(S_TMP)}, 10")
        e(f"s_add_u32 {s(S_TMP)}, {s(S_TMP)}, 24576")
        e(f"v_lshl_add_u32 {v(VB)}, v0, 4, {s(S_TMP)}")
        for i in range(0, 48, 2): e(f"v_mov_b64 {v(ACC+i,2)}, 0")
        e("v_and_b32 v1, 31, v0")
        e(f"s_lshr_b32 {s(S_TMP)}, {s(S_WV)}, 1"); e(f"s_lshl_b32 {s(S_TMP)}, {s(S_TMP)}, 5")
        e(f"v_add_u32 v3, {s(S_TMP)}, v1")
        e(f"v_lshlrev_b32 v20, 3, v3"); e(f"v_add_u32 v20, {LST}, v20")
        e(f"v_add_u32 v3, {s(S_T0)}, v3")
        e(f"s_and_b32 {s(S_TMP)}, {s(S_WV)}, 1"); e(f"s_mul_i32 {s(S_TMP)}, {s(S_TMP)}, 96")
        e(f"s_lshl_b32 {s(S_TMP2)}, {s(S_TMP)}, 2"); e(f"s_add_u32 {s(S_TMP2)}, {s(S_TMP2)}, {LCS}")
        e(f"v_lshl_add_u32 v21, v2, 4, {s(S_TMP2)}")
        e(f"s_add_u32 {s(S_TMP)}, {s(S_TMP)}, {s(S_N0)}"); e(f"s_lshr_b32 {s(S_TMP)}, {s(S_TMP)}, 3")
        e(f"s_mov_b32 {s(S_KA)}, {s(S_TMP)}")
        e("v_mov_b32 v4, v2"); e("v_lshlrev_b32 v4, 15, v4")
        e("v_lshl_add_u32 v4, v3, 4, v4"); e(f"v_add_u32 v22, {WS_H1}, v4")
        def reads(ks, setn):
            fa = FA_ + 12 * setn; fb = FB_ + 4 * setn
            o = []
            for f in range(3):
                for u in range(2):
                    o.append(f"ds_read_b64_tr_b16 {v(fa+4*f+2*u,2)}, {v(VWc+f)} offset:{ks*6144+u*1536}")
            o.append(f"ds_read_b128 {v(fb,4)}, {v(VBc)} offset:{ks*2048}")
            return [o[6], o[0], o[1], o[2], o[3], o[4], o[5]]
        def mf(setn):
            fa = FA_ + 12 * setn; fb = FB_ + 4 * setn
            return [f"v_mfma_f32_32x32x16_bf16 {v(ACC+16*f,16)}, {v(fa+4*f,4)}, {v(fb,4)}, {v(ACC+16*f,16)}" for f in range(3)]
        def upd():
            return [f"v_add_u32 {v(VWc+f)}, {s(S_SLOT)}, {v(VW+f)}" for f in range(3)] + [f"v_add_u32 {v(VBc)}, {s(S_SLOT)}, {v(VB)}"]
        e(f"s_mov_b32 {s(S_SLOT)}, 0"); e(f"s_mov_b32 {s(S_IT)}, 0")
        for t in upd(): e(t)
        self.bar("BP4a")
        self.stamp("C4go")
        self.bar("B40")
        for t in reads(0, 0): e(t)
        self.lab("L_C4LOOP")
        for ks in range(3):
            r = reads(ks + 1, (ks + 1) & 1); m = mf(ks & 1)
            e("s_waitcnt lgkmcnt(0)")
            e(m[0]); e(r[0]); e(r[1]); e(r[2]); e(m[1]); e(r[3]); e(r[4]); e(r[5]); e(r[6])
            if ks == 2:
                e(f"s_add_u32 {s(S_SLOT)}, {s(S_SLOT)}, 32768")
                e(f"s_and_b32 {s(S_SLOT)}, {s(S_SLOT)}, {4*32768-1}")
            e(m[2])
            if ks == 2:
                for t in upd(): e(t)
        m = mf(1); r = reads(0, 0)
        e("s_waitcnt lgkmcnt(0)")
        self.itstamp(252, "B4")
        self.bar("B4loop")
        self.itstamp(253, "B4")
        e(m[0]); e(r[0]); e(r[1]); e(r[2]); e(m[1]); e(r[3]); e(r[4]); e(r[5]); e(r[6]); e(m[2])
        e(f"s_add_u32 {s(S_IT)}, {s(S_IT)}, 1")
        e(f"s_cmp_lt_u32 {s(S_IT)}, 10")
        e("s_cbranch_scc1 L_C4LOOP")
        self.stamp("C4loop")
        e("s_waitcnt lgkmcnt(0)")
        e("ds_read_b64 v[24:25], v20")
        for f in range(3):
            for j in range(4):
                e(f"ds_read_b128 {v(CS+16*f+4*j,4)}, v21 offset:{(32*f+8*j)*4}")
        e("s_waitcnt lgkmcnt(0)")
        e("v_mul_f32 v26, 0xbfb8aa3b, v24")
        e("v_mul_f32 v27, 0xbfb8aa3b, v25")
        e("v_mov_b32 v28, 1.0"); e("v_mov_b32 v29, 1.0")
        stores = []
        for f in range(3):
            d = ACC + 16 * f; c = CS + 16 * f
            for i in range(0, 16, 2):
                e(f"v_pk_mul_f32 {v(d+i,2)}, {v(d+i,2)}, v[24:25] op_sel_hi:[1,0]")
            for i in range(0, 16, 2):
                e(f"v_pk_fma_f32 {v(d+i,2)}, {v(c+i,2)}, v[24:25], {v(d+i,2)} op_sel:[0,1,0] op_sel_hi:[1,1,1]")
            for i in range(16):
                e(f"v_mul_f32 {v(c+i)}, 0xbfb8aa3b, {v(d+i)}")
            for i in range(16):
                e(f"v_exp_f32 {v(c+i)}, {v(c+i)}")
            for i in range(0, 16, 2):
                e(f"v_pk_add_f32 {v(c+i,2)}, {v(c+i,2)}, v[28:29]")
            for i in range(16):
                e(f"v_rcp_f32 {v(c+i)}, {v(c+i)}")
            for i in range(0, 16, 2):
                e(f"v_pk_mul_f32 {v(d+i,2)}, {v(d+i,2)}, {v(c+i,2)}")
            for t in range(2):
                p = PK + 8 * f + 4 * t
                for q in range(4):
                    e(f"v_cvt_pk_bf16_f32 {v(p+q)}, {v(d+8*t+2*q)}, {v(d+8*t+2*q+1)}")
            sts = []
            for t in range(2):
                p = PK + 8 * f + 4 * t
                sts.append(f"s_add_u32 {s(S_TMP)}, {s(S_KA)}, {4*f+2*t}")
                sts.append(f"s_cmp_ge_u32 {s(S_TMP)}, 80")
                sts.append(f"s_cselect_b32 {s(S_TMP2)}, 80, 0")
                sts.append(f"s_add_u32 {s(S_TMP)}, {s(S_TMP)}, {s(S_TMP2)}")
                sts.append(f"s_lshl_b32 {s(S_TMP)}, {s(S_TMP)}, 15")
                sts.append(f"buffer_store_dwordx4 {v(p,4)}, v22, {s(SRD_WS,4)}, {s(S_TMP)} offen")
            self.store_mode(sts)
        self.stamp("C4st")
        e("s_waitcnt vmcnt(0)")
        self.bar("BE4")
        self.stamp("C4end")
        e("s_branch L_P5")

    def dma_group(self, items, base):
        e = self.e
        prev = None
        for (vg_, srd, so, lo, sc1) in items:
            if prev is None:
                e(f"s_add_u32 m0, {s(base)}, {lo}")
            elif lo - prev == 1024:
                e(f"s_add_u32 m0, m0, {s(S_C1024)}")
            else:
                e(f"s_add_u32 m0, m0, {lo - prev}")
            prev = lo
            e(f"buffer_load_dwordx4 {v(vg_)}, {s(srd,4)}, {s(so)} offen{' sc1' if sc1 else ''} lds")

    def ring_pre(self, wit, wadv, slot_bytes, nslot=4, split=None, between=None):
        e = self.e
        for st in range(nslot):
            e(f"s_add_u32 {s(S_TMP)}, {s(S_TMP3)}, {st*slot_bytes}")
            self.dma_group(wit, S_TMP)
            e(f"s_add_u32 {s(S_KW)}, {s(S_KW)}, {wadv}")
            if between and st in between: between[st]()

    def ring_main(self, wit, ait, wadv, aadv, nst, slot_bytes, tag, lab, nslot=4, jump=None):
        e = self.e
        nw, na = len(wit), len(ait); per = nw + na
        for st in range(nslot):
            e(f"s_add_u32 {s(S_TMP)}, {s(S_TMP4)}, {st*slot_bytes}")
            self.dma_group(ait, S_TMP)
            e(f"s_add_u32 {s(S_KA)}, {s(S_KA)}, {aadv}")
            if st == 1:
                e(f"s_waitcnt vmcnt({na})")
                self.bar(tag + "0")
        e(f"s_mov_b32 {s(S_IT)}, 0")
        e(f"s_mov_b32 {s(S_FILL)}, 0")
        self.lab(lab)
        Lw = [self.L("L_rw") for _ in range(5)]; Lt = self.L("L_t"); Ls = self.L("L_s")
        self.itstamp(250, tag)
        e(f"s_cmp_eq_u32 {s(S_IT)}, 0"); e(f"s_cbranch_scc1 {Lw[0]}")
        e(f"s_cmp_eq_u32 {s(S_IT)}, 1"); e(f"s_cbranch_scc1 {Lw[1]}")
        e(f"s_cmp_eq_u32 {s(S_IT)}, {nst-3}"); e(f"s_cbranch_scc1 {Lw[2]}")
        e(f"s_cmp_gt_u32 {s(S_IT)}, {nst-3}"); e(f"s_cbranch_scc1 {Lw[3]}")
        e(f"s_waitcnt vmcnt({min(63, 2*per)})"); e(f"s_branch {Lt}")
        self.lab(Lw[0]); e(f"s_waitcnt vmcnt({2*na})"); e(f"s_branch {Lt}")
        self.lab(Lw[1]); e(f"s_waitcnt vmcnt({na+per})"); e(f"s_branch {Lt}")
        self.lab(Lw[2]); e(f"s_waitcnt vmcnt({per})"); e(f"s_branch {Lt}")
        self.lab(Lw[3]); e("s_waitcnt vmcnt(0)")
        self.lab(Lt)
        self.itstamp(251, tag)
        self.bar(tag + "loop")
        self.itstamp(252, tag)
        e(f"s_cmp_gt_u32 {s(S_IT)}, {nst-nslot-1}")
        e(f"s_cbranch_scc1 {Ls}")
        e(f"s_add_u32 {s(S_TMP)}, {s(S_TMP4)}, {s(S_FILL)}")
        self.dma_group(ait, S_TMP)
        e(f"s_add_u32 {s(S_TMP)}, {s(S_TMP3)}, {s(S_FILL)}")
        self.dma_group(wit, S_TMP)
        e(f"s_add_u32 {s(S_KA)}, {s(S_KA)}, {aadv}")
        e(f"s_add_u32 {s(S_KW)}, {s(S_KW)}, {wadv}")
        if jump:
            Lj = self.L("L_jp")
            e(f"s_cmp_lg_u32 {s(S_IT)}, {jump[0]}"); e(f"s_cbranch_scc1 {Lj}")
            e(f"s_add_u32 {s(S_KA)}, {s(S_KA)}, {jump[1]}")
            self.lab(Lj)
        self.lab(Ls)
        self.itstamp(253, tag)
        e(f"s_add_u32 {s(S_FILL)}, {s(S_FILL)}, {slot_bytes}")
        e(f"s_cmp_eq_u32 {s(S_FILL)}, {nslot*slot_bytes}")
        e(f"s_cselect_b32 {s(S_FILL)}, 0, {s(S_FILL)}")
        e(f"s_add_u32 {s(S_IT)}, {s(S_IT)}, 1")
        e(f"s_cmp_lt_u32 {s(S_IT)}, {nst}")
        e(f"s_cbranch_scc1 {lab}")

    def l4_setup(self):
        e = self.e
        e(f"s_lshr_b32 {s(S_R)}, {s(S_I)}, 3")
        e(f"s_and_b32 {s(S_T)}, {s(S_I)}, 7")
        e(f"s_lshl_b32 {s(S_T0)}, {s(S_G)}, 8")
        e(f"s_lshl_b32 {s(S_TMP)}, {s(S_R)}, 6")
        e(f"s_add_u32 {s(S_T0)}, {s(S_T0)}, {s(S_TMP)}")
        e(f"s_mul_i32 {s(S_N0)}, {s(S_T)}, 192")
        for ev in range(3):
            e(f"v_add_u32 v2, {64*ev}, v0")
            e("v_mul_u32_u24 v3, 171, v2"); e("v_lshrrev_b32 v3, 12, v3")
            e("v_mul_u32_u24 v4, 24, v3"); e("v_sub_u32 v4, v2, v4")
            e("v_bfe_u32 v5, v3, 1, 1"); e("v_lshlrev_b32 v5, 2, v5"); e("v_xor_b32 v4, v4, v5")
            e("v_and_b32 v5, 3, v3"); e("v_lshrrev_b32 v6, 2, v3"); e("v_lshl_add_u32 v5, v6, 3, v5")
            e("v_mul_u32_u24 v5, 3072, v5")
            e(f"v_lshl_add_u32 {v(8+ev)}, v4, 4, v5")
        for m in range(1, 4):
            roff = (16 * (m >> 1) + 4 * (m & 1)) * 3072
            for ev in range(3):
                e(f"v_add_u32 {v(8+3*m+ev)}, {roff}, {v(8+ev)}")
        e("v_lshrrev_b32 v2, 5, v0"); e("v_and_b32 v3, 31, v0")
        e("v_lshlrev_b32 v2, 15, v2")
        e("v_lshl_add_u32 v20, v3, 4, v2")
        for idx in range(1, 4):
            e(f"v_add_u32 {v(20+idx)}, {(idx>>1)*2*CH + (idx&1)*512}, v20")
        e(f"s_and_b32 {s(S_IT)}, {s(S_WV)}, 1")
        e(f"s_lshl_b32 {s(S_TMP)}, {s(S_N0)}, 1")
        self.srd(SRD_W, S_W1, S_TMP, 640 * 3072)
        e(f"s_mul_i32 {s(S_KW)}, {s(S_IT)}, {32*3072}")
        e(f"s_lshl_b32 {s(S_KA)}, {s(S_T0)}, 4")
        e(f"s_add_u32 {s(S_KA)}, {s(S_KA)}, {WS_H}")
        e(f"s_mul_i32 {s(S_TMP)}, {s(S_IT)}, {4*CH}")
        e(f"s_add_u32 {s(S_KA)}, {s(S_KA)}, {s(S_TMP)}")
        e(f"s_mul_i32 {s(S_TMP3)}, {s(S_IT)}, 12288")
        e(f"s_lshl_b32 {s(S_TMP4)}, {s(S_IT)}, 12")
        e(f"s_add_u32 {s(S_TMP4)}, {s(S_TMP4)}, 24576")
        wit = [(8 + q, SRD_W, S_KW, q * 1024, False) for q in range(12)]
        ait = [(20 + q, SRD_WS, S_KA, q * 1024, True) for q in range(4)]
        return wit, ait

    def l5_setup(self):
        e = self.e
        self.p3_decode()
        self.wrow_voffsets(8, None, 1280)
        for m in range(1, 8):
            e(f"v_add_u32 {v(8+m)}, {(16*(m>>1)+4*(m&1))*1280}, v8")
        e("v_lshrrev_b32 v2, 5, v0"); e("v_and_b32 v3, 31, v0")
        e("v_lshlrev_b32 v2, 15, v2")
        e("v_lshl_add_u32 v20, v3, 4, v2")
        for idx in range(1, 12):
            e(f"v_add_u32 {v(20+idx)}, {(idx//3)*2*CH + (idx%3)*512}, v20")
        e(f"s_and_b32 {s(S_IT)}, {s(S_WV)}, 1")
        e(f"s_lshl_b32 {s(S_TMP)}, {s(S_T)}, 7")
        self.srd(SRD_W, S_W2, S_TMP, 1536 * 1280)
        e(f"s_mul_i32 {s(S_KW)}, {s(S_IT)}, {64*1280}")
        e(f"s_lshl_b32 {s(S_KA)}, {s(S_T0)}, 4")
        e(f"s_add_u32 {s(S_KA)}, {s(S_KA)}, {WS_H1}")
        e(f"s_mul_i32 {s(S_TMP)}, {s(S_IT)}, {8*CH}")
        e(f"s_add_u32 {s(S_KA)}, {s(S_KA)}, {s(S_TMP)}")
        e(f"s_lshl_b32 {s(S_TMP3)}, {s(S_IT)}, 13")
        e(f"s_mul_i32 {s(S_TMP4)}, {s(S_IT)}, 12288")
        e(f"s_add_u32 {s(S_TMP4)}, {s(S_TMP4)}, 16384")
        wit = [(8 + q, SRD_W, S_KW, q * 1024, False) for q in range(8)]
        ait = [(20 + q, SRD_WS, S_KA, q * 1024, True) for q in range(12)]
        return wit, ait

    def phase5(self):
        e = self.e
        self.role = "P5"
        self.lab("L_P5")
        e(f"s_cmp_ge_u32 {s(S_I)}, 30")
        e("s_cbranch_scc1 L_FIN")
        self.p3_decode()
        self.role_dispatch(5)
        SL = 40960
        self.role = "L"
        e("s_endpgm")
        self.lab("L_L5B")
        self.bar("BP5a")
        self.stamp("L5go")
        self.ring_main(self.wit5, self.ait5, 0 if self.exp & 16 else 128 * 1280, 0 if self.exp & 32 else 16 * CH, 12, SL, "B5", "L_L5LOOP", jump=(0, 80 * CH))
        self.bar("BR5")
        e("s_branch L_FIN")
        self.role = "S"
        self.lab("L_S5")
        e(f"s_mov_b32 {s(S_TMP4)}, 0xffff")
        e(f"s_cmp_eq_u32 {s(S_R)}, 1"); e(f"s_cselect_b32 {s(S_TMP4)}, 0xffff00, {s(S_TMP4)}")
        e(f"s_cmp_eq_u32 {s(S_R)}, 2"); e(f"s_cselect_b32 {s(S_TMP4)}, 0xff000000, {s(S_TMP4)}")
        self.poll_fb(5, S_TMP4)
        self.bar("BP5a")
        self.simple_bar_loop("B5", 12, "L_S5LOOP")
        self.bar("BR5")
        e("s_branch L_FIN")
        self.role = "X"
        self.lab("L_X5")
        self.bar("BP5a")
        self.simple_bar_loop("B5", 12, "L_X5LOOP")
        self.bar("BR5")
        e("s_branch L_FIN")
        self.role = "C"
        self.lab("L_C5")
        ACC = 64; FA_ = 112; FB_ = 120; VW = 16; VB = 18; RED = 160
        HR = self.HRES
        e("v_and_b32 v1, 31, v0")
        e(f"v_add_u32 v3, {s(S_T0)}, v1")
        e("v_mul_u32_u24 v4, 1280, v3")
        e(f"s_lshl_b32 {s(S_TMP)}, {s(S_T)}, 6")
        e(f"s_and_b32 {s(S_TMP2)}, {s(S_WV)}, 1"); e(f"s_lshl_b32 {s(S_TMP2)}, {s(S_TMP2)}, 5")
        e(f"s_add_u32 {s(S_TMP)}, {s(S_TMP)}, {s(S_TMP2)}")
        e(f"s_lshr_b32 {s(S_TMP2)}, {s(S_WV)}, 1"); e(f"s_lshl_b32 {s(S_TMP2)}, {s(S_TMP2)}, 4")
        e(f"s_add_u32 {s(S_N0)}, {s(S_TMP)}, {s(S_TMP2)}")
        e("v_lshrrev_b32 v2, 5, v0")
        e(f"v_lshl_add_u32 v5, v2, 3, {s(S_N0)}")
        e("v_lshl_add_u32 v20, v5, 1, v4")
        self.srd(SRD_T, S_OUT, size=2048 * 1280)
        self.frag_addr_w128(VW, 1024, 0)
        e(f"s_lshr_b32 {s(S_TMP)}, {s(S_WV)}, 1")
        e(f"s_lshl_b32 {s(S_TMP2)}, {s(S_TMP)}, 11")
        e(f"v_add_u32 {v(VW)}, {s(S_TMP2)}, {v(VW)}")
        e(f"s_mul_i32 {s(S_TMP)}, {s(S_TMP)}, 3072")
        e(f"s_add_u32 {s(S_TMP)}, {s(S_TMP)}, 16384")
        e(f"v_lshl_add_u32 {v(VB)}, v0, 4, {s(S_TMP)}")
        for i in range(0, 48, 2): e(f"v_mov_b64 {v(ACC+i,2)}, 0")
        self.bar("BP5a")
        self.stamp("C5go")
        self.gemm96_loop("B5", 12, SL, 4, 0, 0, 2048, VW, VB, ACC, FA_, FB_, wres=False)
        self.stamp("C5loop")
        sv = list(self.bars["C"])
        self.pair_reduce(ACC, 0, RED)
        self.bars["C"] = sv + ["BR5"]
        for tt in range(3):
            for q in range(4):
                x = HR + 4 * tt + q; d = RED + 8 * tt + 2 * q
                e(f"v_lshlrev_b32 v2, 16, {v(x)}")
                e(f"v_and_b32 v3, 0xffff0000, {v(x)}")
                e(f"v_add_f32 {v(d)}, {v(d)}, v2")
                e(f"v_add_f32 {v(d+1)}, {v(d+1)}, v3")
                e(f"v_cvt_pk_bf16_f32 {v(24+4*tt+q)}, {v(d)}, {v(d+1)}")
            e(f"v_permlane32_swap_b32 {v(24+4*tt)}, {v(24+4*tt+2)}")
            e(f"v_permlane32_swap_b32 {v(24+4*tt+1)}, {v(24+4*tt+3)}")
            if tt == 2:
                Ls = self.L("L_c5s")
                e(f"s_cmp_eq_u32 {s(S_R)}, 2"); e(f"s_cbranch_scc1 {Ls}")
            e(f"s_mov_b32 {s(S_TMP)}, {tt*32*1280}")
            e(f"buffer_store_dwordx4 {v(24+4*tt,4)}, v20, {s(SRD_T,4)}, {s(S_TMP)} offen")
            if tt == 2: self.lab(Ls)
        self.stamp("C5end")
        e("s_branch L_FIN")

    def colsum_role(self):
        e = self.e
        self.role = "CS"
        self.lab("L_COLSUM")
        e("s_waitcnt lgkmcnt(0)")
        self.srd(SRD_WS, S_WS, size=WS_SIZE)
        e(f"s_getreg_b32 {s(S_XCC)}, hwreg(HW_REG_XCC_ID, 0, 4)")
        e(f"s_lshl_b32 {s(S_T)}, {s(S_G)}, 1")
        e(f"s_add_u32 {s(S_T)}, {s(S_T)}, {s(S_I)}")
        e(f"s_sub_u32 {s(S_T)}, {s(S_T)}, 30")
        Lw = self.L("L_w")
        e(f"s_cmp_lg_u32 {s(S_WV)}, 6")
        e(f"s_cbranch_scc1 {Lw}")
        self.clear_flags()
        e("s_waitcnt vmcnt(0)")
        if not (self.exp & 4): self.handshake_store()
        self.lab(Lw)
        def colsum(wptr, rowbytes, ntiles, wsoff, total, flagval):
            Lskip = self.L("L_cs_skip")
            e(f"s_cmp_ge_u32 {s(S_T)}, {ntiles}")
            e(f"s_cbranch_scc1 {Lskip}")
            e(f"s_lshl_b32 {s(S_TMP)}, {s(S_T)}, 8")
            self.srd(SRD_W, wptr, S_TMP, total)
            e("v_lshrrev_b32 v1, 4, v0")
            e(f"s_lshl_b32 {s(S_TMP)}, {s(S_WV)}, 2")
            e(f"v_add_u32 v1, {s(S_TMP)}, v1")
            e(f"s_mov_b32 {s(S_TMP)}, {rowbytes}")
            e(f"v_mul_lo_u32 v2, v1, {s(S_TMP)}")
            e("v_and_b32 v3, 15, v0")
            e("v_lshl_add_u32 v2, v3, 4, v2")
            for i in range(8): e(f"v_mov_b32 {v(8+i)}, 0")
            e(f"s_mov_b32 {s(S_KW)}, 0")
            NB = 20
            for b in range(NB):
                e(f"buffer_load_dwordx4 {v(32+4*b,4)}, v2, {s(SRD_W,4)}, {s(S_KW)} offen")
                e(f"s_add_u32 {s(S_KW)}, {s(S_KW)}, {32*rowbytes}")
            for b in range(NB):
                if b % 4 == 0: e(f"s_waitcnt vmcnt({NB-4-b})")
                for q in range(4):
                    e(f"v_lshlrev_b32 v4, 16, {v(32+4*b+q)}")
                    e(f"v_and_b32 v5, 0xffff0000, {v(32+4*b+q)}")
                    e(f"v_add_f32 {v(8+2*q)}, {v(8+2*q)}, v4")
                    e(f"v_add_f32 {v(8+2*q+1)}, {v(8+2*q+1)}, v5")
            e("v_lshlrev_b32 v4, 9, v1")
            e("v_lshl_add_u32 v4, v3, 5, v4")
            e("ds_write_b128 v4, v[8:11]")
            e("ds_write_b128 v4, v[12:15] offset:16")
            e("s_waitcnt lgkmcnt(0)")
            e("s_barrier")
            Lw = self.L("L_w")
            e(f"s_cmp_ge_u32 {s(S_WV)}, 2")
            e(f"s_cbranch_scc1 {Lw}")
            e(f"s_lshl_b32 {s(S_TMP)}, {s(S_WV)}, 6")
            e(f"v_add_u32 v1, {s(S_TMP)}, v0")
            e("v_lshlrev_b32 v2, 2, v1")
            for k in range(32):
                e(f"ds_read_b32 {v(32+k)}, v2 offset:{512*k}")
            e("s_waitcnt lgkmcnt(0)")
            for k in range(1, 32):
                e(f"v_add_f32 v32, v32, {v(32+k)}")
            e(f"s_lshl_b32 {s(S_TMP)}, {s(S_T)}, 9")
            e(f"s_add_u32 {s(S_TMP)}, {s(S_TMP)}, {wsoff}")
            e(f"v_add_u32 v2, {s(S_TMP)}, v2")
            e(f"buffer_store_dword v32, v2, {s(SRD_WS,4)}, 0 offen sc1")
            e("s_waitcnt vmcnt(0)")
            self.lab(Lw)
            e("s_barrier")
            self.lab(Lskip)
            Lw = self.L("L_w")
            e(f"s_cmp_lg_u32 {s(S_WV)}, 6")
            e(f"s_cbranch_scc1 {Lw}")
            self.set_fa(flagval)
            self.lab(Lw)
        colsum(S_WQKV, 3840, 15, WS_CSQ, 640 * 3840, 1)
        colsum(S_W1, 3072, 12, WS_CS1, 640 * 3072, 2)
        Lw = self.L("L_w")
        e(f"s_cmp_lg_u32 {s(S_WV)}, 6")
        e(f"s_cbranch_scc1 {Lw}")
        self.s_hs_issue(first=True)
        self.s_hs_verify()
        self.s_hs_all()
        self.lab(Lw)
        e("s_branch L_P2")

    def finish(self):
        e = self.e
        self.lab("L_FIN")
        if self.prof:
            e("s_memtime s[98:99]")
            e("s_waitcnt lgkmcnt(0)")
            e("v_writelane_b32 v255, s98, 63")
            e("s_memrealtime s[98:99]")
            e("s_waitcnt lgkmcnt(0)")
            e("v_writelane_b32 v255, s98, 62")
            e(f"s_lshl_b32 {s(S_TMP)}, s2, 11")
            e(f"s_lshl_b32 {s(S_TMP2)}, {s(S_WV)}, 8")
            e(f"s_add_u32 {s(S_TMP)}, {s(S_TMP)}, {s(S_TMP2)}")
            e(f"s_add_u32 {s(S_TMP)}, {s(S_TMP)}, {WS_PROF}")
            e("v_mbcnt_lo_u32_b32 v1, -1, 0")
            e("v_mbcnt_hi_u32_b32 v1, -1, v1")
            e("v_lshlrev_b32 v1, 2, v1")
            e(f"buffer_store_dword v255, v1, {s(SRD_WS,4)}, {s(S_TMP)} offen")
            if self.itphase:
                for q in range(4):
                    e(f"s_add_u32 {s(S_TMP)}, {s(S_TMP)}, {0x80000}")
                    e(f"buffer_store_dword v{250+q}, v1, {s(SRD_WS,4)}, {s(S_TMP)} offen")
        self.lab("L_END")
        e("s_endpgm")

    def build(self):
        self.entry()
        self.p1_loader()
        self.p1_sync()
        self.p1_aux()
        self.p1_compute()
        self.colsum_role()
        self.phase2()
        self.bars_p1 = {r: list(self.bars[r]) for r in ("C", "L", "S", "X")}
        self.phase3()
        self.phase4()
        self.phase5()
        self.finish()
        def norm(lst):
            out = []
            for b in lst:
                if out and out[-1] == b and b.endswith("loop"): continue
                out.append(b)
            return out
        ref = norm(self.bars["C"])
        for r in ("L", "S", "X"):
            assert norm(self.bars[r]) == ref, (r, norm(self.bars[r]), ref)
        body = self.A.finalize()
        hdr = open("cdna_kernels/" + NAME + ".s.ref").read().split("; Override")[0]
        out = hdr + "; @launch grid=(256,1,1) block=(512,1,1) lds=163840\n"
        out += '.amdgcn_target "amdgcn-amd-amdhsa--gfx950"\n.text\n'
        k = NAME + "_kernel"
        out += f".globl {k}\n.p2align 8\n.type {k},@function\n{k}:\n"
        out += body
        out += f""".section .rodata,"a"
.p2align 6
.amdhsa_kernel {k}
  .amdhsa_next_free_vgpr 256
  .amdhsa_next_free_sgpr 102
  .amdhsa_accum_offset 256
  .amdhsa_group_segment_fixed_size 0
  .amdhsa_kernarg_size 72
  .amdhsa_user_sgpr_count 2
  .amdhsa_user_sgpr_kernarg_segment_ptr 1
  .amdhsa_system_sgpr_workgroup_id_x 1
  .amdhsa_float_denorm_mode_32 3
.end_amdhsa_kernel
"""
        return out

if __name__ == "__main__":
    import argparse, subprocess
    ap = argparse.ArgumentParser()
    ap.add_argument("-o", default="k.s")
    ap.add_argument("--stop", type=int, default=99)
    ap.add_argument("--prof", action="store_true")
    ap.add_argument("--exp", type=int, default=0)
    ap.add_argument("--itphase", default=None)
    ap.add_argument("--h1it", type=int, default=5)
    a_ = ap.parse_args()
    g = Gen(stop=a_.stop, prof=a_.prof); g.exp = a_.exp; g.itphase = a_.itphase; g.h1it = a_.h1it
    txt = g.build()
    open(a_.o, "w").write(txt)
    print("nops inserted:", g.A.nops_inserted, "lines:", txt.count("\n"), "stamps:", g.stampnames)
    import json; json.dump(g.stampnames, open(a_.o + ".stamps.json", "w"))
    r = subprocess.run(["clang", "-x", "assembler", "-target", "amdgcn-amd-amdhsa", "-mcpu=gfx950", "-c", a_.o, "-o", "k.o"], capture_output=True, text=True)
    if r.returncode: print(r.stderr[:3000]); sys.exit(1)
    r = subprocess.run("llvm-objdump -h k.o | grep text", shell=True, capture_output=True, text=True); print(r.stdout.strip())
```

```python
import sys
from asmgen import *

NAME = "sequential_preLN__sliding_block__dense_activation_silu__prompt"

WS_FA    = 0x0; WS_FB = 0x8000; WS_ST1 = 0x10000; WS_CSQ = 0x14000; WS_CS1 = 0x16000; WS_ST2 = 0x20000
WS_QKV   = 0x100000; WS_O = WS_QKV; WS_H = WS_QKV + 80 * 32768; WS_H1 = WS_QKV; WS_PROF = 0x2000000
WS_SIZE  = 0x10000000
CH = 2048 * 16
NSLOT = 4
PL = 6208
LDS_K = 0; LDS_V = 5 * PL; LDS_ONES = 10 * PL
LDS_ST1 = 69632
LDS_CSQ = LDS_ST1 + 1024
LDS_CTRL = 71680
LDS_P3ST = 155648
LDS_P4ST = 161792
LDS_WO = 81920

S_X, S_WQKV, S_WO, S_BX, S_W1, S_W2, S_OUT, S_DBG, S_WS = 4, 6, 8, 10, 12, 14, 16, 18, 20
SRD_A, SRD_W, SRD_WS, SRD_T = 24, 28, 32, 36
S_G, S_I, S_WV, S_T0, S_N0, S_R, S_T = 40, 41, 42, 43, 44, 45, 46
S_KA, S_KW, S_SLOT, S_FILL, S_IT, S_TMP, S_TMP2, S_TMP3 = 47, 48, 49, 50, 51, 52, 53, 54
S_XCC, S_MODE = 55, 56
S_EX = 58; S_M = 60; S_C1024 = 62; S_TMP4 = 63
S_STAMP = 64
SH = 64

class Gen:
    def __init__(self, stop=99, prof=False):
        self.A = Asm(); self.stop = stop; self.prof = prof
        self.nstamp = {}; self.role = None; self.exp = 0; self.itphase = None; self.h1it = 5
        self.bars = {}
        self.stampnames = {}

    def e(self, t): self.A.e(t)
    def L(self, p="L"): return self.A.newlabel(p)
    def lab(self, n): self.A.label(n)

    def bar(self, name):
        self.bars.setdefault(self.role, []).append(name)
        self.e("s_barrier")

    def stamp(self, name=None):
        if not self.prof: return
        n = self.nstamp.get(self.role, {"P2": 16, "P3": 30, "P4": 34, "P5": 40}.get(self.role, 1))
        assert n < 60
        self.e("s_memtime s[98:99]")
        self.e("s_waitcnt lgkmcnt(0)")
        self.e(f"v_writelane_b32 v255, s98, {n}")
        self.stampnames.setdefault(self.role, []).append(name or f"s{n}")
        self.nstamp[self.role] = n + 1

    def itstamp(self, vreg, tag="B1"):
        if not self.prof or self.itphase != tag: return
        e = self.e
        e("s_memtime s[96:97]"); e("s_waitcnt lgkmcnt(0)"); e(f"s_mov_b32 m0, {s(S_IT)}"); e("s_nop 1"); e(f"v_writelane_b32 {v(vreg)}, s96, m0")

    def srd(self, q, ptr, off_sgpr=None, size=None, off_imm=0):
        e = self.e
        if off_sgpr is not None:
            e(f"s_add_u32 {s(q)}, {s(ptr)}, {s(off_sgpr)}")
            e(f"s_addc_u32 {s(q+1)}, {s(ptr+1)}, 0")
        else:
            e(f"s_mov_b32 {s(q)}, {s(ptr)}"); e(f"s_mov_b32 {s(q+1)}, {s(ptr+1)}")
        if off_imm:
            e(f"s_add_u32 {s(q)}, {s(q)}, {off_imm}"); e(f"s_addc_u32 {s(q+1)}, {s(q+1)}, 0")
        if off_sgpr is not None: e(f"s_sub_u32 {s(q+2)}, {size - off_imm}, {s(off_sgpr)}")
        else: e(f"s_mov_b32 {s(q+2)}, {size - off_imm}")
        e(f"s_mov_b32 {s(q+3)}, 0x20000")

    def p1_decode(self):
        e = self.e
        e(f"s_cmp_ge_u32 {s(S_I)}, 15")
        e(f"s_cselect_b32 {s(S_R)}, 1, 0")
        e(f"s_mul_i32 {s(S_TMP)}, {s(S_R)}, 15")
        e(f"s_sub_u32 {s(S_T)}, {s(S_I)}, {s(S_TMP)}")
        e(f"s_lshl_b32 {s(S_T0)}, {s(S_G)}, 8")
        e(f"s_lshl_b32 {s(S_TMP)}, {s(S_R)}, 7")
        e(f"s_add_u32 {s(S_T0)}, {s(S_T0)}, {s(S_TMP)}")
        e(f"s_lshl_b32 {s(S_N0)}, {s(S_T)}, 7")

    def clear_flags(self):
        e = self.e
        e("v_mov_b32 v2, 0")
        e(f"s_lshl_b32 {s(S_TMP)}, s2, 7")
        e(f"v_mov_b32 v3, {s(S_TMP)}")
        e(f"s_lshl_b32 {s(S_TMP)}, {s(S_G)}, 8")
        e(f"s_lshl_b32 {s(S_TMP2)}, {s(S_I)}, 2")
        e(f"s_add_u32 {s(S_TMP)}, {s(S_TMP)}, {s(S_TMP2)}")
        e(f"s_add_u32 {s(S_TMP)}, {s(S_TMP)}, {WS_FB}")
        e(f"v_mov_b32 v4, {s(S_TMP)}")
        e("v_cmp_eq_u32 vcc, 0, v0")
        e("v_cndmask_b32 v3, v4, v3, vcc")
        e("s_mov_b64 exec, 3")
        e(f"buffer_store_dword v2, v3, {s(SRD_WS,4)}, 0 offen sc1")
        e("s_mov_b64 exec, -1")

    def handshake_store(self):
        e = self.e
        e(f"s_lshl_b32 {s(S_TMP)}, {s(S_G)}, 5")
        e(f"s_add_u32 {s(S_TMP)}, {s(S_TMP)}, {s(S_I)}")
        e(f"s_and_b32 {s(S_TMP2)}, {s(S_TMP)}, 3")
        e(f"s_lshl_b32 {s(S_TMP2)}, {s(S_TMP2)}, 3")
        e(f"s_and_b32 {s(S_TMP)}, {s(S_TMP)}, 0xfc")
        e(f"s_or_b32 {s(S_TMP4)}, {s(S_XCC)}, 0x80")
        e(f"s_lshl_b32 {s(S_TMP4)}, {s(S_TMP4)}, {s(S_TMP2)}")
        e(f"s_atomic_or {s(S_TMP4)}, {s(S_DBG,2)}, {s(S_TMP)}")

    def set_fa(self, val):
        e = self.e
        e(f"s_lshl_b32 {s(S_TMP)}, s2, 7")
        e(f"v_mov_b32 v3, {s(S_TMP)}")
        e(f"v_mov_b32 v2, {val}")
        e("s_mov_b64 exec, 1")
        e(f"buffer_store_dword v2, v3, {s(SRD_WS,4)}, 0 offen sc1")
        e("s_mov_b64 exec, -1")

    def poll(self, vaddr, vneed, vtmp, preloaded=False):
        e = self.e
        L = self.L("L_poll"); L2 = self.L("L_poll")
        if preloaded: e(f"s_branch {L2}")
        self.lab(L)
        e(f"buffer_load_dword {v(vtmp)}, {v(vaddr)}, {s(SRD_WS,4)}, 0 offen sc1")
        self.lab(L2)
        e("s_waitcnt vmcnt(0)")
        e(f"v_cmp_lt_u32 {s(S_M,2)}, {v(vtmp)}, {v(vneed)}")
        e(f"s_cmp_eq_u64 {s(S_M,2)}, 0")
        e(f"s_cbranch_scc0 {L}")

    def wait_handshake(self, vhs, preloaded=False):
        e = self.e
        L = self.L("L_hs"); L2 = self.L("L_hs")
        if preloaded: e(f"s_branch {L2}")
        self.lab(L)
        e("v_lshlrev_b32 v2, 2, v0")
        e(f"global_load_dword {v(vhs)}, v2, {s(S_DBG,2)} sc1")
        self.lab(L2)
        e("s_waitcnt vmcnt(0)")
        e(f"v_and_b32 v4, 0x80808080, {v(vhs)}")
        e("v_cmp_ne_u32 vcc, 0x80808080, v4")
        e("s_cmp_eq_u64 vcc, 0")
        e(f"s_cbranch_scc0 {L}")
        e(f"s_or_b32 {s(S_TMP)}, {s(S_XCC)}, 0x80")
        e(f"s_mul_i32 {s(S_TMP)}, {s(S_TMP)}, 0x01010101")
        e(f"v_cmp_ne_u32 {s(S_M,2)}, {s(S_TMP)}, {v(vhs)}")
        e(f"s_lshl_b32 {s(S_TMP)}, {s(S_G)}, 3")
        e(f"s_lshr_b64 {s(S_M,2)}, {s(S_M,2)}, {s(S_TMP)}")
        e(f"s_and_b32 {s(S_M)}, {s(S_M)}, 0xff")
        e(f"s_cselect_b32 {s(S_MODE)}, 0, 1")

    def entry(self):
        e = self.e
        self.role = "all"
        e("s_cmp_ge_u32 s2, 256")
        e("s_cbranch_scc1 L_END")
        if self.prof: e(f"s_memtime s[98:99]")
        e(f"s_load_dwordx16 s[4:19], s[0:1], 0")
        e(f"s_load_dwordx2 s[20:21], s[0:1], 64")
        e("v_lshrrev_b32 v1, 6, v0")
        e("v_and_b32 v0, 63, v0")
        e(f"s_and_b32 {s(S_G)}, s2, 7")
        e(f"v_readfirstlane_b32 {s(S_WV)}, v1")
        e(f"s_lshr_b32 {s(S_I)}, s2, 3")
        e(f"s_mov_b32 {s(S_C1024)}, 1024")
        if self.prof:
            e("s_waitcnt lgkmcnt(0)")
            e("v_writelane_b32 v255, s98, 0")
            e("s_memrealtime s[98:99]")
            e("s_waitcnt lgkmcnt(0)")
            e("v_writelane_b32 v255, s98, 61")
        e(f"s_cmp_ge_u32 {s(S_I)}, 30")
        e("s_cbranch_scc1 L_COLSUM")
        self.p1_decode()
        e(f"s_cmp_lt_u32 {s(S_WV)}, 4")
        e("s_cbranch_scc1 L_C1")
        e(f"s_cmp_eq_u32 {s(S_WV)}, 6")
        e("s_cbranch_scc1 L_S1")
        e(f"s_cmp_eq_u32 {s(S_WV)}, 7")
        e("s_cbranch_scc1 L_X1")

    def p1_loader(self):
        e = self.e
        self.role = "L"
        e("s_setprio 3")
        V = 8
        Lw = self.L("L_w5"); Lj = self.L("L_j")
        e(f"s_cmp_eq_u32 {s(S_WV)}, 5")
        e(f"s_cbranch_scc1 {Lw}")
        e("v_lshrrev_b32 v1, 3, v0")
        e("v_mul_u32_u24 v1, 1280, v1")
        e("v_lshrrev_b32 v2, 4, v0")
        e("v_and_b32 v3, 7, v0")
        e("v_xor_b32 v4, v3, v2")
        e("v_xor_b32 v5, 4, v4")
        e(f"v_lshl_add_u32 {v(V)}, v4, 4, v1")
        e(f"v_lshl_add_u32 {v(V+1)}, v5, 4, v1")
        e(f"v_add_u32 {v(V+1)}, 10240, {v(V+1)}")
        for q in range(2, 16):
            e(f"v_add_u32 {v(V+q)}, 20480, {v(V+q-2)}")
        e(f"s_mul_i32 {s(S_TMP)}, {s(S_T0)}, 1280")
        e(f"s_mov_b32 {s(S_KW)}, 128")
        e(f"s_mov_b32 {s(S_TMP3)}, 0")
        e("s_waitcnt lgkmcnt(0)")
        self.srd(SRD_A, S_X, S_TMP, 2048 * 1280)
        e(f"s_branch {Lj}")
        self.lab(Lw)
        e("v_lshrrev_b32 v2, 4, v0")
        e("v_mul_u32_u24 v1, 3840, v2")
        e("v_and_b32 v3, 15, v0")
        e("v_lshlrev_b32 v4, 2, v2")
        e("v_xor_b32 v3, v3, v4")
        e(f"v_lshl_add_u32 {v(V)}, v3, 4, v1")
        for q in range(1, 16):
            e(f"v_add_u32 {v(V+q)}, 15360, {v(V+q-1)}")
        e(f"s_lshl_b32 {s(S_TMP)}, {s(S_N0)}, 1")
        e(f"s_mov_b32 {s(S_KW)}, {64*3840}")
        e(f"s_mov_b32 {s(S_TMP3)}, 16384")
        e("s_waitcnt lgkmcnt(0)")
        self.srd(SRD_A, S_WQKV, S_TMP, 640 * 3840)
        self.lab(Lj)
        e(f"s_mov_b32 {s(S_KA)}, 0")
        def stage(m0init):
            e(m0init)
            for q in range(16):
                if q: e(f"s_add_u32 m0, m0, {s(S_C1024)}")
                e(f"buffer_load_dwordx4 {v(V+q)}, {s(SRD_A,4)}, {s(S_KA)} offen lds")
            e(f"s_add_u32 {s(S_KA)}, {s(S_KA)}, {s(S_KW)}")
        self.stamp()
        for st in range(2): stage(f"s_add_u32 m0, {s(S_TMP3)}, {st*32768}")
        self.bar("BA")
        self.srd(SRD_WS, S_WS, size=WS_SIZE)
        self.stamp()
        e("s_waitcnt vmcnt(16)")
        self.bar("B0")
        for st in range(2, 4): stage(f"s_add_u32 m0, {s(S_TMP3)}, {st*32768}")
        e(f"s_mov_b32 {s(S_IT)}, 0")
        e(f"s_mov_b32 {s(S_FILL)}, 0")
        self.lab("L_L1LOOP")
        La = self.L("L_a"); Lb = self.L("L_b"); Lt = self.L("L_t"); Ls = self.L("L_s")
        self.itstamp(250)
        e(f"s_cmp_eq_u32 {s(S_IT)}, 7"); e(f"s_cbranch_scc1 {La}")
        e(f"s_cmp_gt_u32 {s(S_IT)}, 7"); e(f"s_cbranch_scc1 {Lb}")
        e("s_waitcnt vmcnt(32)"); e(f"s_branch {Lt}")
        self.lab(La); e("s_waitcnt vmcnt(16)"); e(f"s_branch {Lt}")
        self.lab(Lb); e("s_waitcnt vmcnt(0)")
        self.lab(Lt)
        self.itstamp(251)
        self.bar("B1loop")
        self.itstamp(252)
        e(f"s_cmp_gt_u32 {s(S_IT)}, 5")
        e(f"s_cbranch_scc1 {Ls}")
        stage(f"s_add_u32 m0, {s(S_TMP3)}, {s(S_FILL)}")
        self.lab(Ls)
        self.itstamp(253)
        e(f"s_add_u32 {s(S_FILL)}, {s(S_FILL)}, 32768")
        e(f"s_and_b32 {s(S_FILL)}, {s(S_FILL)}, {NSLOT*32768-1}")
        e(f"s_add_u32 {s(S_IT)}, {s(S_IT)}, 1")
        e(f"s_cmp_lt_u32 {s(S_IT)}, 10")
        e("s_cbranch_scc1 L_L1LOOP")
        self.stamp("L1end")
        e("s_setprio 0")
        self.bar("BE1")
        e("s_branch L_P2")

    def p1_sync(self):
        e = self.e
        self.role = "S"
        self.lab("L_S1")
        e("s_waitcnt lgkmcnt(0)")
        self.srd(SRD_WS, S_WS, size=WS_SIZE)
        e(f"s_getreg_b32 {s(S_XCC)}, hwreg(HW_REG_XCC_ID, 0, 4)")
        self.clear_flags()
        self.stat_part(0)
        self.bar("BA")
        self.bar("B0")
        e("s_waitcnt vmcnt(0)")
        if not (self.exp & 4): self.handshake_store()
        self.stat_compute(0)
        e(f"s_mov_b32 {s(S_IT)}, 0")
        self.lab("L_S1LOOP")
        La = self.L(); Lb = self.L(); Lc = self.L(); Lx = self.L(); Ly = self.L(); Lp = self.L(); Lq = self.L(); Lr = self.L()
        e(f"s_cmp_eq_u32 {s(S_IT)}, 1"); e(f"s_cbranch_scc1 {La}")
        e(f"s_cmp_eq_u32 {s(S_IT)}, 5"); e(f"s_cbranch_scc1 {Lb}")
        e(f"s_cmp_eq_u32 {s(S_IT)}, 7"); e(f"s_cbranch_scc1 {Lc}")
        L8 = self.L(); L9 = self.L()
        e(f"s_cmp_eq_u32 {s(S_IT)}, 8"); e(f"s_cbranch_scc1 {L8}")
        e(f"s_cmp_eq_u32 {s(S_IT)}, 9"); e(f"s_cbranch_scc1 {L9}")
        e(f"s_branch {Lx}")
        self.lab(L8); self.s_hs_half_verify(0); self.s_hs_half_issue(1); e(f"s_branch {Lx}")
        self.lab(L9); self.s_hs_half_verify(1); e(f"s_branch {Lx}")
        self.lab(La); e("s_waitcnt vmcnt(0)"); e(f"s_branch {Lx}")
        self.lab(Lb)
        if not (self.exp & 12): self.s_hs_verify(); self.s_flags_issue()
        e(f"s_branch {Lx}")
        self.lab(Lc)
        if not (self.exp & 12): self.s_flags_verify()
        self.s_hs_half_issue(0)
        self.lab(Lx)
        self.bar("B1loop")
        e(f"s_cmp_eq_u32 {s(S_IT)}, 1"); e(f"s_cbranch_scc1 {Lp}")
        e(f"s_cmp_eq_u32 {s(S_IT)}, 3"); e(f"s_cbranch_scc1 {Lq}")
        e(f"s_branch {Ly}")
        self.lab(Lp)
        e(f"s_cmp_ge_u32 {s(S_T)}, 8"); e(f"s_cbranch_scc1 {Ly}")
        self.set_fa(1)
        e(f"s_branch {Ly}")
        self.lab(Lq)
        if not (self.exp & 12): self.s_hs_issue(first=True)
        self.lab(Ly)
        e(f"s_add_u32 {s(S_IT)}, {s(S_IT)}, 1")
        e(f"s_cmp_lt_u32 {s(S_IT)}, 10")
        e("s_cbranch_scc1 L_S1LOOP")
        self.bar("BE1")
        self.set_fa(2)
        e("s_branch L_P2")

    def s_hs_issue(self, first=False):
        e = self.e
        glc = "" if first else " glc"
        if not first: e("s_sleep 8")
        e(f"s_lshl_b32 {s(S_TMP)}, {s(S_G)}, 5")
        e(f"s_load_dwordx8 s[{SH}:{SH+7}], {s(S_DBG,2)}, {s(S_TMP)}{glc}")
        e(f"s_add_u32 {s(S_TMP)}, {s(S_G)}, 7")
        e(f"s_and_b32 {s(S_TMP)}, {s(S_TMP)}, 7")
        e(f"s_lshl_b32 {s(S_TMP)}, {s(S_TMP)}, 5")
        e(f"s_load_dwordx8 s[{SH+8}:{SH+15}], {s(S_DBG,2)}, {s(S_TMP)}{glc}")
        e(f"s_lshr_b32 {s(S_TMP)}, {s(S_T)}, 1")
        e(f"s_lshl_b32 {s(S_TMP)}, {s(S_TMP)}, 5")
        e(f"s_add_u32 {s(S_TMP)}, {s(S_TMP)}, 28")
        e(f"s_load_dword s{SH+16}, {s(S_DBG,2)}, {s(S_TMP)}{glc}")

    def s_hs_verify(self):
        e = self.e
        L = self.L("L_hs"); L2 = self.L("L_hs")
        e(f"s_branch {L2}")
        self.lab(L)
        self.s_hs_issue()
        self.lab(L2)
        e(f"s_or_b32 {s(S_TMP3)}, {s(S_XCC)}, 0x80")
        e(f"s_mul_i32 {s(S_TMP3)}, {s(S_TMP3)}, 0x01010101")
        e("s_waitcnt lgkmcnt(0)")
        e(f"s_or_b32 {s(S_TMP)}, s{SH+16}, 0x00008080")
        for q in range(16): e(f"s_and_b32 {s(S_TMP)}, {s(S_TMP)}, s{SH+q}")
        e(f"s_and_b32 {s(S_TMP)}, {s(S_TMP)}, 0x80808080")
        e(f"s_cmp_eq_u32 {s(S_TMP)}, 0x80808080")
        e(f"s_cbranch_scc0 {L}")
        e(f"s_mov_b32 {s(S_TMP2)}, 0")
        for q in range(8):
            e(f"s_xor_b32 {s(S_TMP4)}, s{SH+q}, {s(S_TMP3)}")
            e(f"s_and_b32 {s(S_TMP4)}, {s(S_TMP4)}, 0xbfbfbfbf")
            e(f"s_or_b32 {s(S_TMP2)}, {s(S_TMP2)}, {s(S_TMP4)}")
        e(f"s_cmp_eq_u32 {s(S_TMP2)}, 0")
        e(f"s_cselect_b32 {s(S_MODE)}, 1, 0")

    def s_flags_issue(self, first=True):
        e = self.e
        glc = "" if first else " glc"
        if not first: e("s_sleep 8")
        e(f"s_mul_i32 {s(S_TMP)}, {s(S_R)}, 15")
        e(f"s_lshl_b32 {s(S_TMP)}, {s(S_TMP)}, 3")
        e(f"s_or_b32 {s(S_TMP)}, {s(S_TMP)}, {s(S_G)}")
        e(f"s_lshl_b32 {s(S_TMP)}, {s(S_TMP)}, 7")
        e(f"s_add_u32 {s(S_M)}, {s(S_WS)}, {s(S_TMP)}")
        e(f"s_addc_u32 {s(S_M+1)}, {s(S_WS+1)}, 0")
        for q in range(8):
            e(f"s_load_dword s{SH+q}, {s(S_M,2)}, {q*8*128}{glc}")
        e(f"s_and_b32 {s(S_TMP)}, {s(S_T)}, 1")
        e(f"s_add_u32 {s(S_TMP)}, {s(S_TMP)}, 30")
        e(f"s_lshl_b32 {s(S_TMP)}, {s(S_TMP)}, 3")
        e(f"s_lshr_b32 {s(S_TMP2)}, {s(S_T)}, 1")
        e(f"s_or_b32 {s(S_TMP)}, {s(S_TMP)}, {s(S_TMP2)}")
        e(f"s_lshl_b32 {s(S_TMP)}, {s(S_TMP)}, 7")
        e(f"s_load_dword s{SH+8}, {s(S_WS,2)}, {s(S_TMP)}{glc}")

    def s_flags_verify(self):
        e = self.e
        L = self.L("L_fl"); L2 = self.L("L_fl")
        e(f"s_branch {L2}")
        self.lab(L)
        self.s_flags_issue(first=False)
        self.lab(L2)
        e("s_waitcnt lgkmcnt(0)")
        e(f"s_mov_b32 {s(S_TMP)}, -1")
        for q in range(9): e(f"s_min_u32 {s(S_TMP)}, {s(S_TMP)}, s{SH+q}")
        e(f"s_cmp_ge_u32 {s(S_TMP)}, 1")
        e(f"s_cbranch_scc0 {L}")

    def stat_part(self, half):
        e = self.e
        Lns = self.L("L_nostat")
        self.srd(SRD_T, S_X, size=2048 * 1280)
        e(f"s_cmp_ge_u32 {s(S_T)}, 8")
        e(f"s_cbranch_scc1 {Lns}")
        e(f"s_lshl_b32 {s(S_TMP)}, {s(S_T)}, 4")
        e(f"s_add_u32 {s(S_TMP)}, {s(S_TMP)}, {s(S_T0)}")
        e(f"s_add_u32 {s(S_TMP)}, {s(S_TMP)}, {8*half}")
        e(f"v_lshrrev_b32 v1, 4, v0")
        e(f"v_add_u32 v7, {s(S_TMP)}, v1")
        e(f"v_mul_u32_u24 v2, 1280, v7")
        e(f"v_and_b32 v1, 15, v0")
        e(f"v_lshl_add_u32 v2, v1, 4, v2")
        e(f"v_add_u32 v5, {4*1280}, v2")
        for p in range(2):
            for m in range(5):
                e(f"buffer_load_dwordx4 {v(32+20*p+4*m,4)}, {'v2' if p == 0 else 'v5'}, {s(SRD_T,4)}, 0 offen offset:{256*m}")
        self.lab(Lns)

    def stat_compute(self, half):
        e = self.e
        Lns = self.L("L_nostat")
        e(f"s_cmp_ge_u32 {s(S_T)}, 8")
        e(f"s_cbranch_scc1 {Lns}")
        for p in range(2):
            a_, b_ = 72 + 2 * p, 73 + 2 * p
            e(f"v_mov_b32 {v(a_)}, 0"); e(f"v_mov_b32 {v(b_)}, 0")
        e("v_mov_b32 v4, 0x3f803f80")
        for i in range(20):
            for p in range(2):
                a_, b_ = 72 + 2 * p, 73 + 2 * p
                e(f"v_dot2_f32_bf16 {v(a_)}, {v(32+20*p+i)}, v4, {v(a_)}")
                e(f"v_dot2_f32_bf16 {v(b_)}, {v(32+20*p+i)}, {v(32+20*p+i)}, {v(b_)}")
        for sh in (8, 4, 2, 1):
            for r in range(72, 76):
                e(f"v_add_f32_dpp {v(r)}, {v(r)}, {v(r)} row_ror:{sh} row_mask:0xf bank_mask:0xf")
        e("v_lshlrev_b32 v7, 3, v7")
        e(f"v_add_u32 v7, {WS_ST1}, v7")
        e("v_and_b32 v6, 15, v0")
        e("v_cmp_eq_u32 vcc, 0, v6")
        for p in range(2):
            a_, b_ = 72 + 2 * p, 73 + 2 * p
            o = 76 + 2 * p
            e(f"v_mul_f32 {v(a_)}, 0x3acccccd, {v(a_)}")
            e(f"v_mul_f32 {v(b_)}, 0x3acccccd, {v(b_)}")
            e(f"v_fma_f32 {v(b_)}, -{v(a_)}, {v(a_)}, {v(b_)}")
            e(f"v_max_f32 {v(b_)}, 0, {v(b_)}")
            e(f"v_add_f32 {v(b_)}, 0x3727c5ac, {v(b_)}")
            e(f"v_rsq_f32 {v(o)}, {v(b_)}")
            e(f"v_mul_f32 {v(o+1)}, -1.0, {v(a_)}")
            e(f"v_mul_f32 {v(o+1)}, {v(o+1)}, {v(o)}")
        e(f"s_and_saveexec_b64 {s(S_EX,2)}, vcc")
        e(f"buffer_store_dwordx2 v[76:77], v7, {s(SRD_WS,4)}, 0 offen sc1")
        e(f"buffer_store_dwordx2 v[78:79], v7, {s(SRD_WS,4)}, 0 offen offset:32 sc1")
        e(f"s_mov_b64 exec, {s(S_EX,2)}")
        self.lab(Lns)

    def p1_aux(self):
        e = self.e
        self.role = "X"
        self.lab("L_X1")
        e("s_waitcnt lgkmcnt(0)")
        if not (self.exp & 1024):
            Lcp = self.L("L_cp")
            e(f"s_cmp_ge_u32 {s(S_I)}, 5"); e(f"s_cbranch_scc1 {Lcp}")
            e(f"s_getpc_b64 {s(S_M,2)}")
            here = self.L("L_pc"); self.lab(here)
            e(f"s_sub_u32 {s(S_M)}, {s(S_M)}, {here}-{NAME}_kernel")
            e(f"s_subb_u32 {s(S_M+1)}, {s(S_M+1)}, 0")
            e(f"s_lshl_b32 {s(S_TMP)}, {s(S_I)}, 13")
            e("v_lshlrev_b32 v2, 7, v0")
            e(f"v_add_u32 v2, {s(S_TMP)}, v2")
            e(f"v_min_u32 v2, L_CODE_END-{NAME}_kernel-4, v2")
            e(f"global_load_dword v101, v2, {s(S_M,2)}")
            self.lab(Lcp)
        if not (self.exp & 256):
            Ltl = self.L("L_tlb")
            e(f"s_cmp_ge_u32 {s(S_I)}, 2"); e(f"s_cbranch_scc1 {Ltl}")
            for k in range(1, 11):
                e(f"s_mov_b32 {s(S_TMP)}, {k*0x280000 if False else k*0x200000}")
                e(f"s_load_dword s100, {s(S_WS,2)}, {s(S_TMP)}")
            for ptr, offs in ((S_OUT, (0, 0x200000)), (S_WO, (0,)), (S_W1, (0, 0x1d0000)), (S_W2, (0, 0x1d0000)), (S_WQKV, (0x200000,)), (S_X, (0x200000,))):
                for o in offs:
                    e(f"s_mov_b32 {s(S_TMP)}, {o}")
                    e(f"s_load_dword s100, {s(ptr,2)}, {s(S_TMP)}")
            self.lab(Ltl)
        self.srd(SRD_WS, S_WS, size=WS_SIZE)
        self.stat_part(1)
        self.bar("BA")
        self.bar("B0")
        e("s_waitcnt vmcnt(0)")
        self.stat_compute(1)
        e(f"s_mov_b32 {s(S_IT)}, 0")
        self.lab("L_X1LOOP")
        Lx = self.L(); Ly = self.L(); Lz = self.L()
        L9 = self.L()
        e(f"s_cmp_eq_u32 {s(S_IT)}, 1"); e(f"s_cbranch_scc1 {Lz}")
        e(f"s_cmp_eq_u32 {s(S_IT)}, 9"); e(f"s_cbranch_scc1 {L9}")
        e(f"s_branch {Lx}")
        self.lab(L9)
        e("s_waitcnt vmcnt(0)")
        e(f"s_branch {Lx}")
        self.lab(Lz)
        e("s_waitcnt vmcnt(0)")
        self.lab(Lx)
        self.bar("B1loop")
        e(f"s_cmp_lg_u32 {s(S_IT)}, 7"); e(f"s_cbranch_scc1 {Ly}")
        e(f"s_lshl_b32 {s(S_TMP)}, {s(S_T0)}, 3")
        e(f"s_add_u32 {s(S_TMP)}, {s(S_TMP)}, {WS_ST1}")
        e("v_lshlrev_b32 v2, 4, v0")
        e(f"s_mov_b32 m0, {LDS_ST1}")
        e("s_nop 0")
        e(f"buffer_load_dwordx4 v2, {s(SRD_WS,4)}, {s(S_TMP)} offen sc1 lds")
        e(f"s_lshl_b32 {s(S_TMP)}, {s(S_N0)}, 2")
        e(f"s_add_u32 {s(S_TMP)}, {s(S_TMP)}, {WS_CSQ}")
        e(f"s_mov_b32 m0, {LDS_CSQ}")
        e("s_mov_b32 exec_hi, 0")
        e(f"buffer_load_dwordx4 v2, {s(SRD_WS,4)}, {s(S_TMP)} offen sc1 lds")
        e("s_mov_b64 exec, -1")
        self.lab(Ly)
        e(f"s_add_u32 {s(S_IT)}, {s(S_IT)}, 1")
        e(f"s_cmp_lt_u32 {s(S_IT)}, 10")
        e("s_cbranch_scc1 L_X1LOOP")
        self.bar("BE1")
        e("s_branch L_P2")

    def p1_compute(self):
        e = self.e
        self.role = "C"
        self.lab("L_C1")
        ACC = 64; FA_ = 128; FB_ = 144
        VB, VA = 16, 20; VBc, VAc = 24, 28
        STT = 56; CS = 160; VST = 60
        e("v_and_b32 v1, 31, v0")
        e("v_lshrrev_b32 v2, 5, v0")
        e("v_bfe_u32 v3, v0, 1, 3")
        e("v_xor_b32 v3, v3, v2")
        e("v_lshlrev_b32 v3, 4, v3")
        e(f"s_lshr_b32 {s(S_TMP)}, {s(S_WV)}, 1")
        e(f"s_lshl_b32 {s(S_TMP)}, {s(S_TMP)}, 13")
        e("v_lshl_add_u32 v3, v1, 7, v3")
        e(f"v_add_u32 {v(VB)}, {s(S_TMP)}, v3")
        for ks in range(1, 4):
            e(f"v_xor_b32 {v(VB+ks)}, {32*ks}, {v(VB)}")
        e("v_bfe_u32 v3, v0, 2, 2")
        e("v_lshl_add_u32 v4, v2, 3, v3")
        e("v_lshlrev_b32 v4, 8, v4")
        e("v_bfe_u32 v5, v0, 4, 1")
        e("v_lshlrev_b32 v5, 1, v5")
        e("v_bfe_u32 v6, v0, 1, 1")
        e("v_or_b32 v5, v5, v6")
        e(f"s_and_b32 {s(S_TMP)}, {s(S_WV)}, 1")
        e(f"s_lshl_b32 {s(S_TMP)}, {s(S_TMP)}, 3")
        e(f"v_or_b32 v5, {s(S_TMP)}, v5")
        e("v_lshlrev_b32 v6, 2, v3")
        e("v_xor_b32 v5, v5, v6")
        e("v_lshl_add_u32 v4, v5, 4, v4")
        e("v_and_b32 v6, 1, v0")
        e("v_lshl_add_u32 v4, v6, 3, v4")
        e(f"v_add_u32 {v(VA)}, 16384, v4")
        e(f"v_xor_b32 {v(VA+1)}, 64, {v(VA)}")
        for i in range(0, 64, 2):
            e(f"v_mov_b64 {v(ACC+i,2)}, 0")
        e(f"s_lshr_b32 {s(S_TMP)}, {s(S_WV)}, 1")
        e(f"s_lshl_b32 {s(S_TMP)}, {s(S_TMP)}, 6")
        e(f"s_add_u32 {s(S_TMP)}, {s(S_TMP)}, {s(S_T0)}")
        e("v_and_b32 v1, 31, v0")
        e(f"v_add_u32 v2, {s(S_TMP)}, v1")
        e(f"s_lshr_b32 {s(S_TMP4)}, {s(S_WV)}, 1")
        e(f"s_lshl_b32 {s(S_TMP4)}, {s(S_TMP4)}, 9")
        e(f"s_add_u32 {s(S_TMP4)}, {s(S_TMP4)}, {LDS_ST1}")
        e("v_lshlrev_b32 v61, 3, v1")
        e(f"v_add_u32 v61, {s(S_TMP4)}, v61")
        e(f"s_and_b32 {s(S_TMP2)}, {s(S_WV)}, 1")
        e(f"s_lshl_b32 {s(S_TMP2)}, {s(S_TMP2)}, 6")
        e(f"s_add_u32 {s(S_TMP2)}, {s(S_TMP2)}, {s(S_N0)}")
        e("v_lshrrev_b32 v4, 5, v0")
        e(f"v_lshlrev_b32 v62, 4, v4")
        e(f"s_and_b32 {s(S_TMP)}, {s(S_WV)}, 1")
        e(f"s_lshl_b32 {s(S_TMP)}, {s(S_TMP)}, 8")
        e(f"s_add_u32 {s(S_TMP)}, {s(S_TMP)}, {LDS_CSQ}")
        e(f"v_add_u32 v62, {s(S_TMP)}, v62")
        e(f"s_lshr_b32 {s(S_TMP2)}, {s(S_TMP2)}, 3")
        e(f"v_add_u32 v5, {s(S_TMP2)}, v4")
        e(f"v_lshlrev_b32 v5, 15, v5")
        e("v_lshl_add_u32 v5, v2, 4, v5")
        e(f"v_add_u32 {v(VST)}, {WS_QKV}, v5")
        def reads(ks, setn):
            fa = FA_ + 8 * setn; fb = FB_ + 8 * setn
            o = []
            for f in range(2):
                for u in range(2):
                    o.append(f"ds_read_b64_tr_b16 {v(fa+4*f+2*u,2)}, {v(VAc+f)} offset:{ks*4096+u*1024}")
            for tt in range(2):
                o.append(f"ds_read_b128 {v(fb+4*tt,4)}, {v(VBc+ks)} offset:{tt*4096}")
            return [o[0], o[1], o[4], o[5], o[2], o[3]]
        def mfmas(setn):
            fa = FA_ + 8 * setn; fb = FB_ + 8 * setn
            o = []
            for f, tt in ((0, 0), (0, 1), (1, 0), (1, 1)):
                d = ACC + 16 * (2 * f + tt)
                o.append(f"v_mfma_f32_32x32x16_bf16 {v(d,16)}, {v(fa+4*f,4)}, {v(fb+4*tt,4)}, {v(d,16)}")
            return o
        def set_slot():
            o = []
            for ks in range(4): o.append(f"v_add_u32 {v(VBc+ks)}, {s(S_SLOT)}, {v(VB+ks)}")
            for f in range(2): o.append(f"v_add_u32 {v(VAc+f)}, {s(S_SLOT)}, {v(VA+f)}")
            return o
        e(f"s_mov_b32 {s(S_SLOT)}, 0")
        e(f"s_mov_b32 {s(S_IT)}, 0")
        for t in set_slot(): e(t)
        e("s_waitcnt lgkmcnt(0)")
        self.bar("BA")
        if not (self.exp & 512):
            Lx = self.L("L_tx"); Ly = self.L("L_ty")
            e("v_lshlrev_b32 v2, 7, v0")
            e(f"s_cmp_ge_u32 {s(S_WV)}, 2"); e(f"s_cbranch_scc1 {Lx}")
            self.srd(SRD_T, S_WQKV, size=640 * 3840)
            e(f"s_mul_i32 {s(S_TMP)}, {s(S_G)}, 30"); e(f"s_add_u32 {s(S_TMP)}, {s(S_TMP)}, {s(S_I)}")
            e(f"s_mul_i32 {s(S_TMP)}, {s(S_TMP)}, {80*128}")
            e(f"s_mul_i32 {s(S_TMP2)}, {s(S_WV)}, {40*128}"); e(f"s_add_u32 {s(S_TMP)}, {s(S_TMP)}, {s(S_TMP2)}")
            e("s_mov_b32 exec_hi, 0xff")
            e(f"buffer_load_dword v250, v2, {s(SRD_T,4)}, {s(S_TMP)} offen")
            e("s_mov_b32 exec_hi, -1")
            e(f"s_branch {Ly}")
            self.lab(Lx)
            self.srd(SRD_T, S_X, size=2048 * 1280)
            e(f"s_mul_i32 {s(S_TMP)}, {s(S_G)}, {256*1280}")
            e(f"s_mul_i32 {s(S_TMP2)}, {s(S_I)}, {86*128}"); e(f"s_add_u32 {s(S_TMP)}, {s(S_TMP)}, {s(S_TMP2)}")
            e(f"s_and_b32 {s(S_TMP2)}, {s(S_WV)}, 1"); e(f"s_mul_i32 {s(S_TMP2)}, {s(S_TMP2)}, {43*128}"); e(f"s_add_u32 {s(S_TMP)}, {s(S_TMP)}, {s(S_TMP2)}")
            e("s_mov_b32 exec_hi, 0x7ff")
            e(f"buffer_load_dword v250, v2, {s(SRD_T,4)}, {s(S_TMP)} offen")
            e("s_mov_b32 exec_hi, -1")
            self.lab(Ly)
            Lz = self.L("L_tz")
            e(f"s_cmp_lg_u32 {s(S_WV)}, 3"); e(f"s_cbranch_scc1 {Lz}")
            self.srd(SRD_T, S_WO, size=640 * 1280)
            e(f"s_mul_i32 {s(S_TMP)}, {s(S_G)}, 30"); e(f"s_add_u32 {s(S_TMP)}, {s(S_TMP)}, {s(S_I)}"); e(f"s_mul_i32 {s(S_TMP)}, {s(S_TMP)}, {27*128}")
            e("s_mov_b32 exec_hi, 0")
            e(f"buffer_load_dword v251, v2, {s(SRD_T,4)}, {s(S_TMP)} offen")
            e("s_mov_b32 exec_hi, -1")
            self.lab(Lz)
        self.srd(SRD_WS, S_WS, size=WS_SIZE)
        self.stamp()
        self.bar("B0")
        self.stamp()
        for t in reads(0, 0): e(t)
        self.lab("L_C1LOOP")
        for ks in range(3):
            cur = ks & 1; nxt = cur ^ 1
            r = reads(ks + 1, nxt); m = mfmas(cur)
            e("s_waitcnt lgkmcnt(0)")
            e(m[0]); e(r[0]); e(r[1]); e(m[1]); e(r[2]); e(r[3]); e(m[2]); e(r[4]); e(r[5])
            if ks == 2:
                e(f"s_add_u32 {s(S_SLOT)}, {s(S_SLOT)}, 32768")
                e(f"s_cmp_eq_u32 {s(S_SLOT)}, {NSLOT*32768}")
                e(f"s_cselect_b32 {s(S_SLOT)}, 0, {s(S_SLOT)}")
            e(m[3])
            if ks == 2:
                for t in set_slot(): e(t)
        m = mfmas(1)
        r = reads(0, 0)
        e("s_waitcnt lgkmcnt(0)")
        self.itstamp(252)
        self.bar("B1loop")
        self.itstamp(253)
        e(m[0]); e(r[0]); e(r[1]); e(m[1]); e(r[2]); e(r[3]); e(m[2]); e(r[4]); e(r[5]); e(m[3])
        e(f"s_add_u32 {s(S_IT)}, {s(S_IT)}, 1")
        e(f"s_cmp_lt_u32 {s(S_IT)}, 10")
        e("s_cbranch_scc1 L_C1LOOP")
        self.stamp()
        e(f"s_cmp_lt_u32 {s(S_T)}, 5")
        e(f"s_cselect_b32 {s(S_TMP)}, 0x3ea52b48, 1.0")
        e(f"ds_read_b64 {v(STT,2)}, v61")
        e(f"ds_read_b64 {v(STT+2,2)}, v61 offset:256")
        for f in range(2):
            for j in range(4):
                e(f"ds_read_b128 {v(CS+16*f+4*j,4)}, v62 offset:{(32*f+8*j)*4}")
        e("s_waitcnt lgkmcnt(0)")
        for tt in range(2):
            e(f"v_mul_f32 {v(STT+2*tt)}, {s(S_TMP)}, {v(STT+2*tt)}")
            e(f"v_mul_f32 {v(STT+2*tt+1)}, {s(S_TMP)}, {v(STT+2*tt+1)}")
        PK = 192
        nst = 0
        for f in range(2):
            for tt in range(2):
                d = ACC + 16 * (2 * f + tt)
                ab = STT + 2 * tt
                for i in range(0, 16, 2):
                    e(f"v_pk_mul_f32 {v(d+i,2)}, {v(d+i,2)}, {v(ab,2)} op_sel_hi:[1,0]")
                for i in range(0, 16, 2):
                    e(f"v_pk_fma_f32 {v(d+i,2)}, {v(CS+16*f+i,2)}, {v(ab,2)}, {v(d+i,2)} op_sel:[0,1,0] op_sel_hi:[1,1,1]")
                pk = PK + 8 * (nst & 1)
                for jj in range(2):
                    p = pk + 4 * jj
                    for q in range(4):
                        e(f"v_cvt_pk_bf16_f32 {v(p+q)}, {v(d+8*jj+2*q)}, {v(d+8*jj+2*q+1)}")
                    e(f"v_permlane32_swap_b32 {v(p)}, {v(p+2)}")
                    e(f"v_permlane32_swap_b32 {v(p+1)}, {v(p+3)}")
                    off = (4 * f + 2 * jj) * CH + tt * 512
                    hi, lo = off >> 12, off & 4095
                    e(f"s_mov_b32 {s(S_TMP)}, {hi << 12}")
                    e(f"buffer_store_dwordx4 {v(p,4)}, {v(VST)}, {s(SRD_WS,4)}, {s(S_TMP)} offen offset:{lo} sc1")
                nst += 1
        self.stamp("st_issued")
        e("s_waitcnt vmcnt(0)")
        self.stamp("st_drained")
        self.bar("BE1")
        e("s_branch L_P2")


    def store_mode(self, instr_list):
        e = self.e
        La = self.L("L_sm"); Lb = self.L("L_sm")
        e(f"s_cmp_eq_u32 {s(S_MODE)}, 1")
        e(f"s_cbranch_scc1 {La}")
        for t in instr_list: e(t if t.startswith("s_") or t.startswith("v_") else t + " sc1")
        e(f"s_branch {Lb}")
        self.lab(La)
        for t in instr_list: e(t)
        self.lab(Lb)

    def set_fb(self, val):
        e = self.e
        e(f"s_lshl_b32 {s(S_TMP)}, {s(S_G)}, 8")
        e(f"s_lshl_b32 {s(S_TMP2)}, {s(S_I)}, 2")
        e(f"s_add_u32 {s(S_TMP)}, {s(S_TMP)}, {s(S_TMP2)}")
        e(f"s_add_u32 {s(S_TMP)}, {s(S_TMP)}, {WS_FB}")
        e(f"v_mov_b32 v2, {val}")
        e(f"v_mov_b32 v3, 0")
        e("s_mov_b64 exec, 1")
        self.store_mode([f"buffer_store_dword v2, v3, {s(SRD_WS,4)}, {s(S_TMP)} offen"])
        e("s_mov_b64 exec, -1")

    def phase2(self):
        e = self.e
        self.role = "P2"
        S_P, S_R2, S_TQ, S_QT, S_HD = S_T, S_R, S_T0, S_KA, S_KW
        S_MK = 66
        VQ0, VQ1 = 8, 12
        KF = (16, 24); VF = (32, 40); OA = 48; BM = 64
        VK0, VK1, VV = 72, 73, 74
        T = [96 + 16 * j for j in range(9)]
        self.lab("L_P2")
        self.stamp("P2in")
        e(f"s_and_b32 {s(S_P)}, {s(S_I)}, 15")
        e(f"s_lshr_b32 {s(S_R2)}, {s(S_I)}, 4")
        e(f"s_lshl_b32 {s(S_TQ)}, {s(S_G)}, 8")
        e(f"s_lshl_b32 {s(S_TMP)}, {s(S_R2)}, 7")
        e(f"s_add_u32 {s(S_TQ)}, {s(S_TQ)}, {s(S_TMP)}")
        e(f"s_and_b32 {s(S_QT)}, {s(S_WV)}, 3")
        e(f"s_lshr_b32 {s(S_HD)}, {s(S_WV)}, 2")
        Lno = self.L("L_no")
        e(f"s_cmp_ge_u32 {s(S_WV)}, 6")
        e(f"s_cbranch_scc1 {Lno}")
        e(f"s_lshl_b32 {s(S_TMP)}, {s(S_WV)}, 6"); e(f"s_add_u32 {s(S_TMP)}, {s(S_TMP)}, {s(S_TQ)}")
        e(f"s_cmp_lt_u32 {s(S_TMP)}, 256"); e(f"s_cselect_b32 {s(S_TMP)}, 0, 0x3f80")
        e(f"v_mov_b32 v2, {s(S_TMP)}"); e("v_mov_b32 v3, 0"); e(f"v_mov_b32 v4, {s(S_TMP)}"); e("v_mov_b32 v5, 0")
        e(f"s_lshl_b32 {s(S_TMP)}, {s(S_WV)}, 10")
        e(f"s_add_u32 {s(S_TMP)}, {s(S_TMP)}, {LDS_ONES}")
        e(f"v_lshl_add_u32 v6, v0, 4, {s(S_TMP)}")
        e("ds_write_b128 v6, v[2:5]")
        self.lab(Lno)
        e("v_and_b32 v1, 31, v0")
        e("v_lshrrev_b32 v2, 5, v0")
        e(f"s_lshl_b32 {s(S_TMP)}, {s(S_QT)}, 5")
        e(f"v_add_u32 v3, {s(S_TMP)}, v1")
        e("v_lshlrev_b32 v3, 4, v3")
        e(f"s_mul_i32 {s(S_TMP)}, {s(S_HD)}, 3")
        e(f"v_add_u32 v4, {s(S_TMP)}, v2")
        e(f"v_mul_u32_u24 v4, {PL}, v4")
        e(f"v_add_u32 {v(VK0)}, v3, v4")
        e(f"v_add_u32 {v(VK1)}, {LDS_K + 2*PL}, v3")
        e("v_bfe_u32 v4, v0, 4, 1")
        e("v_lshlrev_b32 v4, 2, v4")
        e("v_and_b32 v5, 3, v0")
        e("v_or_b32 v4, v4, v5")
        e(f"s_mul_i32 {s(S_TMP)}, {s(S_HD)}, 5")
        e(f"v_add_u32 v5, {s(S_TMP)}, v4")
        e("v_lshrrev_b32 v6, 1, v5")
        e(f"v_mul_u32_u24 v6, {PL}, v6")
        e("v_and_b32 v5, 1, v5")
        e("v_lshl_add_u32 v6, v5, 3, v6")
        e(f"v_add_u32 v6, {LDS_V}, v6")
        e("v_cmp_gt_u32 vcc, 5, v4")
        e(f"v_mov_b32 v7, {LDS_ONES}")
        e("v_cndmask_b32 v6, v7, v6, vcc")
        e("v_bfe_u32 v5, v0, 2, 2")
        e("v_lshl_add_u32 v5, v2, 2, v5")
        e(f"s_lshl_b32 {s(S_TMP)}, {s(S_QT)}, 5")
        e(f"v_add_u32 v5, {s(S_TMP)}, v5")
        e(f"v_lshl_add_u32 {v(VV)}, v5, 4, v6")
        e(f"s_lshl_b32 {s(S_TMP)}, {s(S_QT)}, 5")
        e(f"s_add_u32 {s(S_TMP)}, {s(S_TMP)}, {s(S_TQ)}")
        e(f"v_add_u32 v3, {s(S_TMP)}, v1")
        e("v_lshlrev_b32 v3, 4, v3")
        e(f"s_mul_i32 {s(S_TMP)}, {s(S_P)}, 5")
        e(f"s_mul_i32 {s(S_TMP2)}, {s(S_HD)}, 3")
        e(f"s_add_u32 {s(S_TMP2)}, {s(S_TMP2)}, {s(S_TMP)}")
        e(f"v_add_u32 v4, {s(S_TMP2)}, v2")
        e("v_lshlrev_b32 v4, 15, v4")
        e("v_add_u32 v75, v3, v4")
        e(f"v_add_u32 v75, {WS_QKV}, v75")
        e(f"s_add_u32 {s(S_TMP)}, {s(S_TMP)}, 2")
        e(f"s_lshl_b32 {s(S_TMP)}, {s(S_TMP)}, 15")
        e(f"s_add_u32 {s(S_TMP)}, {s(S_TMP)}, {WS_QKV}")
        e(f"v_add_u32 v76, {s(S_TMP)}, v3")
        e(f"s_mul_i32 {s(S_TMP)}, {s(S_P)}, 5")
        e(f"s_lshl_b32 {s(S_TMP2)}, {s(S_HD)}, 1")
        e(f"s_add_u32 {s(S_TMP2)}, {s(S_TMP2)}, {s(S_TMP)}")
        e(f"v_add_u32 v4, {s(S_TMP2)}, v2")
        e("v_lshlrev_b32 v4, 15, v4")
        e("v_add_u32 v77, v3, v4")
        e(f"v_add_u32 v77, {WS_O}, v77")
        e(f"s_add_u32 {s(S_TMP)}, {s(S_TMP)}, 4")
        e(f"s_lshl_b32 {s(S_TMP)}, {s(S_TMP)}, 15")
        e(f"s_lshl_b32 {s(S_TMP2)}, {s(S_HD)}, 3")
        e(f"s_add_u32 {s(S_TMP)}, {s(S_TMP)}, {s(S_TMP2)}")
        e(f"s_add_u32 {s(S_TMP)}, {s(S_TMP)}, {WS_O}")
        e(f"v_add_u32 v78, {s(S_TMP)}, v3")
        e(f"v_lshl_add_u32 v2, v0, 3, {s(S_WV)}")
        e("v_cmp_le_u32 vcc, 30, v2")
        e("v_cndmask_b32 v3, 0, 1, vcc")
        e("v_mul_u32_u24 v4, 30, v3"); e("v_sub_u32 v4, v2, v4")
        e("v_mul_u32_u24 v5, 43, v4"); e("v_lshrrev_b32 v5, 8, v5")
        e("v_mul_u32_u24 v6, 6, v5"); e("v_sub_u32 v6, v4, v6")
        e("v_mul_u32_u24 v7, 5, v3"); e("v_add_u32 v7, v7, v5")
        e(f"v_mul_u32_u24 v7, {PL}, v7"); e("v_lshl_add_u32 v91, v6, 10, v7")
        e("v_add_u32 v7, 1, v3"); e("v_mul_u32_u24 v7, 80, v7"); e("v_add_u32 v7, v7, v5")
        e(f"s_mul_i32 {s(S_TMP)}, {s(S_P)}, 5"); e(f"v_add_u32 v7, {s(S_TMP)}, v7")
        e("v_lshlrev_b32 v7, 15, v7")
        e(f"s_sub_u32 {s(S_TMP)}, {s(S_TQ)}, 256")
        e(f"v_lshl_add_u32 v6, v6, 6, {s(S_TMP)}")
        e("v_lshl_add_u32 v7, v6, 4, v7"); e(f"v_add_u32 v7, {WS_QKV}, v7")
        e("v_cmp_gt_i32 vcc, 0, v6")
        e("v_mov_b32 v5, 0x7f000000")
        e("v_cndmask_b32 v90, v7, v5, vcc")
        for n in range(8):
            e(f"v_readlane_b32 s{66+n}, v90, {n}")
            e(f"v_readlane_b32 s{74+n}, v91, {n}")
        Lns = self.L("L_ns"); Lgo = self.L("L_go")
        e(f"s_cmp_lg_u32 {s(S_WV)}, 6")
        e(f"s_cbranch_scc1 {Lns}")
        e("v_mul_u32_u24 v2, 43, v0")
        e("v_lshrrev_b32 v2, 8, v2")
        e("v_mul_u32_u24 v3, 6, v2")
        e("v_sub_u32 v3, v0, v3")
        e("v_lshrrev_b32 v4, 1, v3")
        e("v_and_b32 v3, 1, v3")
        e(f"s_lshl_b32 {s(S_TMP)}, {s(S_G)}, 1")
        e(f"s_add_u32 {s(S_TMP)}, {s(S_TMP)}, {s(S_R2)}")
        e(f"v_sub_u32 v5, {s(S_TMP)}, v4")
        e(f"s_mul_i32 {s(S_TMP)}, {s(S_P)}, 5")
        e(f"v_lshl_add_u32 v6, v3, 2, {s(S_TMP)}")
        e("v_lshrrev_b32 v6, 4, v6")
        e("v_mul_u32_u24 v7, 5, v2")
        e("v_add_u32 v6, v6, v7")
        e("v_and_b32 v7, 1, v5")
        e("v_mul_u32_u24 v7, 15, v7")
        e("v_add_u32 v6, v6, v7")
        e("v_lshlrev_b32 v6, 3, v6")
        e("v_ashrrev_i32 v7, 1, v5")
        e("v_add_u32 v6, v6, v7")
        e("v_lshlrev_b32 v8, 7, v6")
        e("v_cmp_gt_u32 vcc, 18, v0")
        e(f"v_cmp_le_i32 {s(S_M,2)}, 0, v5")
        e(f"s_and_b64 vcc, vcc, {s(S_M,2)}")
        e(f"v_cmp_eq_u32 {s(S_M,2)}, 0, v2")
        e(f"v_cmp_lt_u32 {s(S_EX,2)}, 0, v4")
        e(f"s_and_b64 {s(S_M,2)}, {s(S_M,2)}, {s(S_EX,2)}")
        e(f"s_andn2_b64 vcc, vcc, {s(S_M,2)}")
        e("v_readlane_b32 s101, v8, 0")
        e("s_nop 3")
        e("v_mov_b32 v9, s101")
        e("v_cndmask_b32 v8, v9, v8, vcc")
        if self.exp & 4096:
            lanes = [0, 1] + list(range(6, 18))
            dst = list(range(24, 32)) + list(range(36, 40)) + [100, 101]
            for k, ln in enumerate(lanes): e(f"v_readlane_b32 s{82+k}, v8, {ln}")
            Lp = self.L("L_sp")
            self.lab(Lp)
            for k in range(14): e(f"s_load_dword s{dst[k]}, {s(S_WS,2)}, s{82+k} glc")
            e("s_waitcnt lgkmcnt(0)")
            e(f"s_mov_b32 {s(S_TMP)}, -1")
            for k in range(14): e(f"s_min_u32 {s(S_TMP)}, {s(S_TMP)}, s{dst[k]}")
            e(f"s_cmp_ge_u32 {s(S_TMP)}, 2")
            e(f"s_cbranch_scc0 {Lp}")
        else:
            e("v_mov_b32 v9, 2")
            self.poll(8, 9, 10)
        e(f"v_mov_b32 v2, {s(S_MODE)}")
        e(f"v_mov_b32 v3, {LDS_CTRL}")
        e("ds_write_b32 v3, v2")
        e(f"s_branch {Lgo}")
        self.lab(Lns)
        self.wo_issue()
        self.lab(Lgo)
        e("s_waitcnt lgkmcnt(0)")
        self.bar("BS1")
        self.stamp("polled")
        e(f"v_mov_b32 v3, {LDS_CTRL}")
        e("ds_read_b32 v2, v3")
        e(f"buffer_load_dwordx4 {v(VQ0,4)}, v75, {s(SRD_WS,4)}, 0 offen sc1")
        e(f"buffer_load_dwordx4 {v(VQ1,4)}, v76, {s(SRD_WS,4)}, 0 offen sc1")
        e("v_lshlrev_b32 v4, 4, v0")
        for n in range(8):
            Lk = self.L("L_kv")
            if n == 7:
                e(f"s_cmp_ge_u32 {s(S_WV)}, 4"); e(f"s_cbranch_scc1 {Lk}")
            e(f"s_mov_b32 m0, s{74+n}")
            e(f"buffer_load_dwordx4 v4, {s(SRD_WS,4)}, s{66+n} offen sc1 lds")
            if n == 7: self.lab(Lk)
        for r in range(16):
            k0 = 8 * (r >> 2) + (r & 3)
            lo = (0xffffffff << k0) & 0xffffffff
            hi = (0xffffffff << (k0 + 4)) & 0xffffffff
            e(f"s_mov_b32 s{S_MK+2*r}, {lo:#x}")
            e(f"s_mov_b32 s{S_MK+2*r+1}, {hi:#x}")
        e("v_mov_b32 v6, 0xffff"); e("v_mov_b32 v7, 0xffff0000")
        for q in range(8):
            e(f"v_cndmask_b32 v79, 0, v6, {s(S_MK+4*q,2)}")
            e(f"v_cndmask_b32 v80, 0, v7, {s(S_MK+4*q+2,2)}")
            e(f"v_or_b32 {v(BM+q)}, v79, v80")
        e("s_waitcnt lgkmcnt(0)")
        e(f"v_readfirstlane_b32 {s(S_MODE)}, v2")
        e("s_waitcnt vmcnt(0)")
        self.bar("BS2")
        self.stamp("kv_in")
        Lkf = self.L("L_kfs")
        e(f"s_cmp_lg_u32 {s(S_WV)}, 6"); e(f"s_cbranch_scc1 {Lkf}")
        self.kvflag_set()
        self.lab(Lkf)
        self.p2_prefetch(S_P, S_TQ)
        self.stamp("pf_iss")
        La = self.L("L_qa"); Lb = self.L("L_qb")
        e(f"s_mov_b32 {s(S_M)}, -1"); e(f"s_mov_b32 {s(S_M+1)}, 0")
        e(f"s_cmp_eq_u32 {s(S_HD)}, 0")
        e(f"s_cbranch_scc1 {La}")
        e(f"v_mov_b32 {v(VQ1)}, 0"); e(f"v_mov_b32 {v(VQ1+1)}, 0")
        e(f"v_cndmask_b32 {v(VQ1+2)}, 0, {v(VQ1+2)}, {s(S_M,2)}")
        e(f"v_cndmask_b32 {v(VQ1+3)}, 0, {v(VQ1+3)}, {s(S_M,2)}")
        e(f"s_branch {Lb}")
        self.lab(La)
        e(f"v_cndmask_b32 {v(VQ1)}, 0, {v(VQ1)}, {s(S_M,2)}")
        e(f"v_cndmask_b32 {v(VQ1+1)}, 0, {v(VQ1+1)}, {s(S_M,2)}")
        e(f"v_mov_b32 {v(VQ1+2)}, 0"); e(f"v_mov_b32 {v(VQ1+3)}, 0")
        self.lab(Lb)
        Lslow = self.L("L_slow"); Lnorm = self.L("L_norm")
        KS = {0: 16, 8: 24}
        for j in range(1, 8): KS[j] = (32, 16, 24)[(j - 1) % 3]
        SBUF = {0: T[0], 8: T[8]}
        for j in range(1, 8): SBUF[j] = T[1] if j & 1 else T[2]
        pvorder = [0, 8, 1, 2, 3, 4, 5, 6, 7]
        VS = {t: (40, T[3])[n & 1] for n, t in enumerate(pvorder)}
        issued = []
        def ds(tag, text):
            e(text); issued.append(tag)
        def need(tag):
            idx = max(i for i, t in enumerate(issued) if t == tag)
            n = len(issued) - 1 - idx
            e(f"s_waitcnt lgkmcnt({min(n, 15)})")
        def kread(j):
            ds(("K", j), f"ds_read_b128 {v(KS[j],4)}, {v(VK0)} offset:{j*512}")
            ds(("K", j), f"ds_read_b128 {v(KS[j]+4,4)}, {v(VK1)} offset:{j*512}")
        def vread(j, t):
            for u in range(2):
                ds(("V", j, t), f"ds_read_b64_tr_b16 {v(VS[j]+4*t+2*u,2)}, {v(VV)} offset:{j*512+256*t+128*u}")
        def qka(j): return f"v_mfma_f32_32x32x16_bf16 {v(SBUF[j],16)}, {v(KS[j],4)}, {v(VQ0,4)}, 0"
        def qkb(j): return f"v_mfma_f32_32x32x16_bf16 {v(SBUF[j],16)}, {v(KS[j]+4,4)}, {v(VQ1,4)}, {v(SBUF[j],16)}"
        def pvm(j, t, p): return f"v_mfma_f32_32x32x16_bf16 {v(OA,16)}, {v(VS[j]+4*t,4)}, {v(p,4)}, {v(OA,16)}"
        kread(0); kread(8); kread(1)
        for i in range(0, 16, 2): e(f"v_mov_b64 {v(OA+i,2)}, 0")
        need(("K", 0)); e(qka(0)); e(qkb(0))
        vread(0, 0); vread(0, 1)
        need(("K", 8)); e(qka(8)); e(qkb(8))
        kread(2)
        need(("K", 1)); e(qka(1)); e(qkb(1))
        vread(8, 0); vread(8, 1)
        A0 = T[0]; B8 = T[8]
        for r in range(16):
            e(f"v_cndmask_b32 {v(A0+r)}, {v(A0+r)}, {v(B8+r)}, {s(S_MK+2*r,2)}")
        need(("K", 2))
        for i in range(4): e(f"v_exp_f32 {v(A0+i)}, {v(A0+i)}")
        e(qka(2))
        for i in range(4, 16): e(f"v_exp_f32 {v(A0+i)}, {v(A0+i)}")
        e(qkb(2))
        kread(3)
        for t in range(2):
            for q in range(4):
                e(f"v_cvt_pk_bf16_f32 {v(A0+8*t+q)}, {v(A0+8*t+2*q)}, {v(A0+8*t+2*q+1)}")
        for t in range(2):
            for q in range(4):
                src = A0 + 8 * t + q
                e(f"v_and_b32 {v(B8+4*t+q)}, {v(BM+4*t+q)}, {v(src)}")
                e(f"v_bfi_b32 {v(src)}, {v(BM+4*t+q)}, 0, {v(src)}")
        need(("V", 0, 1))
        e(pvm(0, 0, A0))
        def exps(b, lo, hi):
            for i in range(lo, hi): e(f"v_exp_f32 {v(b+i)}, {v(b+i)}")
        def cvts(b, t):
            for q in range(4): e(f"v_cvt_pk_bf16_f32 {v(b+8*t+q)}, {v(b+8*t+2*q)}, {v(b+8*t+2*q+1)}")
        b1 = SBUF[1]
        exps(b1, 0, 3); e(pvm(0, 1, A0 + 8))
        vread(1, 0); vread(1, 1)
        exps(b1, 3, 6); need(("V", 8, 1)); e(pvm(8, 0, B8))
        exps(b1, 6, 8); cvts(b1, 0); e(pvm(8, 1, B8 + 4))
        vread(2, 0); vread(2, 1)
        for j in range(1, 8):
            b = SBUF[j]
            nxt = j + 2 if j == 1 else None
            if j > 1:
                exps(b, 0, 4)
                if j + 1 <= 7: need(("K", j + 1)); e(qka(j + 1))
                exps(b, 4, 8); cvts(b, 0)
            exps(b, 8, 10)
            need(("V", j, 0)); e(pvm(j, 0, b))
            exps(b, 10, 13)
            if j == 1:
                pass
            elif j + 1 <= 7:
                e(qkb(j + 1))
            exps(b, 13, 16); cvts(b, 1)
            if j + 2 <= 7 and j > 1: kread(j + 2)
            e("s_nop 0")
            need(("V", j, 1)); e(pvm(j, 1, b + 8))
            if j + 2 <= 7: vread(j + 2, 0); vread(j + 2, 1)
        self.FASTCHECK = True
        e(f"v_mov_b32 v80, {v(OA+8)}")
        e(f"v_mov_b32 v81, {v(OA+8)}")
        e("v_permlane32_swap_b32 v80, v81")
        e("v_mov_b32 v82, 0x1f800000")
        e("v_mov_b32 v83, 0x5f800000")
        e(f"v_cmp_ge_f32 {s(S_M,2)}, v81, v82")
        e("v_cmp_le_f32 vcc, v81, v83")
        e(f"s_and_b64 vcc, vcc, {s(S_M,2)}")
        e("s_cmp_eq_u64 vcc, -1")
        e(f"s_cbranch_scc0 {Lslow}")
        if self.exp & 8192: e(f"s_branch {Lslow}")
        self.lab(Lnorm)
        self.stamp("attn_done")
        e(f"v_mov_b32 v80, {v(OA+8)}")
        e(f"v_mov_b32 v81, {v(OA+8)}")
        e("v_permlane32_swap_b32 v80, v81")
        e("v_rcp_f32 v81, v81")
        for i in range(12): e(f"v_mul_f32 {v(OA+i)}, v81, {v(OA+i)}")
        for q in range(6): e(f"v_cvt_pk_bf16_f32 {v(84+q)}, {v(OA+2*q)}, {v(OA+2*q+1)}")
        self.store_mode([f"buffer_store_dwordx4 v[84:87], v77, {s(SRD_WS,4)}, 0 offen",
                         "s_mov_b32 exec_hi, 0",
                         f"buffer_store_dwordx2 v[88:89], v78, {s(SRD_WS,4)}, 0 offen",
                         "s_mov_b32 exec_hi, -1"])
        self.stamp("o_iss")
        e("s_waitcnt vmcnt(0)")
        self.stamp("o_drn")
        self.bar("BE2")
        Lw = self.L("L_w")
        e(f"s_cmp_lg_u32 {s(S_WV)}, 6")
        e(f"s_cbranch_scc1 {Lw}")
        self.set_fb(3)
        self.lab(Lw)
        self.stamp("P2end")
        e("s_branch L_P3")
        self.lab(Lslow)
        e("s_nop 7")
        def kreads(j):
            b = KF[j & 1]
            return [f"ds_read_b128 {v(b,4)}, {v(VK0)} offset:{j*512}", f"ds_read_b128 {v(b+4,4)}, {v(VK1)} offset:{j*512}"]
        for t in kreads(0): e(t)
        for j in range(9):
            if j < 8:
                for t in kreads(j + 1): e(t)
                e("s_waitcnt lgkmcnt(2)")
            else:
                e("s_waitcnt lgkmcnt(0)")
            b = KF[j & 1]
            e(f"v_mfma_f32_32x32x16_bf16 {v(T[j],16)}, {v(b,4)}, {v(VQ0,4)}, 0")
            e(f"v_mfma_f32_32x32x16_bf16 {v(T[j],16)}, {v(b+4,4)}, {v(VQ1,4)}, {v(T[j],16)}")
        def vreads(j):
            b = VF[j & 1]
            return [f"ds_read_b64_tr_b16 {v(b+4*t+2*u,2)}, {v(VV)} offset:{j*512+256*t+128*u}" for t in range(2) for u in range(2)]
        for t in vreads(0): e(t)
        Lfix = self.L("L_fix"); Lret = self.L("L_ret")
        e(f"s_lshr_b32 {s(S_TMP)}, {s(S_TQ)}, 5")
        e(f"s_add_u32 {s(S_TMP)}, {s(S_TMP)}, {s(S_QT)}")
        e(f"s_cmp_lt_u32 {s(S_TMP)}, 8")
        e(f"s_cbranch_scc1 {Lfix}")
        self.lab(Lret)
        for r in range(16):
            e(f"v_cndmask_b32 {v(T[0]+r)}, {v(T[0]+r)}, {v(T[8]+r)}, {s(S_MK+2*r,2)}")
        MX = 80
        vals = [T[j] + r for j in range(8) for r in range(16)]
        for k in range(4):
            e(f"v_max3_f32 {v(MX+k)}, {v(vals[3*k])}, {v(vals[3*k+1])}, {v(vals[3*k+2])}")
        idx = 12; k = 0
        while idx + 1 < len(vals):
            e(f"v_max3_f32 {v(MX+k)}, {v(MX+k)}, {v(vals[idx])}, {v(vals[idx+1])}")
            idx += 2; k = (k + 1) & 3
        assert idx == len(vals)
        e(f"v_max3_f32 {v(MX)}, {v(MX)}, {v(MX+1)}, {v(MX+2)}")
        e(f"v_max_f32 {v(MX)}, {v(MX)}, {v(MX+3)}")
        e(f"v_mov_b32 {v(MX+1)}, {v(MX)}")
        e(f"v_permlane32_swap_b32 {v(MX)}, {v(MX+1)}")
        e(f"v_max_f32 {v(MX)}, {v(MX)}, {v(MX+1)}")
        e(f"v_sub_f32 {v(MX)}, 0, {v(MX)}")
        e(f"v_mov_b32 {v(MX+1)}, {v(MX)}")
        for i in range(0, 16, 2): e(f"v_mov_b64 {v(OA+i,2)}, 0")
        def softmax_tile(j):
            b = T[j]
            for i in range(0, 16, 2):
                e(f"v_pk_add_f32 {v(b+i,2)}, {v(b+i,2)}, {v(MX,2)}")
            for i in range(16):
                e(f"v_exp_f32 {v(b+i)}, {v(b+i)}")
            for t in range(2):
                for q in range(4):
                    e(f"v_cvt_pk_bf16_f32 {v(b+8*t+q)}, {v(b+8*t+2*q)}, {v(b+8*t+2*q+1)}")
        def pv(j, p0, p1):
            b = VF[j & 1]
            e(f"v_mfma_f32_32x32x16_bf16 {v(OA,16)}, {v(b,4)}, {v(p0,4)}, {v(OA,16)}")
            e(f"v_mfma_f32_32x32x16_bf16 {v(OA,16)}, {v(b+4,4)}, {v(p1,4)}, {v(OA,16)}")
        softmax_tile(0)
        for t in range(2):
            for q in range(4):
                src = T[0] + 8 * t + q
                e(f"v_and_b32 {v(T[8]+4*t+q)}, {v(BM+4*t+q)}, {v(src)}")
                e(f"v_bfi_b32 {v(src)}, {v(BM+4*t+q)}, 0, {v(src)}")
        for j in range(9):
            if j < 8:
                for t in vreads(j + 1): e(t)
            if 1 <= j < 8: softmax_tile(j)
            e("s_waitcnt lgkmcnt(4)" if j < 8 else "s_waitcnt lgkmcnt(0)")
            if j < 8: pv(j, T[j], T[j] + 8)
            else: pv(8, T[8], T[8] + 4)
        e(f"s_branch {Lnorm}")
        self.lab(Lfix)
        e("s_nop 15")
        e("v_mov_b32 v79, 0xf149f2ca")
        for j in range(8):
            Ls = self.L("L_fs")
            e(f"s_cmp_gt_u32 {s(S_TMP)}, {7-j}")
            e(f"s_cbranch_scc1 {Ls}")
            for r in range(16): e(f"v_mov_b32 {v(T[j]+r)}, v79")
            self.lab(Ls)
        e(f"s_branch {Lret}")


    def s_hs_half_issue(self, half, glc=False):
        e = self.e
        g = " glc" if glc else ""
        e(f"s_load_dwordx16 s[{SH}:{SH+15}], {s(S_DBG,2)}, {128*half}{g}")
        e(f"s_load_dwordx16 s[{SH+16}:{SH+31}], {s(S_DBG,2)}, {128*half+64}{g}")

    def s_hs_half_verify(self, half):
        e = self.e
        L = self.L("L_ha"); L2 = self.L("L_ha")
        e(f"s_branch {L2}")
        self.lab(L)
        e("s_sleep 8")
        self.s_hs_half_issue(half, glc=True)
        self.lab(L2)
        e("s_waitcnt lgkmcnt(0)")
        e(f"s_mov_b32 {s(S_TMP)}, 0x80808080")
        for q in range(32): e(f"s_and_b32 {s(S_TMP)}, {s(S_TMP)}, s{SH+q}")
        e(f"s_cmp_eq_u32 {s(S_TMP)}, 0x80808080")
        e(f"s_cbranch_scc0 {L}")

    def s_hs_all(self):
        for half in range(2):
            self.s_hs_half_issue(half)
            self.s_hs_half_verify(half)

    def wrow_voffsets(self, va, vb, rowbytes):
        e = self.e
        e("v_lshrrev_b32 v2, 3, v0")
        e("v_and_b32 v3, 7, v0")
        e("v_bfe_u32 v4, v0, 4, 1")
        e("v_lshlrev_b32 v4, 2, v4")
        e("v_xor_b32 v3, v3, v4")
        e("v_and_b32 v4, 3, v2")
        e("v_lshrrev_b32 v5, 2, v2")
        e("v_lshl_add_u32 v6, v5, 3, v4")
        e(f"v_mul_u32_u24 v6, {rowbytes}, v6")
        e(f"v_lshl_add_u32 {v(va)}, v3, 4, v6")
        if vb is not None:
            e("v_mul_u32_u24 v6, 20, v5")
            e("v_add_u32 v6, v6, v4")
            e(f"v_mul_u32_u24 v6, {rowbytes}, v6")
            e(f"v_lshl_add_u32 {v(vb)}, v3, 4, v6")

    def p3_decode(self):
        e = self.e
        e(f"s_mul_i32 {s(S_R)}, {s(S_I)}, 26")
        e(f"s_lshr_b32 {s(S_R)}, {s(S_R)}, 8")
        e(f"s_mul_i32 {s(S_TMP)}, {s(S_R)}, 10")
        e(f"s_sub_u32 {s(S_T)}, {s(S_I)}, {s(S_TMP)}")
        e(f"s_mul_i32 {s(S_TMP)}, {s(S_R)}, 96")
        e(f"s_lshl_b32 {s(S_T0)}, {s(S_G)}, 8")
        e(f"s_add_u32 {s(S_T0)}, {s(S_T0)}, {s(S_TMP)}")

    def wo_setup(self):
        e = self.e
        e(f"s_mul_i32 {s(S_TMP)}, {s(S_I)}, 26")
        e(f"s_lshr_b32 {s(S_TMP)}, {s(S_TMP)}, 8")
        e(f"s_mul_i32 {s(S_TMP)}, {s(S_TMP)}, 10")
        e(f"s_sub_u32 {s(S_TMP)}, {s(S_I)}, {s(S_TMP)}")
        e(f"s_lshl_b32 {s(S_TMP)}, {s(S_TMP)}, 7")
        self.srd(SRD_W, S_WO, S_TMP, 640 * 1280)
        self.wrow_voffsets(40, 41, 1280)

    def wo_range(self, s_u, s_end):
        e = self.e
        L = self.L("L_wol")
        self.lab(L)
        e(f"s_mov_b32 {s(S_TMP)}, 0"); e(f"s_mov_b32 {s(S_TMP2)}, 0"); e(f"s_mov_b32 {s(S_TMP4)}, 0")
        for lim, st, off, var in ((16, 16, 20, 0), (32, 32, 16, 1), (40, 40, 4, 0), (56, 56, 24, 0), (72, 64, 16, 1)):
            e(f"s_cmp_ge_u32 {s(s_u)}, {lim}")
            e(f"s_cselect_b32 {s(S_TMP)}, {st}, {s(S_TMP)}")
            e(f"s_cselect_b32 {s(S_TMP2)}, {off}, {s(S_TMP2)}")
            e(f"s_cselect_b32 {s(S_TMP4)}, {var}, {s(S_TMP4)}")
        e(f"s_sub_u32 {s(S_TMP)}, {s(s_u)}, {s(S_TMP)}")
        e(f"s_mul_i32 {s(S_TMP)}, {s(S_TMP)}, 40")
        e(f"s_add_u32 {s(S_TMP)}, {s(S_TMP)}, {s(S_TMP2)}")
        e(f"s_mul_i32 {s(S_TMP)}, {s(S_TMP)}, 1280")
        e(f"s_lshl_b32 {s(S_TMP2)}, {s(s_u)}, 10")
        e(f"s_add_u32 m0, {s(S_TMP2)}, {LDS_WO}")
        Lb = self.L("L_wob"); Lc = self.L("L_woc")
        e(f"s_cmp_eq_u32 {s(S_TMP4)}, 1"); e(f"s_cbranch_scc1 {Lb}")
        e(f"buffer_load_dwordx4 v40, {s(SRD_W,4)}, {s(S_TMP)} offen lds")
        e(f"s_branch {Lc}")
        self.lab(Lb)
        e(f"buffer_load_dwordx4 v41, {s(SRD_W,4)}, {s(S_TMP)} offen lds")
        self.lab(Lc)
        e(f"s_add_u32 {s(s_u)}, {s(s_u)}, 1")
        e(f"s_cmp_lt_u32 {s(s_u)}, {s(s_end)}")
        e(f"s_cbranch_scc1 {L}")

    def touch_planes(self, nplanes, lines_per_plane, base_sgpr, vdst):
        e = self.e
        tot = nplanes * lines_per_plane
        n = (tot + 63) // 64
        for k in range(n):
            e(f"v_add_u32 v2, {64*k}, v0")
            if lines_per_plane == 8:
                e("v_lshrrev_b32 v3, 3, v2"); e("v_and_b32 v4, 7, v2")
            elif lines_per_plane == 16:
                e("v_lshrrev_b32 v3, 4, v2"); e("v_and_b32 v4, 15, v2")
            else:
                e("v_mul_u32_u24 v3, 171, v2"); e("v_lshrrev_b32 v3, 11, v3"); e("v_mul_u32_u24 v4, 12, v3"); e("v_sub_u32 v4, v2, v4")
            e("v_lshlrev_b32 v3, 15, v3")
            e("v_lshl_add_u32 v3, v4, 7, v3")
            if tot - 64 * k < 64:
                e(f"v_cmp_gt_u32 vcc, {tot-64*k}, v0")
                e("v_cndmask_b32 v3, 0, v3, vcc")
            e(f"buffer_load_dword {v(vdst+k)}, v3, {s(SRD_WS,4)}, {s(base_sgpr)} offen")

    def touch_o(self, s_p, s_tq):
        e = self.e
        e(f"s_cmp_lt_u32 {s(s_p)}, 8"); e(f"s_cselect_b32 {s(S_TMP)}, 32, 64"); e(f"s_add_u32 {s(S_TMP)}, {s(S_TMP)}, {s(s_p)}")
        e(f"s_lshl_b32 {s(S_TMP2)}, {s(s_tq)}, 4"); e(f"s_add_u32 {s(S_TMP2)}, {s(S_TMP2)}, {WS_O}")
        e("v_lshrrev_b32 v2, 4, v0"); e("v_and_b32 v4, 15, v0")
        e("v_lshrrev_b32 v3, 1, v2"); e("v_lshlrev_b32 v3, 4, v3"); e("v_and_b32 v5, 1, v2"); e("v_mul_u32_u24 v5, 40, v5")
        e("v_add_u32 v3, v3, v5"); e(f"v_add_u32 v3, {s(s_p)}, v3")
        e("v_lshlrev_b32 v3, 15, v3"); e("v_lshl_add_u32 v3, v4, 7, v3")
        e(f"buffer_load_dword v252, v3, {s(SRD_WS,4)}, {s(S_TMP2)} offen")
        e(f"s_lshl_b32 {s(S_TMP)}, {s(S_TMP)}, 15"); e(f"s_add_u32 {s(S_TMP2)}, {s(S_TMP2)}, {s(S_TMP)}")
        e("v_lshlrev_b32 v3, 7, v4")
        e(f"buffer_load_dword v253, v3, {s(SRD_WS,4)}, {s(S_TMP2)} offen")

    def touch_h(self):
        e = self.e
        e(f"s_mul_i32 {s(S_TMP)}, {s(S_I)}, 26"); e(f"s_lshr_b32 {s(S_TMP)}, {s(S_TMP)}, 8")
        e(f"s_mul_i32 {s(S_TMP2)}, {s(S_TMP)}, 10"); e(f"s_sub_u32 {s(S_TMP2)}, {s(S_I)}, {s(S_TMP2)}")
        e(f"s_mul_i32 {s(S_TMP)}, {s(S_TMP)}, 96"); e(f"s_lshl_b32 {s(S_TMP3)}, {s(S_G)}, 8"); e(f"s_add_u32 {s(S_TMP)}, {s(S_TMP)}, {s(S_TMP3)}")
        e(f"s_lshl_b32 {s(S_TMP3)}, {s(S_TMP2)}, 14"); e(f"s_lshl_b32 {s(S_TMP4)}, {s(S_TMP)}, 3")
        e(f"s_add_u32 {s(S_TMP3)}, {s(S_TMP3)}, {s(S_TMP4)}"); e(f"s_add_u32 {s(S_TMP3)}, {s(S_TMP3)}, {WS_ST2}")
        e("v_and_b32 v3, 7, v0"); e("v_lshlrev_b32 v3, 7, v3")
        e(f"buffer_load_dword v249, v3, {s(SRD_WS,4)}, {s(S_TMP3)} offen")
        e(f"s_lshl_b32 {s(S_TMP2)}, {s(S_TMP2)}, 18"); e(f"s_lshl_b32 {s(S_TMP)}, {s(S_TMP)}, 4")
        e(f"s_add_u32 {s(S_TMP)}, {s(S_TMP)}, {s(S_TMP2)}"); e(f"s_add_u32 {s(S_TMP4)}, {s(S_TMP)}, {WS_H}")
        self.touch_planes(8, 12, S_TMP4, 250)

    def touch_h1(self, dst=100):
        e = self.e
        e(f"s_and_b32 {s(S_TMP)}, {s(S_I)}, 7"); e(f"s_mul_i32 {s(S_TMP)}, {s(S_TMP)}, 24"); e(f"s_lshl_b32 {s(S_TMP)}, {s(S_TMP)}, 15")
        e(f"s_lshr_b32 {s(S_TMP2)}, {s(S_I)}, 3"); e(f"s_lshl_b32 {s(S_TMP2)}, {s(S_TMP2)}, 6")
        e(f"s_lshl_b32 {s(S_TMP3)}, {s(S_G)}, 8"); e(f"s_add_u32 {s(S_TMP2)}, {s(S_TMP2)}, {s(S_TMP3)}"); e(f"s_lshl_b32 {s(S_TMP2)}, {s(S_TMP2)}, 4")
        e(f"s_add_u32 {s(S_TMP)}, {s(S_TMP)}, {s(S_TMP2)}")
        e(f"s_add_u32 {s(S_TMP4)}, {s(S_TMP)}, {WS_H1}")
        self.touch_planes(24, 8, S_TMP4, dst)

    def touch_w1(self, k0, k1):
        e = self.e
        self.srd(SRD_T, S_W1, size=640 * 3072)
        e("v_lshlrev_b32 v2, 7, v0")
        for k in range(k0, k1):
            e(f"s_lshl_b32 {s(S_TMP)}, {s(S_I)}, 3")
            e(f"s_add_u32 {s(S_TMP)}, {s(S_TMP)}, {k}")
            e(f"s_mul_i32 {s(S_TMP)}, {s(S_TMP)}, {60*128}")
            e(f"buffer_load_dword {v(104+k)}, v2, {s(SRD_T,4)}, {s(S_TMP)} offen")

    def p2_prefetch(self, s_p, s_tq):
        e = self.e
        Lsk = self.L("L_pf"); Lnw = self.L("L_pf")
        e(f"s_cmp_ge_u32 {s(S_WV)}, 4"); e(f"s_cbranch_scc1 {Lsk}")
        e(f"s_and_b32 {s(S_TMP)}, {s(S_I)}, 7")
        e(f"s_cmp_lt_u32 {s(S_TMP)}, 6"); e(f"s_cbranch_scc1 {Lnw}")
        e(f"s_cmp_lg_u32 {s(S_WV)}, 3"); e(f"s_cbranch_scc1 {Lnw}")
        e(f"s_lshr_b32 {s(S_TMP2)}, {s(S_I)}, 3"); e(f"s_lshl_b32 {s(S_TMP2)}, {s(S_TMP2)}, 6")
        e(f"s_lshl_b32 {s(S_TMP3)}, {s(S_G)}, 8"); e(f"s_add_u32 {s(S_TMP2)}, {s(S_TMP2)}, {s(S_TMP3)}"); e(f"s_lshl_b32 {s(S_TMP2)}, {s(S_TMP2)}, 4")
        e(f"s_add_u32 {s(S_TMP4)}, {s(S_TMP2)}, {WS_QKV + 240*CH}")
        L7 = self.L("L_pf")
        e(f"s_cmp_eq_u32 {s(S_TMP)}, 7"); e(f"s_cbranch_scc1 {L7}")
        self.touch_planes(8, 8, S_TMP4, 250)
        e(f"s_branch {Lnw}")
        self.lab(L7)
        e(f"s_add_u32 {s(S_TMP4)}, {s(S_TMP4)}, {8*CH}")
        self.touch_planes(24, 8, S_TMP4, 250)
        self.lab(Lnw)
        self.lab(Lsk)
        for wv, ptr, size in ((0, S_W1, 640 * 3072), (1, S_W2, 1536 * 1280)):
            Ln = self.L("L_pf")
            e(f"s_cmp_lg_u32 {s(S_WV)}, {wv}"); e(f"s_cbranch_scc1 {Ln}")
            self.srd(SRD_T, ptr, size=size)
            e(f"s_mul_i32 {s(S_TMP)}, s2, {60*128}")
            e("v_lshlrev_b32 v2, 7, v0")
            e(f"buffer_load_dword v253, v2, {s(SRD_T,4)}, {s(S_TMP)} offen")
            self.lab(Ln)

    def wo_issue(self):
        e = self.e
        Lsk = self.L("L_wi")
        e(f"s_cmp_ge_u32 {s(S_I)}, 30"); e(f"s_cbranch_scc1 {Lsk}")
        self.wo_setup()
        e(f"s_min_u32 {s(S_IT)}, {s(S_WV)}, 6")
        L = self.L("L_wil")
        self.lab(L)
        e(f"s_mul_i32 {s(S_TMP2)}, {s(S_IT)}, {40*1280}")
        e(f"s_mul_i32 {s(S_TMP4)}, {s(S_IT)}, {5*1024}"); e(f"s_add_u32 m0, {s(S_TMP4)}, {LDS_WO}")
        for m in range(5):
            if m: e(f"s_add_u32 m0, m0, {s(S_C1024)}")
            e(f"s_add_u32 {s(S_TMP)}, {s(S_TMP2)}, {(0, 4, 20, 24, 16)[m]*1280}")
            e(f"buffer_load_dwordx4 {'v41' if m == 4 else 'v40'}, {s(SRD_W,4)}, {s(S_TMP)} offen lds")
        e(f"s_add_u32 {s(S_IT)}, {s(S_IT)}, 7")
        e(f"s_cmp_lt_u32 {s(S_IT)}, 16"); e(f"s_cbranch_scc1 {L}")
        self.lab(Lsk)

    def kvflag_set(self):
        e = self.e
        e(f"s_lshl_b32 {s(S_TMP)}, {s(S_G)}, 5")
        e(f"s_add_u32 {s(S_TMP)}, {s(S_TMP)}, {s(S_I)}")
        e(f"s_and_b32 {s(S_TMP2)}, {s(S_TMP)}, 3")
        e(f"s_lshl_b32 {s(S_TMP2)}, {s(S_TMP2)}, 3")
        e(f"s_and_b32 {s(S_TMP)}, {s(S_TMP)}, 0xfc")
        e(f"s_lshl_b32 {s(S_TMP4)}, 0x40, {s(S_TMP2)}")
        e(f"s_atomic_or {s(S_TMP4)}, {s(S_DBG,2)}, {s(S_TMP)}")

    def kvflag_issue(self, glc=False):
        e = self.e
        g = " glc" if glc else ""
        e(f"s_lshl_b32 {s(S_TMP)}, {s(S_G)}, 5")
        e(f"s_load_dwordx8 s[{SH}:{SH+7}], {s(S_DBG,2)}, {s(S_TMP)}{g}")
        e(f"s_add_u32 {s(S_TMP)}, {s(S_G)}, 1"); e(f"s_min_u32 {s(S_TMP)}, {s(S_TMP)}, 7"); e(f"s_lshl_b32 {s(S_TMP)}, {s(S_TMP)}, 5")
        e(f"s_load_dwordx8 s[{SH+8}:{SH+15}], {s(S_DBG,2)}, {s(S_TMP)}{g}")

    def kvflag_verify(self):
        e = self.e
        L = self.L("L_kf"); L2 = self.L("L_kf")
        e(f"s_branch {L2}")
        self.lab(L)
        e("s_sleep 8")
        self.kvflag_issue(glc=True)
        self.lab(L2)
        e("s_waitcnt lgkmcnt(0)")
        e(f"s_mov_b32 {s(S_TMP)}, 0x40404040")
        for q in range(16): e(f"s_and_b32 {s(S_TMP)}, {s(S_TMP)}, s{SH+q}")
        e(f"s_cmp_eq_u32 {s(S_TMP)}, 0x40404040")
        e(f"s_cbranch_scc0 {L}")

    def role_dispatch(self, ph):
        e = self.e
        e(f"s_cmp_lt_u32 {s(S_WV)}, 4"); e(f"s_cbranch_scc1 L_C{ph}")
        e(f"s_cmp_eq_u32 {s(S_WV)}, 6"); e(f"s_cbranch_scc1 L_S{ph}")
        e(f"s_cmp_eq_u32 {s(S_WV)}, 7"); e(f"s_cbranch_scc1 L_X{ph}")

    def poll_fb(self, val, need_mask_sgpr):
        e = self.e
        e(f"s_lshl_b32 {s(S_TMP2)}, {s(S_G)}, 8")
        e(f"s_add_u32 {s(S_TMP2)}, {s(S_TMP2)}, {WS_FB}")
        e("v_and_b32 v2, 31, v0")
        e(f"v_lshl_add_u32 v8, v2, 2, {s(S_TMP2)}")
        e(f"v_lshrrev_b32 v3, v2, {s(need_mask_sgpr)}") if False else None
        e(f"v_mov_b32 v3, {s(need_mask_sgpr)}")
        e("v_lshrrev_b32 v3, v2, v3")
        e("v_and_b32 v3, 1, v3")
        e(f"v_mul_u32_u24 v9, {val}, v3")
        self.poll(8, 9, 10)

    def frag_addr_w128(self, vdst, hstride, base):
        e = self.e
        e("v_lshrrev_b32 v2, 5, v0")
        e("v_bfe_u32 v3, v0, 2, 2")
        e("v_bfe_u32 v4, v0, 4, 1")
        e("v_lshlrev_b32 v4, 1, v4")
        e("v_bfe_u32 v5, v0, 1, 1")
        e("v_or_b32 v4, v4, v5")
        e(f"s_and_b32 {s(S_TMP)}, {s(S_WV)}, 1")
        e(f"s_lshl_b32 {s(S_TMP)}, {s(S_TMP)}, 2")
        e(f"v_or_b32 v4, {s(S_TMP)}, v4")
        e("v_bfe_u32 v5, v0, 3, 1")
        e("v_lshlrev_b32 v5, 2, v5")
        e("v_xor_b32 v4, v4, v5")
        e("v_lshlrev_b32 v4, 4, v4")
        e("v_lshl_add_u32 v4, v3, 7, v4")
        e("v_and_b32 v5, 1, v0")
        e("v_lshl_add_u32 v4, v5, 3, v4")
        e(f"v_mul_u32_u24 v5, {hstride}, v2")
        e("v_add_u32 v4, v4, v5")
        e(f"v_add_u32 {v(vdst)}, {base}, v4")

    HRES = 240

    def pair_reduce(self, ACC, xbase, RED):
        e = self.e
        Lk = self.L("L_k1"); Lj = self.L("L_kj")
        e(f"s_mul_i32 {s(S_TMP)}, {s(S_WV)}, 6144")
        e(f"s_add_u32 {s(S_TMP)}, {s(S_TMP)}, {xbase}")
        e(f"v_lshl_add_u32 v2, v0, 4, {s(S_TMP)}")
        e(f"s_xor_b32 {s(S_TMP)}, {s(S_WV)}, 2")
        e(f"s_mul_i32 {s(S_TMP)}, {s(S_TMP)}, 6144")
        e(f"s_add_u32 {s(S_TMP)}, {s(S_TMP)}, {xbase}")
        e(f"v_lshl_add_u32 v3, v0, 4, {s(S_TMP)}")
        e(f"s_cmp_ge_u32 {s(S_WV)}, 2"); e(f"s_cbranch_scc1 {Lk}")
        for kh, lab in ((0, None), (1, Lk)):
            if lab: self.lab(lab)
            for tt in range(3):
                o = ACC + 16 * tt + 8 * (1 - kh)
                e(f"ds_write_b128 v2, {v(o,4)} offset:{tt*2048}")
                e(f"ds_write_b128 v2, {v(o+4,4)} offset:{tt*2048+1024}")
            e("s_waitcnt lgkmcnt(0)")
            self.e("s_barrier") if kh == 1 else self.bar_pending("BR1")
            for tt in range(3):
                e(f"ds_read_b128 {v(RED+8*tt,4)}, v3 offset:{tt*2048}")
                e(f"ds_read_b128 {v(RED+8*tt+4,4)}, v3 offset:{tt*2048+1024}")
            e("s_waitcnt lgkmcnt(0)")
            for tt in range(3):
                k = ACC + 16 * tt + 8 * kh
                for i in range(0, 8, 2):
                    e(f"v_pk_add_f32 {v(RED+8*tt+i,2)}, {v(RED+8*tt+i,2)}, {v(k+i,2)}")
            if kh == 0: e(f"s_branch {Lj}")
        self.lab(Lj)

    def bar_pending(self, name):
        self.bars.setdefault(self.role, []).append(name)
        self.e("s_barrier")

    def gemm96_loop(self, tag, nst, slot_bytes, nslot, woff, aoff, wks, VW, VB, ACC, FA_, FB_, first_slot=0, wres=False):
        e = self.e
        VWc, VBc = VW + 1, VB + 1
        def reads(m, setn):
            fa = FA_ + 4 * setn; fb = FB_ + 12 * setn
            o = [f"ds_read_b64_tr_b16 {v(fa+2*u,2)}, {v(VWc)} offset:{m*2*wks+u*512}" for u in range(2)]
            o += [f"ds_read_b128 {v(fb+4*tt,4)}, {v(VBc)} offset:{m*6144+tt*1024}" for tt in range(3)]
            return o
        def mf(setn):
            fa = FA_ + 4 * setn; fb = FB_ + 12 * setn
            return [f"v_mfma_f32_32x32x16_bf16 {v(ACC+16*tt,16)}, {v(fa,4)}, {v(fb+4*tt,4)}, {v(ACC+16*tt,16)}" for tt in range(3)]
        def upd():
            o = [f"v_add_u32 {v(VBc)}, {s(S_SLOT)}, {v(VB)}"]
            o.append(f"v_add_u32 {v(VWc)}, {s(S_KW) if wres else s(S_SLOT)}, {v(VW)}")
            return o
        e(f"s_mov_b32 {s(S_SLOT)}, {first_slot*slot_bytes}")
        e(f"s_mov_b32 {s(S_KW)}, 0")
        e(f"s_mov_b32 {s(S_IT)}, 0")
        for t in upd(): e(t)
        self.bar(tag + "0")
        for t in reads(0, 0): e(t)
        L = f"L_{tag}LOOP"
        self.lab(L)
        for m in range(3):
            r = reads(m + 1, (m + 1) & 1); mm = mf(m & 1)
            e("s_waitcnt lgkmcnt(0)")
            e(mm[0]); e(r[0]); e(r[1]); e(mm[1]); e(r[2]); e(r[3]); e(r[4])
            if m == 2:
                e(f"s_add_u32 {s(S_SLOT)}, {s(S_SLOT)}, {slot_bytes}")
                e(f"s_cmp_eq_u32 {s(S_SLOT)}, {nslot*slot_bytes}")
                e(f"s_cselect_b32 {s(S_SLOT)}, 0, {s(S_SLOT)}")
                e(f"s_add_u32 {s(S_KW)}, {s(S_KW)}, {8*wks}")
            e(mm[2])
            if m == 2:
                for t in upd(): e(t)
        mm = mf(1); r = reads(0, 0)
        e("s_waitcnt lgkmcnt(0)")
        self.itstamp(252, tag)
        self.bar(tag + "loop")
        self.itstamp(253, tag)
        e(mm[0]); e(r[0]); e(r[1]); e(mm[1]); e(r[2]); e(r[3]); e(r[4]); e(mm[2])
        e(f"s_add_u32 {s(S_IT)}, {s(S_IT)}, 1")
        e(f"s_cmp_lt_u32 {s(S_IT)}, {nst}")
        e(f"s_cbranch_scc1 {L}")

    def simple_bar_loop(self, tag, nst, lab):
        e = self.e
        self.bar(tag + "0")
        e(f"s_mov_b32 {s(S_IT)}, 0")
        self.lab(lab)
        self.bar(tag + "loop")
        e(f"s_add_u32 {s(S_IT)}, {s(S_IT)}, 1")
        e(f"s_cmp_lt_u32 {s(S_IT)}, {nst}")
        e(f"s_cbranch_scc1 {lab}")

    def phase3(self):
        e = self.e
        self.role = "P3"
        self.lab("L_P3")
        e(f"s_cmp_ge_u32 {s(S_I)}, 30")
        e("s_cbranch_scc1 L_CS1")
        self.p3_decode()
        self.role_dispatch(3)
        self.role = "L"
        e("v_lshrrev_b32 v2, 5, v0"); e("v_and_b32 v3, 31, v0")
        e("v_lshlrev_b32 v2, 15, v2")
        e("v_lshl_add_u32 v8, v3, 4, v2")
        for idx in range(1, 12):
            e(f"v_add_u32 {v(8+idx)}, {(idx//3)*2*CH + (idx%3)*512}, v8")
        e(f"s_and_b32 {s(S_TMP3)}, {s(S_WV)}, 1")
        e(f"s_lshl_b32 {s(S_KA)}, {s(S_TMP3)}, 18")
        e(f"s_lshl_b32 {s(S_TMP)}, {s(S_T0)}, 4")
        e(f"s_add_u32 {s(S_KA)}, {s(S_KA)}, {s(S_TMP)}")
        e(f"s_add_u32 {s(S_KA)}, {s(S_KA)}, {WS_O}")
        e(f"s_mul_i32 {s(S_TMP4)}, {s(S_TMP3)}, {12*1024}")
        ait3 = [(8 + q, SRD_WS, S_KA, q * 1024, True) for q in range(12)]
        def a_stage(slot):
            e(f"s_add_u32 {s(S_TMP)}, {s(S_TMP4)}, {slot*24576}")
            self.dma_group(ait3, S_TMP)
            e(f"s_add_u32 {s(S_KA)}, {s(S_KA)}, {16*CH}")
        e("s_setprio 3")
        self.bar("BP3a")
        self.stamp("L3go")
        a_stage(0); a_stage(1)
        e("s_waitcnt vmcnt(12)"); self.bar("B30")
        a_stage(2)
        e("s_waitcnt vmcnt(12)"); self.bar("B3loop"); a_stage(0)
        e("s_waitcnt vmcnt(12)"); e("s_barrier"); a_stage(1)
        e("s_waitcnt vmcnt(12)"); e("s_barrier")
        e("s_waitcnt vmcnt(0)"); e("s_barrier")
        e("s_barrier")
        wit, ait = self.l4_setup()
        self.bar("BR1")
        self.ring_pre(wit, 64 * 3072, 32768, between={1: lambda: self.bar("BR2")})
        self.bar("BE3")
        e("s_branch L_L4B")
        self.role = "S"
        self.lab("L_S3")
        e(f"s_mov_b32 {s(S_TMP)}, 0xffff")
        e(f"s_cmp_eq_u32 {s(S_R)}, 1"); e(f"s_cselect_b32 {s(S_TMP)}, -1, {s(S_TMP)}")
        e(f"s_cmp_eq_u32 {s(S_R)}, 2"); e(f"s_cselect_b32 {s(S_TMP)}, 0xffff0000, {s(S_TMP)}")
        e(f"s_mov_b32 {s(S_TMP4)}, {s(S_TMP)}")
        self.kvflag_issue()
        self.poll_fb(3, S_TMP4)
        self.bar("BP3a")
        self.kvflag_verify()
        self.simple_bar_loop("B3", 5, "L_S3LOOP")
        self.bar("BR1"); self.bar("BR2"); self.bar("BE3")
        self.set_fb(4)
        e("s_branch L_P4")
        self.role = "X"
        self.lab("L_X3")
        self.bar("BP3a")
        self.simple_bar_loop("B3", 5, "L_X3LOOP")
        self.bar("BR1"); self.bar("BR2")
        for ps in range(2):
            e(f"v_lshlrev_b32 v2, 3, v0")
            e(f"v_add_u32 v3, {LDS_P3ST}, v2")
            for w in range(4):
                e(f"ds_read_b64 {v(8+2*w,2)}, v3 offset:{w*768+ps*512}")
            e("s_waitcnt lgkmcnt(0)")
            e("v_add_f32 v8, v8, v10"); e("v_add_f32 v9, v9, v11")
            e("v_add_f32 v12, v12, v14"); e("v_add_f32 v13, v13, v15")
            e("v_add_f32 v8, v8, v12"); e("v_add_f32 v9, v9, v13")
            e(f"s_lshl_b32 {s(S_TMP)}, {s(S_T)}, 14")
            e(f"s_lshl_b32 {s(S_TMP2)}, {s(S_T0)}, 3")
            e(f"s_add_u32 {s(S_TMP)}, {s(S_TMP)}, {s(S_TMP2)}")
            e(f"s_add_u32 {s(S_TMP)}, {s(S_TMP)}, {WS_ST2+ps*512}")
            if ps == 1:
                Ls = self.L("L_x3")
                e(f"s_cmp_eq_u32 {s(S_R)}, 2"); e(f"s_cbranch_scc1 {Ls}")
                e("s_mov_b32 exec_hi, 0")
            e(f"buffer_store_dwordx2 v[8:9], v2, {s(SRD_WS,4)}, {s(S_TMP)} offen sc1")
            if ps == 1:
                e("s_mov_b32 exec_hi, -1")
                self.lab(Ls)
        e("s_waitcnt vmcnt(0)")
        self.bar("BE3")
        e("s_branch L_P4")
        self.role = "C"
        self.lab("L_C3")
        ACC = 64; FA_ = 112; FB_ = 120; VW = 16; VB = 18; XR = 144; RED = 160
        HR = self.HRES
        e("v_and_b32 v1, 31, v0"); e("v_lshrrev_b32 v2, 5, v0")
        e(f"v_add_u32 v3, {s(S_T0)}, v1")
        e("v_mul_u32_u24 v4, 1280, v3")
        e(f"s_lshl_b32 {s(S_TMP)}, {s(S_T)}, 6")
        e(f"s_and_b32 {s(S_TMP2)}, {s(S_WV)}, 1"); e(f"s_lshl_b32 {s(S_TMP2)}, {s(S_TMP2)}, 5")
        e(f"s_add_u32 {s(S_TMP)}, {s(S_TMP)}, {s(S_TMP2)}")
        e(f"s_lshr_b32 {s(S_TMP2)}, {s(S_WV)}, 1"); e(f"s_lshl_b32 {s(S_TMP2)}, {s(S_TMP2)}, 4")
        e(f"s_add_u32 {s(S_N0)}, {s(S_TMP)}, {s(S_TMP2)}")
        e(f"v_lshl_add_u32 v5, v2, 2, {s(S_N0)}")
        e("v_lshl_add_u32 v4, v5, 1, v4")
        self.srd(SRD_T, S_X, size=2048 * 1280)
        for tt in range(3):
            e(f"s_mov_b32 {s(S_TMP)}, {tt*32*1280}")
            for jj in range(2):
                e(f"buffer_load_dwordx2 {v(XR+4*tt+2*jj,2)}, v4, {s(SRD_T,4)}, {s(S_TMP)} offen offset:{jj*16}")
        e(f"s_lshr_b32 {s(S_TMP)}, {s(S_N0)}, 3")
        e(f"v_add_u32 v5, {s(S_TMP)}, v2")
        e("v_lshlrev_b32 v5, 15, v5")
        e("v_lshl_add_u32 v5, v3, 4, v5")
        e(f"v_add_u32 v20, {WS_H}, v5")
        self.frag_addr_w128(VW, 1024, LDS_WO)
        e(f"s_lshr_b32 {s(S_TMP)}, {s(S_WV)}, 1")
        e(f"s_lshl_b32 {s(S_TMP2)}, {s(S_TMP)}, 11")
        e(f"v_add_u32 {v(VW)}, {s(S_TMP2)}, {v(VW)}")
        e(f"s_mul_i32 {s(S_TMP)}, {s(S_TMP)}, 3072")
        e(f"v_lshl_add_u32 {v(VB)}, v0, 4, {s(S_TMP)}")
        for i in range(0, 48, 2): e(f"v_mov_b64 {v(ACC+i,2)}, 0")
        self.bar("BP3a")
        self.stamp("C3go")
        self.gemm96_loop("B3", 5, 24576, 3, 0, 0, 2048, VW, VB, ACC, FA_, FB_, wres=True)
        self.stamp("C3loop")
        self.pair_reduce(ACC, 131072, RED)
        e("s_waitcnt vmcnt(0)")
        for tt in range(3):
            for q in range(4):
                x = XR + 4 * tt + q; d = RED + 8 * tt + 2 * q
                e(f"v_lshlrev_b32 v2, 16, {v(x)}")
                e(f"v_and_b32 v3, 0xffff0000, {v(x)}")
                e(f"v_add_f32 {v(d)}, {v(d)}, v2")
                e(f"v_add_f32 {v(d+1)}, {v(d+1)}, v3")
                e(f"v_cvt_pk_bf16_f32 {v(HR+4*tt+q)}, {v(d)}, {v(d+1)}")
        e("v_mov_b32 v4, 0x3f803f80")
        for tt in range(3):
            e(f"v_mov_b32 {v(24+2*tt)}, 0"); e(f"v_mov_b32 {v(25+2*tt)}, 0")
        for q in range(4):
            for tt in range(3):
                e(f"v_dot2_f32_bf16 {v(24+2*tt)}, {v(HR+4*tt+q)}, v4, {v(24+2*tt)}")
                e(f"v_dot2_f32_bf16 {v(25+2*tt)}, {v(HR+4*tt+q)}, {v(HR+4*tt+q)}, {v(25+2*tt)}")
        for r in range(24, 30):
            e(f"v_mov_b32 {v(r+8)}, {v(r)}")
        for r in range(24, 30):
            e(f"v_permlane32_swap_b32 {v(r)}, {v(r+8)}")
        for r in range(24, 30):
            e(f"v_add_f32 {v(r)}, {v(r)}, {v(r+8)}")
        e(f"s_mul_i32 {s(S_TMP)}, {s(S_WV)}, 768")
        e(f"s_add_u32 {s(S_TMP)}, {s(S_TMP)}, {LDS_P3ST}")
        e(f"v_lshl_add_u32 v2, v1, 3, {s(S_TMP)}")
        e("s_mov_b32 exec_hi, 0")
        for tt in range(3):
            e(f"ds_write_b64 v2, {v(24+2*tt,2)} offset:{tt*256}")
        e("s_mov_b32 exec_hi, -1")
        st = [f"buffer_store_dwordx4 {v(HR+4*tt,4)}, v20, {s(SRD_WS,4)}, 0 offen offset:{tt*512}" for tt in range(3)]
        Ls = self.L("L_c3s"); Lt = self.L("L_c3t")
        e(f"s_cmp_eq_u32 {s(S_R)}, 2"); e(f"s_cbranch_scc1 {Ls}")
        self.store_mode(st)
        e(f"s_branch {Lt}")
        self.lab(Ls)
        self.store_mode(st[:2])
        self.lab(Lt)
        e("s_waitcnt lgkmcnt(0)")
        self.bar("BR2")
        e("s_waitcnt vmcnt(0)")
        self.bar("BE3")
        self.stamp("C3end")
        e("s_branch L_P4")


    def phase4(self):
        e = self.e
        self.role = "P4"
        self.lab("L_P4")
        e(f"s_lshr_b32 {s(S_R)}, {s(S_I)}, 3")
        e(f"s_and_b32 {s(S_T)}, {s(S_I)}, 7")
        e(f"s_lshl_b32 {s(S_T0)}, {s(S_G)}, 8")
        e(f"s_lshl_b32 {s(S_TMP)}, {s(S_R)}, 6")
        e(f"s_add_u32 {s(S_T0)}, {s(S_T0)}, {s(S_TMP)}")
        e(f"s_mul_i32 {s(S_N0)}, {s(S_T)}, 192")
        self.role_dispatch(4)
        LST = LDS_P4ST; LCS = LST + 512
        self.role = "L"
        wit, ait = self.l4_setup()
        self.ring_pre(wit, 64 * 3072, 32768)
        self.lab("L_L4B")
        self.bar("BP4a")
        self.stamp("L4go")
        self.ring_main(wit, ait, 64 * 3072, 8 * CH, 10, 32768, "B4", "L_L4LOOP")
        Lno = self.L("L_no5")
        e(f"s_cmp_ge_u32 {s(S_I)}, 30"); e(f"s_cbranch_scc1 {Lno}")
        wit5, ait5 = self.l5_setup()
        self.ring_pre(wit5, 128 * 1280, 40960)
        self.bar("BE4")
        e("s_branch L_L5B")
        self.lab(Lno)
        e("s_barrier")
        e("s_branch L_FIN")
        self.wit5, self.ait5 = wit5, ait5
        self.role = "S"
        self.lab("L_S4")
        e(f"s_mov_b32 {s(S_TMP4)}, 0x3ff")
        e(f"s_cmp_eq_u32 {s(S_R)}, 1"); e(f"s_cselect_b32 {s(S_TMP4)}, 0xfffff, {s(S_TMP4)}")
        e(f"s_cmp_eq_u32 {s(S_R)}, 2"); e(f"s_cselect_b32 {s(S_TMP4)}, 0xffc00, {s(S_TMP4)}")
        e(f"s_cmp_eq_u32 {s(S_R)}, 3"); e(f"s_cselect_b32 {s(S_TMP4)}, 0x3ff00000, {s(S_TMP4)}")
        e("v_and_b32 v2, 1, v0"); e("v_add_u32 v2, 30, v2"); e("v_lshlrev_b32 v2, 3, v2")
        e("v_lshrrev_b32 v3, 1, v0"); e("v_or_b32 v2, v2, v3"); e("v_lshlrev_b32 v2, 7, v2")
        e("v_cmp_gt_u32 vcc, 12, v0")
        e("v_cndmask_b32 v8, 0, v2, vcc"); e("v_cndmask_b32 v9, 0, 2, vcc")
        self.poll(8, 9, 10)
        Lkq = self.L("L_kq")
        e(f"s_cmp_lt_u32 {s(S_I)}, 30"); e(f"s_cbranch_scc1 {Lkq}")
        self.kvflag_issue()
        self.kvflag_verify()
        self.lab(Lkq)
        self.poll_fb(4, S_TMP4)
        self.bar("BP4a")
        self.simple_bar_loop("B4", 10, "L_S4LOOP")
        self.bar("BE4")
        self.set_fb(5)
        e("s_branch L_P5")
        self.role = "X"
        self.lab("L_X4")
        self.bar("BP4a")
        e(f"s_lshl_b32 {s(S_TMP)}, {s(S_T0)}, 3")
        e(f"s_add_u32 {s(S_TMP)}, {s(S_TMP)}, {WS_ST2}")
        e("v_lshlrev_b32 v2, 3, v0")
        for ct in range(10):
            e(f"buffer_load_dwordx2 {v(8+2*ct,2)}, v2, {s(SRD_WS,4)}, {s(S_TMP)} offen sc1")
            e(f"s_add_u32 {s(S_TMP)}, {s(S_TMP)}, 16384")
        e(f"s_lshl_b32 {s(S_TMP)}, {s(S_N0)}, 2")
        e(f"s_add_u32 {s(S_TMP)}, {s(S_TMP)}, {WS_CS1}")
        e("v_lshlrev_b32 v3, 4, v0")
        e(f"s_mov_b32 m0, {LCS}")
        e("s_mov_b32 exec_hi, 0xffff")
        e(f"buffer_load_dwordx4 v3, {s(SRD_WS,4)}, {s(S_TMP)} offen sc1 lds")
        e("s_mov_b32 exec_hi, -1")
        self.bar("B40")
        e("s_waitcnt vmcnt(0)")
        for ct in range(1, 10):
            e(f"v_add_f32 v8, v8, {v(8+2*ct)}"); e(f"v_add_f32 v9, v9, {v(9+2*ct)}")
        e("v_mul_f32 v8, 0x3acccccd, v8"); e("v_mul_f32 v9, 0x3acccccd, v9")
        e("v_fma_f32 v9, -v8, v8, v9"); e("v_max_f32 v9, 0, v9"); e("v_add_f32 v9, 0x3727c5ac, v9")
        e("v_rsq_f32 v10, v9"); e("v_mul_f32 v11, -1.0, v8"); e("v_mul_f32 v11, v11, v10")
        e(f"v_add_u32 v2, {LST}, v2")
        e("ds_write_b64 v2, v[10:11]")
        e("s_waitcnt lgkmcnt(0)")
        e(f"s_mov_b32 {s(S_IT)}, 0")
        self.lab("L_X4LOOP")
        self.bar("B4loop")

        e(f"s_add_u32 {s(S_IT)}, {s(S_IT)}, 1")
        e(f"s_cmp_lt_u32 {s(S_IT)}, 10")
        e("s_cbranch_scc1 L_X4LOOP")
        self.bar("BE4")
        e("s_branch L_P5")
        self.role = "C"
        self.lab("L_C4")
        ACC = 64; FA_ = 112; FB_ = 136; VW = 8; VWc = 12; VB = 16; VBc = 17; CS = 144; PK = 192
        e("v_lshrrev_b32 v2, 5, v0"); e("v_bfe_u32 v3, v0, 2, 2")
        e("v_lshl_add_u32 v6, v2, 3, v3"); e("v_mul_u32_u24 v6, 384, v6")
        e("v_and_b32 v5, 1, v0"); e("v_lshl_add_u32 v6, v5, 3, v6")
        e("v_bfe_u32 v4, v0, 4, 1"); e("v_lshlrev_b32 v4, 1, v4"); e("v_bfe_u32 v5, v0, 1, 1"); e("v_or_b32 v4, v4, v5")
        e(f"s_and_b32 {s(S_TMP)}, {s(S_WV)}, 1"); e(f"s_mul_i32 {s(S_TMP)}, {s(S_TMP)}, 12")
        e(f"v_add_u32 v4, {s(S_TMP)}, v4")
        e("v_bfe_u32 v5, v0, 3, 1"); e("v_lshlrev_b32 v5, 2, v5")
        for f in range(3):
            e(f"v_add_u32 v7, {4*f}, v4"); e("v_xor_b32 v7, v7, v5")
            e(f"v_lshl_add_u32 {v(VW+f)}, v7, 4, v6")
        e(f"s_lshr_b32 {s(S_TMP)}, {s(S_WV)}, 1"); e(f"s_lshl_b32 {s(S_TMP)}, {s(S_TMP)}, 10")
        e(f"s_add_u32 {s(S_TMP)}, {s(S_TMP)}, 24576")
        e(f"v_lshl_add_u32 {v(VB)}, v0, 4, {s(S_TMP)}")
        for i in range(0, 48, 2): e(f"v_mov_b64 {v(ACC+i,2)}, 0")
        e("v_and_b32 v1, 31, v0")
        e(f"s_lshr_b32 {s(S_TMP)}, {s(S_WV)}, 1"); e(f"s_lshl_b32 {s(S_TMP)}, {s(S_TMP)}, 5")
        e(f"v_add_u32 v3, {s(S_TMP)}, v1")
        e(f"v_lshlrev_b32 v20, 3, v3"); e(f"v_add_u32 v20, {LST}, v20")
        e(f"v_add_u32 v3, {s(S_T0)}, v3")
        e(f"s_and_b32 {s(S_TMP)}, {s(S_WV)}, 1"); e(f"s_mul_i32 {s(S_TMP)}, {s(S_TMP)}, 96")
        e(f"s_lshl_b32 {s(S_TMP2)}, {s(S_TMP)}, 2"); e(f"s_add_u32 {s(S_TMP2)}, {s(S_TMP2)}, {LCS}")
        e(f"v_lshl_add_u32 v21, v2, 4, {s(S_TMP2)}")
        e(f"s_add_u32 {s(S_TMP)}, {s(S_TMP)}, {s(S_N0)}"); e(f"s_lshr_b32 {s(S_TMP)}, {s(S_TMP)}, 3")
        e(f"s_mov_b32 {s(S_KA)}, {s(S_TMP)}")
        e("v_mov_b32 v4, v2"); e("v_lshlrev_b32 v4, 15, v4")
        e("v_lshl_add_u32 v4, v3, 4, v4"); e(f"v_add_u32 v22, {WS_H1}, v4")
        def reads(ks, setn):
            fa = FA_ + 12 * setn; fb = FB_ + 4 * setn
            o = []
            for f in range(3):
                for u in range(2):
                    o.append(f"ds_read_b64_tr_b16 {v(fa+4*f+2*u,2)}, {v(VWc+f)} offset:{ks*6144+u*1536}")
            o.append(f"ds_read_b128 {v(fb,4)}, {v(VBc)} offset:{ks*2048}")
            return [o[6], o[0], o[1], o[2], o[3], o[4], o[5]]
        def mf(setn):
            fa = FA_ + 12 * setn; fb = FB_ + 4 * setn
            return [f"v_mfma_f32_32x32x16_bf16 {v(ACC+16*f,16)}, {v(fa+4*f,4)}, {v(fb,4)}, {v(ACC+16*f,16)}" for f in range(3)]
        def upd():
            return [f"v_add_u32 {v(VWc+f)}, {s(S_SLOT)}, {v(VW+f)}" for f in range(3)] + [f"v_add_u32 {v(VBc)}, {s(S_SLOT)}, {v(VB)}"]
        e(f"s_mov_b32 {s(S_SLOT)}, 0"); e(f"s_mov_b32 {s(S_IT)}, 0")
        for t in upd(): e(t)
        self.bar("BP4a")
        self.stamp("C4go")
        self.bar("B40")
        for t in reads(0, 0): e(t)
        self.lab("L_C4LOOP")
        for ks in range(3):
            r = reads(ks + 1, (ks + 1) & 1); m = mf(ks & 1)
            e("s_waitcnt lgkmcnt(0)")
            e(m[0]); e(r[0]); e(r[1]); e(r[2]); e(m[1]); e(r[3]); e(r[4]); e(r[5]); e(r[6])
            if ks == 2:
                e(f"s_add_u32 {s(S_SLOT)}, {s(S_SLOT)}, 32768")
                e(f"s_and_b32 {s(S_SLOT)}, {s(S_SLOT)}, {4*32768-1}")
            e(m[2])
            if ks == 2:
                for t in upd(): e(t)
        m = mf(1); r = reads(0, 0)
        e("s_waitcnt lgkmcnt(0)")
        self.itstamp(252, "B4")
        self.bar("B4loop")
        self.itstamp(253, "B4")
        e(m[0]); e(r[0]); e(r[1]); e(r[2]); e(m[1]); e(r[3]); e(r[4]); e(r[5]); e(r[6]); e(m[2])
        e(f"s_add_u32 {s(S_IT)}, {s(S_IT)}, 1")
        e(f"s_cmp_lt_u32 {s(S_IT)}, 10")
        e("s_cbranch_scc1 L_C4LOOP")
        self.stamp("C4loop")
        e("s_waitcnt lgkmcnt(0)")
        e("ds_read_b64 v[24:25], v20")
        for f in range(3):
            for j in range(4):
                e(f"ds_read_b128 {v(CS+16*f+4*j,4)}, v21 offset:{(32*f+8*j)*4}")
        e("s_waitcnt lgkmcnt(0)")
        e("v_mul_f32 v26, 0xbfb8aa3b, v24")
        e("v_mul_f32 v27, 0xbfb8aa3b, v25")
        e("v_mov_b32 v28, 1.0"); e("v_mov_b32 v29, 1.0")
        stores = []
        for f in range(3):
            d = ACC + 16 * f; c = CS + 16 * f
            for i in range(0, 16, 2):
                e(f"v_pk_mul_f32 {v(d+i,2)}, {v(d+i,2)}, v[24:25] op_sel_hi:[1,0]")
            for i in range(0, 16, 2):
                e(f"v_pk_fma_f32 {v(d+i,2)}, {v(c+i,2)}, v[24:25], {v(d+i,2)} op_sel:[0,1,0] op_sel_hi:[1,1,1]")
            for i in range(16):
                e(f"v_mul_f32 {v(c+i)}, 0xbfb8aa3b, {v(d+i)}")
            for i in range(16):
                e(f"v_exp_f32 {v(c+i)}, {v(c+i)}")
            for i in range(0, 16, 2):
                e(f"v_pk_add_f32 {v(c+i,2)}, {v(c+i,2)}, v[28:29]")
            for i in range(16):
                e(f"v_rcp_f32 {v(c+i)}, {v(c+i)}")
            for i in range(0, 16, 2):
                e(f"v_pk_mul_f32 {v(d+i,2)}, {v(d+i,2)}, {v(c+i,2)}")
            for t in range(2):
                p = PK + 8 * f + 4 * t
                for q in range(4):
                    e(f"v_cvt_pk_bf16_f32 {v(p+q)}, {v(d+8*t+2*q)}, {v(d+8*t+2*q+1)}")
            sts = []
            for t in range(2):
                p = PK + 8 * f + 4 * t
                sts.append(f"s_add_u32 {s(S_TMP)}, {s(S_KA)}, {4*f+2*t}")
                sts.append(f"s_cmp_ge_u32 {s(S_TMP)}, 80")
                sts.append(f"s_cselect_b32 {s(S_TMP2)}, 80, 0")
                sts.append(f"s_add_u32 {s(S_TMP)}, {s(S_TMP)}, {s(S_TMP2)}")
                sts.append(f"s_lshl_b32 {s(S_TMP)}, {s(S_TMP)}, 15")
                sts.append(f"buffer_store_dwordx4 {v(p,4)}, v22, {s(SRD_WS,4)}, {s(S_TMP)} offen")
            self.store_mode(sts)
        self.stamp("C4st")
        e("s_waitcnt vmcnt(0)")
        self.bar("BE4")
        self.stamp("C4end")
        e("s_branch L_P5")

    def dma_group(self, items, base):
        e = self.e
        prev = None
        for (vg_, srd, so, lo, sc1) in items:
            if prev is None:
                e(f"s_add_u32 m0, {s(base)}, {lo}")
            elif lo - prev == 1024:
                e(f"s_add_u32 m0, m0, {s(S_C1024)}")
            else:
                e(f"s_add_u32 m0, m0, {lo - prev}")
            prev = lo
            e(f"buffer_load_dwordx4 {v(vg_)}, {s(srd,4)}, {s(so)} offen{' sc1' if sc1 else ''} lds")

    def ring_pre(self, wit, wadv, slot_bytes, nslot=4, split=None, between=None):
        e = self.e
        for st in range(nslot):
            e(f"s_add_u32 {s(S_TMP)}, {s(S_TMP3)}, {st*slot_bytes}")
            self.dma_group(wit, S_TMP)
            e(f"s_add_u32 {s(S_KW)}, {s(S_KW)}, {wadv}")
            if between and st in between: between[st]()

    def ring_main(self, wit, ait, wadv, aadv, nst, slot_bytes, tag, lab, nslot=4, jump=None):
        e = self.e
        nw, na = len(wit), len(ait); per = nw + na
        for st in range(nslot):
            e(f"s_add_u32 {s(S_TMP)}, {s(S_TMP4)}, {st*slot_bytes}")
            self.dma_group(ait, S_TMP)
            e(f"s_add_u32 {s(S_KA)}, {s(S_KA)}, {aadv}")
            if st == 1:
                e(f"s_waitcnt vmcnt({na})")
                self.bar(tag + "0")
        e(f"s_mov_b32 {s(S_IT)}, 0")
        e(f"s_mov_b32 {s(S_FILL)}, 0")
        self.lab(lab)
        Lw = [self.L("L_rw") for _ in range(5)]; Lt = self.L("L_t"); Ls = self.L("L_s")
        self.itstamp(250, tag)
        e(f"s_cmp_eq_u32 {s(S_IT)}, 0"); e(f"s_cbranch_scc1 {Lw[0]}")
        e(f"s_cmp_eq_u32 {s(S_IT)}, 1"); e(f"s_cbranch_scc1 {Lw[1]}")
        e(f"s_cmp_eq_u32 {s(S_IT)}, {nst-3}"); e(f"s_cbranch_scc1 {Lw[2]}")
        e(f"s_cmp_gt_u32 {s(S_IT)}, {nst-3}"); e(f"s_cbranch_scc1 {Lw[3]}")
        e(f"s_waitcnt vmcnt({min(63, 2*per)})"); e(f"s_branch {Lt}")
        self.lab(Lw[0]); e(f"s_waitcnt vmcnt({2*na})"); e(f"s_branch {Lt}")
        self.lab(Lw[1]); e(f"s_waitcnt vmcnt({na+per})"); e(f"s_branch {Lt}")
        self.lab(Lw[2]); e(f"s_waitcnt vmcnt({per})"); e(f"s_branch {Lt}")
        self.lab(Lw[3]); e("s_waitcnt vmcnt(0)")
        self.lab(Lt)
        self.itstamp(251, tag)
        self.bar(tag + "loop")
        self.itstamp(252, tag)
        e(f"s_cmp_gt_u32 {s(S_IT)}, {nst-nslot-1}")
        e(f"s_cbranch_scc1 {Ls}")
        e(f"s_add_u32 {s(S_TMP)}, {s(S_TMP4)}, {s(S_FILL)}")
        self.dma_group(ait, S_TMP)
        e(f"s_add_u32 {s(S_TMP)}, {s(S_TMP3)}, {s(S_FILL)}")
        self.dma_group(wit, S_TMP)
        e(f"s_add_u32 {s(S_KA)}, {s(S_KA)}, {aadv}")
        e(f"s_add_u32 {s(S_KW)}, {s(S_KW)}, {wadv}")
        if jump:
            Lj = self.L("L_jp")
            e(f"s_cmp_lg_u32 {s(S_IT)}, {jump[0]}"); e(f"s_cbranch_scc1 {Lj}")
            e(f"s_add_u32 {s(S_KA)}, {s(S_KA)}, {jump[1]}")
            self.lab(Lj)
        self.lab(Ls)
        self.itstamp(253, tag)
        e(f"s_add_u32 {s(S_FILL)}, {s(S_FILL)}, {slot_bytes}")
        e(f"s_cmp_eq_u32 {s(S_FILL)}, {nslot*slot_bytes}")
        e(f"s_cselect_b32 {s(S_FILL)}, 0, {s(S_FILL)}")
        e(f"s_add_u32 {s(S_IT)}, {s(S_IT)}, 1")
        e(f"s_cmp_lt_u32 {s(S_IT)}, {nst}")
        e(f"s_cbranch_scc1 {lab}")

    def l4_setup(self):
        e = self.e
        e(f"s_lshr_b32 {s(S_R)}, {s(S_I)}, 3")
        e(f"s_and_b32 {s(S_T)}, {s(S_I)}, 7")
        e(f"s_lshl_b32 {s(S_T0)}, {s(S_G)}, 8")
        e(f"s_lshl_b32 {s(S_TMP)}, {s(S_R)}, 6")
        e(f"s_add_u32 {s(S_T0)}, {s(S_T0)}, {s(S_TMP)}")
        e(f"s_mul_i32 {s(S_N0)}, {s(S_T)}, 192")
        for ev in range(3):
            e(f"v_add_u32 v2, {64*ev}, v0")
            e("v_mul_u32_u24 v3, 171, v2"); e("v_lshrrev_b32 v3, 12, v3")
            e("v_mul_u32_u24 v4, 24, v3"); e("v_sub_u32 v4, v2, v4")
            e("v_bfe_u32 v5, v3, 1, 1"); e("v_lshlrev_b32 v5, 2, v5"); e("v_xor_b32 v4, v4, v5")
            e("v_and_b32 v5, 3, v3"); e("v_lshrrev_b32 v6, 2, v3"); e("v_lshl_add_u32 v5, v6, 3, v5")
            e("v_mul_u32_u24 v5, 3072, v5")
            e(f"v_lshl_add_u32 {v(8+ev)}, v4, 4, v5")
        for m in range(1, 4):
            roff = (16 * (m >> 1) + 4 * (m & 1)) * 3072
            for ev in range(3):
                e(f"v_add_u32 {v(8+3*m+ev)}, {roff}, {v(8+ev)}")
        e("v_lshrrev_b32 v2, 5, v0"); e("v_and_b32 v3, 31, v0")
        e("v_lshlrev_b32 v2, 15, v2")
        e("v_lshl_add_u32 v20, v3, 4, v2")
        for idx in range(1, 4):
            e(f"v_add_u32 {v(20+idx)}, {(idx>>1)*2*CH + (idx&1)*512}, v20")
        e(f"s_and_b32 {s(S_IT)}, {s(S_WV)}, 1")
        e(f"s_lshl_b32 {s(S_TMP)}, {s(S_N0)}, 1")
        self.srd(SRD_W, S_W1, S_TMP, 640 * 3072)
        e(f"s_mul_i32 {s(S_KW)}, {s(S_IT)}, {32*3072}")
        e(f"s_lshl_b32 {s(S_KA)}, {s(S_T0)}, 4")
        e(f"s_add_u32 {s(S_KA)}, {s(S_KA)}, {WS_H}")
        e(f"s_mul_i32 {s(S_TMP)}, {s(S_IT)}, {4*CH}")
        e(f"s_add_u32 {s(S_KA)}, {s(S_KA)}, {s(S_TMP)}")
        e(f"s_mul_i32 {s(S_TMP3)}, {s(S_IT)}, 12288")
        e(f"s_lshl_b32 {s(S_TMP4)}, {s(S_IT)}, 12")
        e(f"s_add_u32 {s(S_TMP4)}, {s(S_TMP4)}, 24576")
        wit = [(8 + q, SRD_W, S_KW, q * 1024, False) for q in range(12)]
        ait = [(20 + q, SRD_WS, S_KA, q * 1024, True) for q in range(4)]
        return wit, ait

    def l5_setup(self):
        e = self.e
        self.p3_decode()
        self.wrow_voffsets(8, None, 1280)
        for m in range(1, 8):
            e(f"v_add_u32 {v(8+m)}, {(16*(m>>1)+4*(m&1))*1280}, v8")
        e("v_lshrrev_b32 v2, 5, v0"); e("v_and_b32 v3, 31, v0")
        e("v_lshlrev_b32 v2, 15, v2")
        e("v_lshl_add_u32 v20, v3, 4, v2")
        for idx in range(1, 12):
            e(f"v_add_u32 {v(20+idx)}, {(idx//3)*2*CH + (idx%3)*512}, v20")
        e(f"s_and_b32 {s(S_IT)}, {s(S_WV)}, 1")
        e(f"s_lshl_b32 {s(S_TMP)}, {s(S_T)}, 7")
        self.srd(SRD_W, S_W2, S_TMP, 1536 * 1280)
        e(f"s_mul_i32 {s(S_KW)}, {s(S_IT)}, {64*1280}")
        e(f"s_lshl_b32 {s(S_KA)}, {s(S_T0)}, 4")
        e(f"s_add_u32 {s(S_KA)}, {s(S_KA)}, {WS_H1}")
        e(f"s_mul_i32 {s(S_TMP)}, {s(S_IT)}, {8*CH}")
        e(f"s_add_u32 {s(S_KA)}, {s(S_KA)}, {s(S_TMP)}")
        e(f"s_lshl_b32 {s(S_TMP3)}, {s(S_IT)}, 13")
        e(f"s_mul_i32 {s(S_TMP4)}, {s(S_IT)}, 12288")
        e(f"s_add_u32 {s(S_TMP4)}, {s(S_TMP4)}, 16384")
        wit = [(8 + q, SRD_W, S_KW, q * 1024, False) for q in range(8)]
        ait = [(20 + q, SRD_WS, S_KA, q * 1024, True) for q in range(12)]
        return wit, ait

    def phase5(self):
        e = self.e
        self.role = "P5"
        self.lab("L_P5")
        e(f"s_cmp_ge_u32 {s(S_I)}, 30")
        e("s_cbranch_scc1 L_FIN")
        self.p3_decode()
        self.role_dispatch(5)
        SL = 40960
        self.role = "L"
        e("s_endpgm")
        self.lab("L_L5B")
        self.bar("BP5a")
        self.stamp("L5go")
        self.ring_main(self.wit5, self.ait5, 0 if self.exp & 16 else 128 * 1280, 0 if self.exp & 32 else 16 * CH, 12, SL, "B5", "L_L5LOOP", jump=(0, 80 * CH))
        self.bar("BR5")
        e("s_branch L_FIN")
        self.role = "S"
        self.lab("L_S5")
        e(f"s_mov_b32 {s(S_TMP4)}, 0xffff")
        e(f"s_cmp_eq_u32 {s(S_R)}, 1"); e(f"s_cselect_b32 {s(S_TMP4)}, 0xffff00, {s(S_TMP4)}")
        e(f"s_cmp_eq_u32 {s(S_R)}, 2"); e(f"s_cselect_b32 {s(S_TMP4)}, 0xff000000, {s(S_TMP4)}")
        self.poll_fb(5, S_TMP4)
        self.bar("BP5a")
        self.simple_bar_loop("B5", 12, "L_S5LOOP")
        self.bar("BR5")
        e("s_branch L_FIN")
        self.role = "X"
        self.lab("L_X5")
        self.bar("BP5a")
        self.simple_bar_loop("B5", 12, "L_X5LOOP")
        self.bar("BR5")
        e("s_branch L_FIN")
        self.role = "C"
        self.lab("L_C5")
        ACC = 64; FA_ = 112; FB_ = 120; VW = 16; VB = 18; RED = 160
        HR = self.HRES
        e("v_and_b32 v1, 31, v0")
        e(f"v_add_u32 v3, {s(S_T0)}, v1")
        e("v_mul_u32_u24 v4, 1280, v3")
        e(f"s_lshl_b32 {s(S_TMP)}, {s(S_T)}, 6")
        e(f"s_and_b32 {s(S_TMP2)}, {s(S_WV)}, 1"); e(f"s_lshl_b32 {s(S_TMP2)}, {s(S_TMP2)}, 5")
        e(f"s_add_u32 {s(S_TMP)}, {s(S_TMP)}, {s(S_TMP2)}")
        e(f"s_lshr_b32 {s(S_TMP2)}, {s(S_WV)}, 1"); e(f"s_lshl_b32 {s(S_TMP2)}, {s(S_TMP2)}, 4")
        e(f"s_add_u32 {s(S_N0)}, {s(S_TMP)}, {s(S_TMP2)}")
        e("v_lshrrev_b32 v2, 5, v0")
        e(f"v_lshl_add_u32 v5, v2, 3, {s(S_N0)}")
        e("v_lshl_add_u32 v20, v5, 1, v4")
        self.srd(SRD_T, S_OUT, size=2048 * 1280)
        self.frag_addr_w128(VW, 1024, 0)
        e(f"s_lshr_b32 {s(S_TMP)}, {s(S_WV)}, 1")
        e(f"s_lshl_b32 {s(S_TMP2)}, {s(S_TMP)}, 11")
        e(f"v_add_u32 {v(VW)}, {s(S_TMP2)}, {v(VW)}")
        e(f"s_mul_i32 {s(S_TMP)}, {s(S_TMP)}, 3072")
        e(f"s_add_u32 {s(S_TMP)}, {s(S_TMP)}, 16384")
        e(f"v_lshl_add_u32 {v(VB)}, v0, 4, {s(S_TMP)}")
        for i in range(0, 48, 2): e(f"v_mov_b64 {v(ACC+i,2)}, 0")
        self.bar("BP5a")
        self.stamp("C5go")
        self.gemm96_loop("B5", 12, SL, 4, 0, 0, 2048, VW, VB, ACC, FA_, FB_, wres=False)
        self.stamp("C5loop")
        sv = list(self.bars["C"])
        self.pair_reduce(ACC, 0, RED)
        self.bars["C"] = sv + ["BR5"]
        for tt in range(3):
            for q in range(4):
                x = HR + 4 * tt + q; d = RED + 8 * tt + 2 * q
                e(f"v_lshlrev_b32 v2, 16, {v(x)}")
                e(f"v_and_b32 v3, 0xffff0000, {v(x)}")
                e(f"v_add_f32 {v(d)}, {v(d)}, v2")
                e(f"v_add_f32 {v(d+1)}, {v(d+1)}, v3")
                e(f"v_cvt_pk_bf16_f32 {v(24+4*tt+q)}, {v(d)}, {v(d+1)}")
            e(f"v_permlane32_swap_b32 {v(24+4*tt)}, {v(24+4*tt+2)}")
            e(f"v_permlane32_swap_b32 {v(24+4*tt+1)}, {v(24+4*tt+3)}")
            if tt == 2:
                Ls = self.L("L_c5s")
                e(f"s_cmp_eq_u32 {s(S_R)}, 2"); e(f"s_cbranch_scc1 {Ls}")
            e(f"s_mov_b32 {s(S_TMP)}, {tt*32*1280}")
            e(f"buffer_store_dwordx4 {v(24+4*tt,4)}, v20, {s(SRD_T,4)}, {s(S_TMP)} offen")
            if tt == 2: self.lab(Ls)
        self.stamp("C5end")
        e("s_branch L_FIN")

    def colsum_role(self):
        e = self.e
        self.role = "CS"
        self.lab("L_COLSUM")
        e("s_waitcnt lgkmcnt(0)")
        self.srd(SRD_WS, S_WS, size=WS_SIZE)
        e(f"s_getreg_b32 {s(S_XCC)}, hwreg(HW_REG_XCC_ID, 0, 4)")
        e(f"s_lshl_b32 {s(S_T)}, {s(S_G)}, 1")
        e(f"s_add_u32 {s(S_T)}, {s(S_T)}, {s(S_I)}")
        e(f"s_sub_u32 {s(S_T)}, {s(S_T)}, 30")
        Lw = self.L("L_w")
        e(f"s_cmp_lg_u32 {s(S_WV)}, 6")
        e(f"s_cbranch_scc1 {Lw}")
        self.clear_flags()
        e("s_waitcnt vmcnt(0)")
        if not (self.exp & 4): self.handshake_store()
        self.lab(Lw)
        e(f"s_mov_b32 {s(S_FILL)}, 0")
        e(f"s_cmp_ge_u32 {s(S_T)}, 15"); e("s_cbranch_scc1 L_CS_DONE")
        e(f"s_lshl_b32 {s(S_TMP)}, {s(S_T)}, 8")
        self.srd(SRD_W, S_WQKV, S_TMP, 640 * 3840)
        e(f"s_mov_b32 {s(S_N0)}, 3840"); e(f"s_mov_b32 {s(S_R)}, {WS_CSQ}")
        e("s_branch L_CS_BODY")
        self.lab("L_CS1")
        e(f"s_lshl_b32 {s(S_T)}, {s(S_G)}, 1")
        e(f"s_add_u32 {s(S_T)}, {s(S_T)}, {s(S_I)}")
        e(f"s_sub_u32 {s(S_T)}, {s(S_T)}, 30")
        e(f"s_mov_b32 {s(S_FILL)}, 1")
        e(f"s_cmp_ge_u32 {s(S_T)}, 12"); e("s_cbranch_scc1 L_CS_DONE")
        e(f"s_lshl_b32 {s(S_TMP)}, {s(S_T)}, 8")
        self.srd(SRD_W, S_W1, S_TMP, 640 * 3072)
        e(f"s_mov_b32 {s(S_N0)}, 3072"); e(f"s_mov_b32 {s(S_R)}, {WS_CS1}")
        self.lab("L_CS_BODY")
        e("v_lshrrev_b32 v1, 4, v0")
        e(f"s_lshl_b32 {s(S_TMP)}, {s(S_WV)}, 2")
        e(f"v_add_u32 v1, {s(S_TMP)}, v1")
        e(f"v_mul_lo_u32 v2, v1, {s(S_N0)}")
        e("v_and_b32 v3, 15, v0")
        e("v_lshl_add_u32 v2, v3, 4, v2")
        for i in range(8): e(f"v_mov_b32 {v(8+i)}, 0")
        e(f"s_mov_b32 {s(S_KW)}, 0")
        e(f"s_lshl_b32 {s(S_KA)}, {s(S_N0)}, 5")
        NB = 20
        for b in range(NB):
            e(f"buffer_load_dwordx4 {v(32+4*b,4)}, v2, {s(SRD_W,4)}, {s(S_KW)} offen")
            e(f"s_add_u32 {s(S_KW)}, {s(S_KW)}, {s(S_KA)}")
        for b in range(NB):
            if b % 4 == 0: e(f"s_waitcnt vmcnt({NB-4-b})")
            for q in range(4):
                e(f"v_lshlrev_b32 v4, 16, {v(32+4*b+q)}")
                e(f"v_and_b32 v5, 0xffff0000, {v(32+4*b+q)}")
                e(f"v_add_f32 {v(8+2*q)}, {v(8+2*q)}, v4")
                e(f"v_add_f32 {v(8+2*q+1)}, {v(8+2*q+1)}, v5")
        e("v_lshlrev_b32 v4, 9, v1")
        e("v_lshl_add_u32 v4, v3, 5, v4")
        e("ds_write_b128 v4, v[8:11]")
        e("ds_write_b128 v4, v[12:15] offset:16")
        e("s_waitcnt lgkmcnt(0)")
        e("s_barrier")
        Lw = self.L("L_w")
        e(f"s_cmp_ge_u32 {s(S_WV)}, 2")
        e(f"s_cbranch_scc1 {Lw}")
        e(f"s_lshl_b32 {s(S_TMP)}, {s(S_WV)}, 6")
        e(f"v_add_u32 v1, {s(S_TMP)}, v0")
        e("v_lshlrev_b32 v2, 2, v1")
        for k in range(32):
            e(f"ds_read_b32 {v(32+k)}, v2 offset:{512*k}")
        e("s_waitcnt lgkmcnt(0)")
        for k in range(1, 32):
            e(f"v_add_f32 v32, v32, {v(32+k)}")
        e(f"s_lshl_b32 {s(S_TMP)}, {s(S_T)}, 9")
        e(f"s_add_u32 {s(S_TMP)}, {s(S_TMP)}, {s(S_R)}")
        e(f"v_add_u32 v2, {s(S_TMP)}, v2")
        e(f"buffer_store_dword v32, v2, {s(SRD_WS,4)}, 0 offen sc1")
        e("s_waitcnt vmcnt(0)")
        self.lab(Lw)
        e("s_barrier")
        self.lab("L_CS_DONE")
        Lw = self.L("L_w"); Lz = self.L("L_w")
        e(f"s_cmp_lg_u32 {s(S_WV)}, 6")
        e(f"s_cbranch_scc1 {Lw}")
        e(f"s_cmp_eq_u32 {s(S_FILL)}, 1"); e(f"s_cbranch_scc1 {Lz}")
        self.set_fa(1)
        self.s_hs_issue(first=True)
        self.s_hs_verify()
        self.s_hs_all()
        e(f"s_branch {Lw}")
        self.lab(Lz)
        self.set_fa(2)
        self.lab(Lw)
        e(f"s_cmp_eq_u32 {s(S_FILL)}, 1"); e("s_cbranch_scc1 L_P4")
        e("s_branch L_P2")

    def finish(self):
        e = self.e
        self.lab("L_FIN")
        if self.prof:
            e("s_memtime s[98:99]")
            e("s_waitcnt lgkmcnt(0)")
            e("v_writelane_b32 v255, s98, 63")
            e("s_memrealtime s[98:99]")
            e("s_waitcnt lgkmcnt(0)")
            e("v_writelane_b32 v255, s98, 62")
            e(f"s_lshl_b32 {s(S_TMP)}, s2, 11")
            e(f"s_lshl_b32 {s(S_TMP2)}, {s(S_WV)}, 8")
            e(f"s_add_u32 {s(S_TMP)}, {s(S_TMP)}, {s(S_TMP2)}")
            e(f"s_add_u32 {s(S_TMP)}, {s(S_TMP)}, {WS_PROF}")
            e("v_mbcnt_lo_u32_b32 v1, -1, 0")
            e("v_mbcnt_hi_u32_b32 v1, -1, v1")
            e("v_lshlrev_b32 v1, 2, v1")
            e(f"buffer_store_dword v255, v1, {s(SRD_WS,4)}, {s(S_TMP)} offen")
            if self.itphase:
                for q in range(4):
                    e(f"s_add_u32 {s(S_TMP)}, {s(S_TMP)}, {0x80000}")
                    e(f"buffer_store_dword v{250+q}, v1, {s(SRD_WS,4)}, {s(S_TMP)} offen")
        self.lab("L_END")
        e("s_endpgm")
        self.lab("L_CODE_END")

    def build(self):
        self.entry()
        self.p1_loader()
        self.p1_sync()
        self.p1_aux()
        self.p1_compute()
        self.colsum_role()
        self.phase2()
        self.bars_p1 = {r: list(self.bars[r]) for r in ("C", "L", "S", "X")}
        self.phase3()
        self.phase4()
        self.phase5()
        self.finish()
        def norm(lst):
            out = []
            for b in lst:
                if out and out[-1] == b and b.endswith("loop"): continue
                out.append(b)
            return out
        ref = norm(self.bars["C"])
        for r in ("L", "S", "X"):
            assert norm(self.bars[r]) == ref, (r, norm(self.bars[r]), ref)
        body = self.A.finalize()
        hdr = open("cdna_kernels/" + NAME + ".s.ref").read().split("; Override")[0]
        out = hdr + "; @launch grid=(256,1,1) block=(512,1,1) lds=163840\n"
        out += '.amdgcn_target "amdgcn-amd-amdhsa--gfx950"\n.text\n'
        k = NAME + "_kernel"
        out += f".globl {k}\n.p2align 8\n.type {k},@function\n{k}:\n"
        out += body
        out += f""".section .rodata,"a"
.p2align 6
.amdhsa_kernel {k}
  .amdhsa_next_free_vgpr 256
  .amdhsa_next_free_sgpr 102
  .amdhsa_accum_offset 256
  .amdhsa_group_segment_fixed_size 0
  .amdhsa_kernarg_size 72
  .amdhsa_user_sgpr_count 2
  .amdhsa_user_sgpr_kernarg_segment_ptr 1
  .amdhsa_system_sgpr_workgroup_id_x 1
  .amdhsa_float_denorm_mode_32 3
.end_amdhsa_kernel
"""
        return out

if __name__ == "__main__":
    import argparse, subprocess
    ap = argparse.ArgumentParser()
    ap.add_argument("-o", default="k.s")
    ap.add_argument("--stop", type=int, default=99)
    ap.add_argument("--prof", action="store_true")
    ap.add_argument("--exp", type=int, default=0)
    ap.add_argument("--itphase", default=None)
    ap.add_argument("--h1it", type=int, default=5)
    a_ = ap.parse_args()
    g = Gen(stop=a_.stop, prof=a_.prof); g.exp = a_.exp; g.itphase = a_.itphase; g.h1it = a_.h1it
    txt = g.build()
    open(a_.o, "w").write(txt)
    print("nops inserted:", g.A.nops_inserted, "lines:", txt.count("\n"), "stamps:", g.stampnames)
    import json; json.dump(g.stampnames, open(a_.o + ".stamps.json", "w"))
    r = subprocess.run(["clang", "-x", "assembler", "-target", "amdgcn-amd-amdhsa", "-mcpu=gfx950", "-c", a_.o, "-o", "k.o"], capture_output=True, text=True)
    if r.returncode: print(r.stderr[:3000]); sys.exit(1)
    r = subprocess.run("llvm-objdump -h k.o | grep text", shell=True, capture_output=True, text=True); print(r.stdout.strip())
```

```python
import sys
from asmgen import *

NAME = "sequential_preLN__sliding_block__dense_activation_silu__prompt"

WS_FA    = 0x0; WS_FB = 0x8000; WS_ST1 = 0x10000; WS_CSQ = 0x14000; WS_CS1 = 0x16000; WS_ST2 = 0x20000
WS_QKV   = 0x100000; WS_O = WS_QKV; WS_H = WS_QKV + 80 * 32768; WS_H1 = WS_QKV; WS_PROF = 0x2000000
WS_SIZE  = 0x10000000
CH = 2048 * 16
NSLOT = 4
PL = 6208
LDS_K = 0; LDS_V = 5 * PL; LDS_ONES = 10 * PL
LDS_ST1 = 69632
LDS_CSQ = LDS_ST1 + 1024
LDS_CTRL = 71680
LDS_P3ST = 155648
LDS_P4ST = 161792
LDS_WO = 81920

S_X, S_WQKV, S_WO, S_BX, S_W1, S_W2, S_OUT, S_DBG, S_WS = 4, 6, 8, 10, 12, 14, 16, 18, 20
SRD_A, SRD_W, SRD_WS, SRD_T = 24, 28, 32, 36
S_G, S_I, S_WV, S_T0, S_N0, S_R, S_T = 40, 41, 42, 43, 44, 45, 46
S_KA, S_KW, S_SLOT, S_FILL, S_IT, S_TMP, S_TMP2, S_TMP3 = 47, 48, 49, 50, 51, 52, 53, 54
S_XCC, S_MODE = 55, 56
S_EX = 58; S_M = 60; S_C1024 = 62; S_TMP4 = 63
S_STAMP = 64
SH = 64

class Gen:
    def __init__(self, stop=99, prof=False):
        self.A = Asm(); self.stop = stop; self.prof = prof
        self.nstamp = {}; self.role = None; self.exp = 0; self.itphase = None; self.h1it = 5
        self.bars = {}
        self.stampnames = {}

    def e(self, t): self.A.e(t)
    def L(self, p="L"): return self.A.newlabel(p)
    def lab(self, n): self.A.label(n)

    def bar(self, name):
        self.bars.setdefault(self.role, []).append(name)
        self.e("s_barrier")

    def stamp(self, name=None):
        if not self.prof: return
        n = self.nstamp.get(self.role, {"P2": 16, "P3": 30, "P4": 34, "P5": 40}.get(self.role, 1))
        assert n < 60
        self.e("s_memtime s[98:99]")
        self.e("s_waitcnt lgkmcnt(0)")
        self.e(f"v_writelane_b32 v255, s98, {n}")
        self.stampnames.setdefault(self.role, []).append(name or f"s{n}")
        self.nstamp[self.role] = n + 1

    def itstamp(self, vreg, tag="B1"):
        if not self.prof or self.itphase != tag: return
        e = self.e
        e("s_memtime s[96:97]"); e("s_waitcnt lgkmcnt(0)"); e(f"s_mov_b32 m0, {s(S_IT)}"); e("s_nop 1"); e(f"v_writelane_b32 {v(vreg)}, s96, m0")

    def srd(self, q, ptr, off_sgpr=None, size=None, off_imm=0):
        e = self.e
        if off_sgpr is not None:
            e(f"s_add_u32 {s(q)}, {s(ptr)}, {s(off_sgpr)}")
            e(f"s_addc_u32 {s(q+1)}, {s(ptr+1)}, 0")
        else:
            e(f"s_mov_b32 {s(q)}, {s(ptr)}"); e(f"s_mov_b32 {s(q+1)}, {s(ptr+1)}")
        if off_imm:
            e(f"s_add_u32 {s(q)}, {s(q)}, {off_imm}"); e(f"s_addc_u32 {s(q+1)}, {s(q+1)}, 0")
        if off_sgpr is not None: e(f"s_sub_u32 {s(q+2)}, {size - off_imm}, {s(off_sgpr)}")
        else: e(f"s_mov_b32 {s(q+2)}, {size - off_imm}")
        e(f"s_mov_b32 {s(q+3)}, 0x20000")

    def p1_decode(self):
        e = self.e
        e(f"s_cmp_ge_u32 {s(S_I)}, 15")
        e(f"s_cselect_b32 {s(S_R)}, 1, 0")
        e(f"s_mul_i32 {s(S_TMP)}, {s(S_R)}, 15")
        e(f"s_sub_u32 {s(S_T)}, {s(S_I)}, {s(S_TMP)}")
        e(f"s_lshl_b32 {s(S_T0)}, {s(S_G)}, 8")
        e(f"s_lshl_b32 {s(S_TMP)}, {s(S_R)}, 7")
        e(f"s_add_u32 {s(S_T0)}, {s(S_T0)}, {s(S_TMP)}")
        e(f"s_lshl_b32 {s(S_N0)}, {s(S_T)}, 7")

    def clear_flags(self):
        e = self.e
        e("v_mov_b32 v2, 0")
        e(f"s_lshl_b32 {s(S_TMP)}, s2, 7")
        e(f"v_mov_b32 v3, {s(S_TMP)}")
        e(f"s_lshl_b32 {s(S_TMP)}, {s(S_G)}, 8")
        e(f"s_lshl_b32 {s(S_TMP2)}, {s(S_I)}, 2")
        e(f"s_add_u32 {s(S_TMP)}, {s(S_TMP)}, {s(S_TMP2)}")
        e(f"s_add_u32 {s(S_TMP)}, {s(S_TMP)}, {WS_FB}")
        e(f"v_mov_b32 v4, {s(S_TMP)}")
        e("v_cmp_eq_u32 vcc, 0, v0")
        e("v_cndmask_b32 v3, v4, v3, vcc")
        e("s_mov_b64 exec, 3")
        e(f"buffer_store_dword v2, v3, {s(SRD_WS,4)}, 0 offen sc1")
        e("s_mov_b64 exec, -1")

    def handshake_store(self):
        e = self.e
        e(f"s_lshl_b32 {s(S_TMP)}, {s(S_G)}, 5")
        e(f"s_add_u32 {s(S_TMP)}, {s(S_TMP)}, {s(S_I)}")
        e(f"s_and_b32 {s(S_TMP2)}, {s(S_TMP)}, 3")
        e(f"s_lshl_b32 {s(S_TMP2)}, {s(S_TMP2)}, 3")
        e(f"s_and_b32 {s(S_TMP)}, {s(S_TMP)}, 0xfc")
        e(f"s_or_b32 {s(S_TMP4)}, {s(S_XCC)}, 0x80")
        e(f"s_lshl_b32 {s(S_TMP4)}, {s(S_TMP4)}, {s(S_TMP2)}")
        e(f"s_atomic_or {s(S_TMP4)}, {s(S_DBG,2)}, {s(S_TMP)}")

    def set_fa(self, val):
        e = self.e
        e(f"s_lshl_b32 {s(S_TMP)}, s2, 7")
        e(f"v_mov_b32 v3, {s(S_TMP)}")
        e(f"v_mov_b32 v2, {val}")
        e("s_mov_b64 exec, 1")
        e(f"buffer_store_dword v2, v3, {s(SRD_WS,4)}, 0 offen sc1")
        e("s_mov_b64 exec, -1")

    def poll(self, vaddr, vneed, vtmp, preloaded=False):
        e = self.e
        L = self.L("L_poll"); L2 = self.L("L_poll")
        if preloaded: e(f"s_branch {L2}")
        self.lab(L)
        e(f"buffer_load_dword {v(vtmp)}, {v(vaddr)}, {s(SRD_WS,4)}, 0 offen sc1")
        self.lab(L2)
        e("s_waitcnt vmcnt(0)")
        e(f"v_cmp_lt_u32 {s(S_M,2)}, {v(vtmp)}, {v(vneed)}")
        e(f"s_cmp_eq_u64 {s(S_M,2)}, 0")
        e(f"s_cbranch_scc0 {L}")

    def wait_handshake(self, vhs, preloaded=False):
        e = self.e
        L = self.L("L_hs"); L2 = self.L("L_hs")
        if preloaded: e(f"s_branch {L2}")
        self.lab(L)
        e("v_lshlrev_b32 v2, 2, v0")
        e(f"global_load_dword {v(vhs)}, v2, {s(S_DBG,2)} sc1")
        self.lab(L2)
        e("s_waitcnt vmcnt(0)")
        e(f"v_and_b32 v4, 0x80808080, {v(vhs)}")
        e("v_cmp_ne_u32 vcc, 0x80808080, v4")
        e("s_cmp_eq_u64 vcc, 0")
        e(f"s_cbranch_scc0 {L}")
        e(f"s_or_b32 {s(S_TMP)}, {s(S_XCC)}, 0x80")
        e(f"s_mul_i32 {s(S_TMP)}, {s(S_TMP)}, 0x01010101")
        e(f"v_cmp_ne_u32 {s(S_M,2)}, {s(S_TMP)}, {v(vhs)}")
        e(f"s_lshl_b32 {s(S_TMP)}, {s(S_G)}, 3")
        e(f"s_lshr_b64 {s(S_M,2)}, {s(S_M,2)}, {s(S_TMP)}")
        e(f"s_and_b32 {s(S_M)}, {s(S_M)}, 0xff")
        e(f"s_cselect_b32 {s(S_MODE)}, 0, 1")

    def entry(self):
        e = self.e
        self.role = "all"
        e("s_cmp_ge_u32 s2, 256")
        e("s_cbranch_scc1 L_END")
        if self.prof: e(f"s_memtime s[98:99]")
        e(f"s_load_dwordx16 s[4:19], s[0:1], 0")
        e(f"s_load_dwordx2 s[20:21], s[0:1], 64")
        e("v_lshrrev_b32 v1, 6, v0")
        e("v_and_b32 v0, 63, v0")
        e(f"s_and_b32 {s(S_G)}, s2, 7")
        e(f"v_readfirstlane_b32 {s(S_WV)}, v1")
        e(f"s_lshr_b32 {s(S_I)}, s2, 3")
        e(f"s_mov_b32 {s(S_C1024)}, 1024")
        if self.prof:
            e("s_waitcnt lgkmcnt(0)")
            e("v_writelane_b32 v255, s98, 0")
            e("s_memrealtime s[98:99]")
            e("s_waitcnt lgkmcnt(0)")
            e("v_writelane_b32 v255, s98, 61")
        e(f"s_cmp_ge_u32 {s(S_I)}, 30")
        e("s_cbranch_scc1 L_COLSUM")
        self.p1_decode()
        e(f"s_cmp_lt_u32 {s(S_WV)}, 4")
        e("s_cbranch_scc1 L_C1")
        e(f"s_cmp_eq_u32 {s(S_WV)}, 6")
        e("s_cbranch_scc1 L_S1")
        e(f"s_cmp_eq_u32 {s(S_WV)}, 7")
        e("s_cbranch_scc1 L_X1")

    def p1_loader(self):
        e = self.e
        self.role = "L"
        e("s_setprio 3")
        V = 8
        Lw = self.L("L_w5"); Lj = self.L("L_j")
        e(f"s_cmp_eq_u32 {s(S_WV)}, 5")
        e(f"s_cbranch_scc1 {Lw}")
        e("v_lshrrev_b32 v1, 3, v0")
        e("v_mul_u32_u24 v1, 1280, v1")
        e("v_lshrrev_b32 v2, 4, v0")
        e("v_and_b32 v3, 7, v0")
        e("v_xor_b32 v4, v3, v2")
        e("v_xor_b32 v5, 4, v4")
        e(f"v_lshl_add_u32 {v(V)}, v4, 4, v1")
        e(f"v_lshl_add_u32 {v(V+1)}, v5, 4, v1")
        e(f"v_add_u32 {v(V+1)}, 10240, {v(V+1)}")
        for q in range(2, 16):
            e(f"v_add_u32 {v(V+q)}, 20480, {v(V+q-2)}")
        e(f"s_mul_i32 {s(S_TMP)}, {s(S_T0)}, 1280")
        e(f"s_mov_b32 {s(S_KW)}, 128")
        e(f"s_mov_b32 {s(S_TMP3)}, 0")
        e("s_waitcnt lgkmcnt(0)")
        self.srd(SRD_A, S_X, S_TMP, 2048 * 1280)
        e(f"s_branch {Lj}")
        self.lab(Lw)
        e("v_lshrrev_b32 v2, 4, v0")
        e("v_mul_u32_u24 v1, 3840, v2")
        e("v_and_b32 v3, 15, v0")
        e("v_lshlrev_b32 v4, 2, v2")
        e("v_xor_b32 v3, v3, v4")
        e(f"v_lshl_add_u32 {v(V)}, v3, 4, v1")
        for q in range(1, 16):
            e(f"v_add_u32 {v(V+q)}, 15360, {v(V+q-1)}")
        e(f"s_lshl_b32 {s(S_TMP)}, {s(S_N0)}, 1")
        e(f"s_mov_b32 {s(S_KW)}, {64*3840}")
        e(f"s_mov_b32 {s(S_TMP3)}, 16384")
        e("s_waitcnt lgkmcnt(0)")
        self.srd(SRD_A, S_WQKV, S_TMP, 640 * 3840)
        self.lab(Lj)
        e(f"s_mov_b32 {s(S_KA)}, 0")
        def stage(m0init):
            e(m0init)
            for q in range(16):
                if q: e(f"s_add_u32 m0, m0, {s(S_C1024)}")
                e(f"buffer_load_dwordx4 {v(V+q)}, {s(SRD_A,4)}, {s(S_KA)} offen lds")
            e(f"s_add_u32 {s(S_KA)}, {s(S_KA)}, {s(S_KW)}")
        self.stamp()
        for st in range(2): stage(f"s_add_u32 m0, {s(S_TMP3)}, {st*32768}")
        self.bar("BA")
        self.srd(SRD_WS, S_WS, size=WS_SIZE)
        self.stamp()
        e("s_waitcnt vmcnt(16)")
        self.bar("B0")
        for st in range(2, 4): stage(f"s_add_u32 m0, {s(S_TMP3)}, {st*32768}")
        e(f"s_mov_b32 {s(S_IT)}, 0")
        e(f"s_mov_b32 {s(S_FILL)}, 0")
        self.lab("L_L1LOOP")
        La = self.L("L_a"); Lb = self.L("L_b"); Lt = self.L("L_t"); Ls = self.L("L_s")
        self.itstamp(250)
        e(f"s_cmp_eq_u32 {s(S_IT)}, 7"); e(f"s_cbranch_scc1 {La}")
        e(f"s_cmp_gt_u32 {s(S_IT)}, 7"); e(f"s_cbranch_scc1 {Lb}")
        e("s_waitcnt vmcnt(32)"); e(f"s_branch {Lt}")
        self.lab(La); e("s_waitcnt vmcnt(16)"); e(f"s_branch {Lt}")
        self.lab(Lb); e("s_waitcnt vmcnt(0)")
        self.lab(Lt)
        self.itstamp(251)
        self.bar("B1loop")
        self.itstamp(252)
        e(f"s_cmp_gt_u32 {s(S_IT)}, 5")
        e(f"s_cbranch_scc1 {Ls}")
        stage(f"s_add_u32 m0, {s(S_TMP3)}, {s(S_FILL)}")
        self.lab(Ls)
        self.itstamp(253)
        e(f"s_add_u32 {s(S_FILL)}, {s(S_FILL)}, 32768")
        e(f"s_and_b32 {s(S_FILL)}, {s(S_FILL)}, {NSLOT*32768-1}")
        e(f"s_add_u32 {s(S_IT)}, {s(S_IT)}, 1")
        e(f"s_cmp_lt_u32 {s(S_IT)}, 10")
        e("s_cbranch_scc1 L_L1LOOP")
        self.stamp("L1end")
        e("s_setprio 0")
        self.bar("BE1")
        e("s_branch L_P2")

    def p1_sync(self):
        e = self.e
        self.role = "S"
        self.lab("L_S1")
        e("s_waitcnt lgkmcnt(0)")
        self.srd(SRD_WS, S_WS, size=WS_SIZE)
        e(f"s_getreg_b32 {s(S_XCC)}, hwreg(HW_REG_XCC_ID, 0, 4)")
        self.clear_flags()
        self.stat_part(0)
        self.bar("BA")
        self.bar("B0")
        e("s_waitcnt vmcnt(0)")
        if not (self.exp & 4): self.handshake_store()
        self.stat_compute(0)
        e(f"s_mov_b32 {s(S_IT)}, 0")
        self.lab("L_S1LOOP")
        La = self.L(); Lb = self.L(); Lc = self.L(); Lx = self.L(); Ly = self.L(); Lp = self.L(); Lq = self.L(); Lr = self.L()
        e(f"s_cmp_eq_u32 {s(S_IT)}, 1"); e(f"s_cbranch_scc1 {La}")
        e(f"s_cmp_eq_u32 {s(S_IT)}, 5"); e(f"s_cbranch_scc1 {Lb}")
        e(f"s_cmp_eq_u32 {s(S_IT)}, 7"); e(f"s_cbranch_scc1 {Lc}")
        L8 = self.L(); L9 = self.L()
        e(f"s_cmp_eq_u32 {s(S_IT)}, 8"); e(f"s_cbranch_scc1 {L8}")
        e(f"s_cmp_eq_u32 {s(S_IT)}, 9"); e(f"s_cbranch_scc1 {L9}")
        e(f"s_branch {Lx}")
        self.lab(L8); self.s_hs_half_verify(0); self.s_hs_half_issue(1); e(f"s_branch {Lx}")
        self.lab(L9); self.s_hs_half_verify(1); e(f"s_branch {Lx}")
        self.lab(La); e("s_waitcnt vmcnt(0)"); e(f"s_branch {Lx}")
        self.lab(Lb)
        if not (self.exp & 12): self.s_hs_verify(); self.s_flags_issue()
        e(f"s_branch {Lx}")
        self.lab(Lc)
        if not (self.exp & 12): self.s_flags_verify()
        self.s_hs_half_issue(0)
        self.lab(Lx)
        self.bar("B1loop")
        e(f"s_cmp_eq_u32 {s(S_IT)}, 1"); e(f"s_cbranch_scc1 {Lp}")
        e(f"s_cmp_eq_u32 {s(S_IT)}, 3"); e(f"s_cbranch_scc1 {Lq}")
        e(f"s_branch {Ly}")
        self.lab(Lp)
        e(f"s_cmp_ge_u32 {s(S_T)}, 8"); e(f"s_cbranch_scc1 {Ly}")
        self.set_fa(1)
        e(f"s_branch {Ly}")
        self.lab(Lq)
        if not (self.exp & 12): self.s_hs_issue(first=True)
        self.lab(Ly)
        e(f"s_add_u32 {s(S_IT)}, {s(S_IT)}, 1")
        e(f"s_cmp_lt_u32 {s(S_IT)}, 10")
        e("s_cbranch_scc1 L_S1LOOP")
        self.bar("BE1")
        self.set_fa(2)
        e("s_branch L_P2")

    def s_hs_issue(self, first=False):
        e = self.e
        glc = "" if first else " glc"
        if not first: e("s_sleep 8")
        e(f"s_lshl_b32 {s(S_TMP)}, {s(S_G)}, 5")
        e(f"s_load_dwordx8 s[{SH}:{SH+7}], {s(S_DBG,2)}, {s(S_TMP)}{glc}")
        e(f"s_add_u32 {s(S_TMP)}, {s(S_G)}, 7")
        e(f"s_and_b32 {s(S_TMP)}, {s(S_TMP)}, 7")
        e(f"s_lshl_b32 {s(S_TMP)}, {s(S_TMP)}, 5")
        e(f"s_load_dwordx8 s[{SH+8}:{SH+15}], {s(S_DBG,2)}, {s(S_TMP)}{glc}")
        e(f"s_lshr_b32 {s(S_TMP)}, {s(S_T)}, 1")
        e(f"s_lshl_b32 {s(S_TMP)}, {s(S_TMP)}, 5")
        e(f"s_add_u32 {s(S_TMP)}, {s(S_TMP)}, 28")
        e(f"s_load_dword s{SH+16}, {s(S_DBG,2)}, {s(S_TMP)}{glc}")

    def s_hs_verify(self):
        e = self.e
        L = self.L("L_hs"); L2 = self.L("L_hs")
        e(f"s_branch {L2}")
        self.lab(L)
        self.s_hs_issue()
        self.lab(L2)
        e(f"s_or_b32 {s(S_TMP3)}, {s(S_XCC)}, 0x80")
        e(f"s_mul_i32 {s(S_TMP3)}, {s(S_TMP3)}, 0x01010101")
        e("s_waitcnt lgkmcnt(0)")
        e(f"s_or_b32 {s(S_TMP)}, s{SH+16}, 0x00008080")
        for q in range(16): e(f"s_and_b32 {s(S_TMP)}, {s(S_TMP)}, s{SH+q}")
        e(f"s_and_b32 {s(S_TMP)}, {s(S_TMP)}, 0x80808080")
        e(f"s_cmp_eq_u32 {s(S_TMP)}, 0x80808080")
        e(f"s_cbranch_scc0 {L}")
        e(f"s_mov_b32 {s(S_TMP2)}, 0")
        for q in range(8):
            e(f"s_xor_b32 {s(S_TMP4)}, s{SH+q}, {s(S_TMP3)}")
            e(f"s_and_b32 {s(S_TMP4)}, {s(S_TMP4)}, 0xbfbfbfbf")
            e(f"s_or_b32 {s(S_TMP2)}, {s(S_TMP2)}, {s(S_TMP4)}")
        e(f"s_cmp_eq_u32 {s(S_TMP2)}, 0")
        e(f"s_cselect_b32 {s(S_MODE)}, 1, 0")

    def s_flags_issue(self, first=True):
        e = self.e
        glc = "" if first else " glc"
        if not first: e("s_sleep 8")
        e(f"s_mul_i32 {s(S_TMP)}, {s(S_R)}, 15")
        e(f"s_lshl_b32 {s(S_TMP)}, {s(S_TMP)}, 3")
        e(f"s_or_b32 {s(S_TMP)}, {s(S_TMP)}, {s(S_G)}")
        e(f"s_lshl_b32 {s(S_TMP)}, {s(S_TMP)}, 7")
        e(f"s_add_u32 {s(S_M)}, {s(S_WS)}, {s(S_TMP)}")
        e(f"s_addc_u32 {s(S_M+1)}, {s(S_WS+1)}, 0")
        for q in range(8):
            e(f"s_load_dword s{SH+q}, {s(S_M,2)}, {q*8*128}{glc}")
        e(f"s_and_b32 {s(S_TMP)}, {s(S_T)}, 1")
        e(f"s_add_u32 {s(S_TMP)}, {s(S_TMP)}, 30")
        e(f"s_lshl_b32 {s(S_TMP)}, {s(S_TMP)}, 3")
        e(f"s_lshr_b32 {s(S_TMP2)}, {s(S_T)}, 1")
        e(f"s_or_b32 {s(S_TMP)}, {s(S_TMP)}, {s(S_TMP2)}")
        e(f"s_lshl_b32 {s(S_TMP)}, {s(S_TMP)}, 7")
        e(f"s_load_dword s{SH+8}, {s(S_WS,2)}, {s(S_TMP)}{glc}")

    def s_flags_verify(self):
        e = self.e
        L = self.L("L_fl"); L2 = self.L("L_fl")
        e(f"s_branch {L2}")
        self.lab(L)
        self.s_flags_issue(first=False)
        self.lab(L2)
        e("s_waitcnt lgkmcnt(0)")
        e(f"s_mov_b32 {s(S_TMP)}, -1")
        for q in range(9): e(f"s_min_u32 {s(S_TMP)}, {s(S_TMP)}, s{SH+q}")
        e(f"s_cmp_ge_u32 {s(S_TMP)}, 1")
        e(f"s_cbranch_scc0 {L}")

    def stat_part(self, half):
        e = self.e
        Lns = self.L("L_nostat")
        self.srd(SRD_T, S_X, size=2048 * 1280)
        e(f"s_cmp_ge_u32 {s(S_T)}, 8")
        e(f"s_cbranch_scc1 {Lns}")
        e(f"s_lshl_b32 {s(S_TMP)}, {s(S_T)}, 4")
        e(f"s_add_u32 {s(S_TMP)}, {s(S_TMP)}, {s(S_T0)}")
        e(f"s_add_u32 {s(S_TMP)}, {s(S_TMP)}, {8*half}")
        e(f"v_lshrrev_b32 v1, 4, v0")
        e(f"v_add_u32 v7, {s(S_TMP)}, v1")
        e(f"v_mul_u32_u24 v2, 1280, v7")
        e(f"v_and_b32 v1, 15, v0")
        e(f"v_lshl_add_u32 v2, v1, 4, v2")
        e(f"v_add_u32 v5, {4*1280}, v2")
        for p in range(2):
            for m in range(5):
                e(f"buffer_load_dwordx4 {v(32+20*p+4*m,4)}, {'v2' if p == 0 else 'v5'}, {s(SRD_T,4)}, 0 offen offset:{256*m}")
        self.lab(Lns)

    def stat_compute(self, half):
        e = self.e
        Lns = self.L("L_nostat")
        e(f"s_cmp_ge_u32 {s(S_T)}, 8")
        e(f"s_cbranch_scc1 {Lns}")
        for p in range(2):
            a_, b_ = 72 + 2 * p, 73 + 2 * p
            e(f"v_mov_b32 {v(a_)}, 0"); e(f"v_mov_b32 {v(b_)}, 0")
        e("v_mov_b32 v4, 0x3f803f80")
        for i in range(20):
            for p in range(2):
                a_, b_ = 72 + 2 * p, 73 + 2 * p
                e(f"v_dot2_f32_bf16 {v(a_)}, {v(32+20*p+i)}, v4, {v(a_)}")
                e(f"v_dot2_f32_bf16 {v(b_)}, {v(32+20*p+i)}, {v(32+20*p+i)}, {v(b_)}")
        for sh in (8, 4, 2, 1):
            for r in range(72, 76):
                e(f"v_add_f32_dpp {v(r)}, {v(r)}, {v(r)} row_ror:{sh} row_mask:0xf bank_mask:0xf")
        e("v_lshlrev_b32 v7, 3, v7")
        e(f"v_add_u32 v7, {WS_ST1}, v7")
        e("v_and_b32 v6, 15, v0")
        e("v_cmp_eq_u32 vcc, 0, v6")
        for p in range(2):
            a_, b_ = 72 + 2 * p, 73 + 2 * p
            o = 76 + 2 * p
            e(f"v_mul_f32 {v(a_)}, 0x3acccccd, {v(a_)}")
            e(f"v_mul_f32 {v(b_)}, 0x3acccccd, {v(b_)}")
            e(f"v_fma_f32 {v(b_)}, -{v(a_)}, {v(a_)}, {v(b_)}")
            e(f"v_max_f32 {v(b_)}, 0, {v(b_)}")
            e(f"v_add_f32 {v(b_)}, 0x3727c5ac, {v(b_)}")
            e(f"v_rsq_f32 {v(o)}, {v(b_)}")
            e(f"v_mul_f32 {v(o+1)}, -1.0, {v(a_)}")
            e(f"v_mul_f32 {v(o+1)}, {v(o+1)}, {v(o)}")
        e(f"s_and_saveexec_b64 {s(S_EX,2)}, vcc")
        e(f"buffer_store_dwordx2 v[76:77], v7, {s(SRD_WS,4)}, 0 offen sc1")
        e(f"buffer_store_dwordx2 v[78:79], v7, {s(SRD_WS,4)}, 0 offen offset:32 sc1")
        e(f"s_mov_b64 exec, {s(S_EX,2)}")
        self.lab(Lns)

    def p1_aux(self):
        e = self.e
        self.role = "X"
        self.lab("L_X1")
        e("s_waitcnt lgkmcnt(0)")
        if not (self.exp & 1024):
            Lcp = self.L("L_cp")
            e(f"s_cmp_ge_u32 {s(S_I)}, 5"); e(f"s_cbranch_scc1 {Lcp}")
            e(f"s_getpc_b64 {s(S_M,2)}")
            here = self.L("L_pc"); self.lab(here)
            e(f"s_sub_u32 {s(S_M)}, {s(S_M)}, {here}-{NAME}_kernel")
            e(f"s_subb_u32 {s(S_M+1)}, {s(S_M+1)}, 0")
            e(f"s_lshl_b32 {s(S_TMP)}, {s(S_I)}, 13")
            e("v_lshlrev_b32 v2, 7, v0")
            e(f"v_add_u32 v2, {s(S_TMP)}, v2")
            e(f"v_min_u32 v2, L_CODE_END-{NAME}_kernel-4, v2")
            e(f"global_load_dword v101, v2, {s(S_M,2)}")
            self.lab(Lcp)
        if not (self.exp & 256):
            Ltl = self.L("L_tlb")
            e(f"s_cmp_ge_u32 {s(S_I)}, 2"); e(f"s_cbranch_scc1 {Ltl}")
            for k in range(1, 11):
                e(f"s_mov_b32 {s(S_TMP)}, {k*0x280000 if False else k*0x200000}")
                e(f"s_load_dword s100, {s(S_WS,2)}, {s(S_TMP)}")
            for ptr, offs in ((S_OUT, (0, 0x200000)), (S_WO, (0,)), (S_W1, (0, 0x1d0000)), (S_W2, (0, 0x1d0000)), (S_WQKV, (0x200000,)), (S_X, (0x200000,))):
                for o in offs:
                    e(f"s_mov_b32 {s(S_TMP)}, {o}")
                    e(f"s_load_dword s100, {s(ptr,2)}, {s(S_TMP)}")
            self.lab(Ltl)
        self.srd(SRD_WS, S_WS, size=WS_SIZE)
        self.stat_part(1)
        self.bar("BA")
        self.bar("B0")
        e("s_waitcnt vmcnt(0)")
        self.stat_compute(1)
        e(f"s_mov_b32 {s(S_IT)}, 0")
        self.lab("L_X1LOOP")
        Lx = self.L(); Ly = self.L(); Lz = self.L()
        L9 = self.L()
        e(f"s_cmp_eq_u32 {s(S_IT)}, 1"); e(f"s_cbranch_scc1 {Lz}")
        e(f"s_cmp_eq_u32 {s(S_IT)}, 9"); e(f"s_cbranch_scc1 {L9}")
        e(f"s_branch {Lx}")
        self.lab(L9)
        e("s_waitcnt vmcnt(0)")
        e(f"s_branch {Lx}")
        self.lab(Lz)
        e("s_waitcnt vmcnt(0)")
        self.lab(Lx)
        self.bar("B1loop")
        e(f"s_cmp_lg_u32 {s(S_IT)}, 7"); e(f"s_cbranch_scc1 {Ly}")
        e(f"s_lshl_b32 {s(S_TMP)}, {s(S_T0)}, 3")
        e(f"s_add_u32 {s(S_TMP)}, {s(S_TMP)}, {WS_ST1}")
        e("v_lshlrev_b32 v2, 4, v0")
        e(f"s_mov_b32 m0, {LDS_ST1}")
        e("s_nop 0")
        e(f"buffer_load_dwordx4 v2, {s(SRD_WS,4)}, {s(S_TMP)} offen sc1 lds")
        e(f"s_lshl_b32 {s(S_TMP)}, {s(S_N0)}, 2")
        e(f"s_add_u32 {s(S_TMP)}, {s(S_TMP)}, {WS_CSQ}")
        e(f"s_mov_b32 m0, {LDS_CSQ}")
        e("s_mov_b32 exec_hi, 0")
        e(f"buffer_load_dwordx4 v2, {s(SRD_WS,4)}, {s(S_TMP)} offen sc1 lds")
        e("s_mov_b64 exec, -1")
        self.lab(Ly)
        e(f"s_add_u32 {s(S_IT)}, {s(S_IT)}, 1")
        e(f"s_cmp_lt_u32 {s(S_IT)}, 10")
        e("s_cbranch_scc1 L_X1LOOP")
        self.bar("BE1")
        e("s_branch L_P2")

    def p1_compute(self):
        e = self.e
        self.role = "C"
        self.lab("L_C1")
        ACC = 64; FA_ = 128; FB_ = 144
        VB, VA = 16, 20; VBc, VAc = 24, 28
        STT = 56; CS = 160; VST = 60
        e("v_and_b32 v1, 31, v0")
        e("v_lshrrev_b32 v2, 5, v0")
        e("v_bfe_u32 v3, v0, 1, 3")
        e("v_xor_b32 v3, v3, v2")
        e("v_lshlrev_b32 v3, 4, v3")
        e(f"s_lshr_b32 {s(S_TMP)}, {s(S_WV)}, 1")
        e(f"s_lshl_b32 {s(S_TMP)}, {s(S_TMP)}, 13")
        e("v_lshl_add_u32 v3, v1, 7, v3")
        e(f"v_add_u32 {v(VB)}, {s(S_TMP)}, v3")
        for ks in range(1, 4):
            e(f"v_xor_b32 {v(VB+ks)}, {32*ks}, {v(VB)}")
        e("v_bfe_u32 v3, v0, 2, 2")
        e("v_lshl_add_u32 v4, v2, 3, v3")
        e("v_lshlrev_b32 v4, 8, v4")
        e("v_bfe_u32 v5, v0, 4, 1")
        e("v_lshlrev_b32 v5, 1, v5")
        e("v_bfe_u32 v6, v0, 1, 1")
        e("v_or_b32 v5, v5, v6")
        e(f"s_and_b32 {s(S_TMP)}, {s(S_WV)}, 1")
        e(f"s_lshl_b32 {s(S_TMP)}, {s(S_TMP)}, 3")
        e(f"v_or_b32 v5, {s(S_TMP)}, v5")
        e("v_lshlrev_b32 v6, 2, v3")
        e("v_xor_b32 v5, v5, v6")
        e("v_lshl_add_u32 v4, v5, 4, v4")
        e("v_and_b32 v6, 1, v0")
        e("v_lshl_add_u32 v4, v6, 3, v4")
        e(f"v_add_u32 {v(VA)}, 16384, v4")
        e(f"v_xor_b32 {v(VA+1)}, 64, {v(VA)}")
        for i in range(0, 64, 2):
            e(f"v_mov_b64 {v(ACC+i,2)}, 0")
        e(f"s_lshr_b32 {s(S_TMP)}, {s(S_WV)}, 1")
        e(f"s_lshl_b32 {s(S_TMP)}, {s(S_TMP)}, 6")
        e(f"s_add_u32 {s(S_TMP)}, {s(S_TMP)}, {s(S_T0)}")
        e("v_and_b32 v1, 31, v0")
        e(f"v_add_u32 v2, {s(S_TMP)}, v1")
        e(f"s_lshr_b32 {s(S_TMP4)}, {s(S_WV)}, 1")
        e(f"s_lshl_b32 {s(S_TMP4)}, {s(S_TMP4)}, 9")
        e(f"s_add_u32 {s(S_TMP4)}, {s(S_TMP4)}, {LDS_ST1}")
        e("v_lshlrev_b32 v61, 3, v1")
        e(f"v_add_u32 v61, {s(S_TMP4)}, v61")
        e(f"s_and_b32 {s(S_TMP2)}, {s(S_WV)}, 1")
        e(f"s_lshl_b32 {s(S_TMP2)}, {s(S_TMP2)}, 6")
        e(f"s_add_u32 {s(S_TMP2)}, {s(S_TMP2)}, {s(S_N0)}")
        e("v_lshrrev_b32 v4, 5, v0")
        e(f"v_lshlrev_b32 v62, 4, v4")
        e(f"s_and_b32 {s(S_TMP)}, {s(S_WV)}, 1")
        e(f"s_lshl_b32 {s(S_TMP)}, {s(S_TMP)}, 8")
        e(f"s_add_u32 {s(S_TMP)}, {s(S_TMP)}, {LDS_CSQ}")
        e(f"v_add_u32 v62, {s(S_TMP)}, v62")
        e(f"s_lshr_b32 {s(S_TMP2)}, {s(S_TMP2)}, 3")
        e(f"v_add_u32 v5, {s(S_TMP2)}, v4")
        e(f"v_lshlrev_b32 v5, 15, v5")
        e("v_lshl_add_u32 v5, v2, 4, v5")
        e(f"v_add_u32 {v(VST)}, {WS_QKV}, v5")
        def reads(ks, setn):
            fa = FA_ + 8 * setn; fb = FB_ + 8 * setn
            o = []
            for f in range(2):
                for u in range(2):
                    o.append(f"ds_read_b64_tr_b16 {v(fa+4*f+2*u,2)}, {v(VAc+f)} offset:{ks*4096+u*1024}")
            for tt in range(2):
                o.append(f"ds_read_b128 {v(fb+4*tt,4)}, {v(VBc+ks)} offset:{tt*4096}")
            return [o[0], o[1], o[4], o[5], o[2], o[3]]
        def mfmas(setn):
            fa = FA_ + 8 * setn; fb = FB_ + 8 * setn
            o = []
            for f, tt in ((0, 0), (0, 1), (1, 0), (1, 1)):
                d = ACC + 16 * (2 * f + tt)
                o.append(f"v_mfma_f32_32x32x16_bf16 {v(d,16)}, {v(fa+4*f,4)}, {v(fb+4*tt,4)}, {v(d,16)}")
            return o
        def set_slot():
            o = []
            for ks in range(4): o.append(f"v_add_u32 {v(VBc+ks)}, {s(S_SLOT)}, {v(VB+ks)}")
            for f in range(2): o.append(f"v_add_u32 {v(VAc+f)}, {s(S_SLOT)}, {v(VA+f)}")
            return o
        e(f"s_mov_b32 {s(S_SLOT)}, 0")
        e(f"s_mov_b32 {s(S_IT)}, 0")
        for t in set_slot(): e(t)
        e("s_waitcnt lgkmcnt(0)")
        self.bar("BA")
        if not (self.exp & 512):
            Lx = self.L("L_tx"); Ly = self.L("L_ty")
            e("v_lshlrev_b32 v2, 7, v0")
            e(f"s_cmp_ge_u32 {s(S_WV)}, 2"); e(f"s_cbranch_scc1 {Lx}")
            self.srd(SRD_T, S_WQKV, size=640 * 3840)
            e(f"s_mul_i32 {s(S_TMP)}, {s(S_G)}, 30"); e(f"s_add_u32 {s(S_TMP)}, {s(S_TMP)}, {s(S_I)}")
            e(f"s_mul_i32 {s(S_TMP)}, {s(S_TMP)}, {80*128}")
            e(f"s_mul_i32 {s(S_TMP2)}, {s(S_WV)}, {40*128}"); e(f"s_add_u32 {s(S_TMP)}, {s(S_TMP)}, {s(S_TMP2)}")
            e("s_mov_b32 exec_hi, 0xff")
            e(f"buffer_load_dword v250, v2, {s(SRD_T,4)}, {s(S_TMP)} offen")
            e("s_mov_b32 exec_hi, -1")
            e(f"s_branch {Ly}")
            self.lab(Lx)
            self.srd(SRD_T, S_X, size=2048 * 1280)
            e(f"s_mul_i32 {s(S_TMP)}, {s(S_G)}, {256*1280}")
            e(f"s_mul_i32 {s(S_TMP2)}, {s(S_I)}, {86*128}"); e(f"s_add_u32 {s(S_TMP)}, {s(S_TMP)}, {s(S_TMP2)}")
            e(f"s_and_b32 {s(S_TMP2)}, {s(S_WV)}, 1"); e(f"s_mul_i32 {s(S_TMP2)}, {s(S_TMP2)}, {43*128}"); e(f"s_add_u32 {s(S_TMP)}, {s(S_TMP)}, {s(S_TMP2)}")
            e("s_mov_b32 exec_hi, 0x7ff")
            e(f"buffer_load_dword v250, v2, {s(SRD_T,4)}, {s(S_TMP)} offen")
            e("s_mov_b32 exec_hi, -1")
            self.lab(Ly)
            Lz = self.L("L_tz")
            e(f"s_cmp_lg_u32 {s(S_WV)}, 3"); e(f"s_cbranch_scc1 {Lz}")
            self.srd(SRD_T, S_WO, size=640 * 1280)
            e(f"s_mul_i32 {s(S_TMP)}, {s(S_G)}, 30"); e(f"s_add_u32 {s(S_TMP)}, {s(S_TMP)}, {s(S_I)}"); e(f"s_mul_i32 {s(S_TMP)}, {s(S_TMP)}, {27*128}")
            e("s_mov_b32 exec_hi, 0")
            e(f"buffer_load_dword v251, v2, {s(SRD_T,4)}, {s(S_TMP)} offen")
            e("s_mov_b32 exec_hi, -1")
            self.lab(Lz)
        self.srd(SRD_WS, S_WS, size=WS_SIZE)
        self.stamp()
        self.bar("B0")
        self.stamp()
        for t in reads(0, 0): e(t)
        self.lab("L_C1LOOP")
        for ks in range(3):
            cur = ks & 1; nxt = cur ^ 1
            r = reads(ks + 1, nxt); m = mfmas(cur)
            e("s_waitcnt lgkmcnt(0)")
            e(m[0]); e(r[0]); e(r[1]); e(m[1]); e(r[2]); e(r[3]); e(m[2]); e(r[4]); e(r[5])
            if ks == 2:
                e(f"s_add_u32 {s(S_SLOT)}, {s(S_SLOT)}, 32768")
                e(f"s_cmp_eq_u32 {s(S_SLOT)}, {NSLOT*32768}")
                e(f"s_cselect_b32 {s(S_SLOT)}, 0, {s(S_SLOT)}")
            e(m[3])
            if ks == 2:
                for t in set_slot(): e(t)
        m = mfmas(1)
        r = reads(0, 0)
        e("s_waitcnt lgkmcnt(0)")
        self.itstamp(252)
        self.bar("B1loop")
        self.itstamp(253)
        e(m[0]); e(r[0]); e(r[1]); e(m[1]); e(r[2]); e(r[3]); e(m[2]); e(r[4]); e(r[5]); e(m[3])
        e(f"s_add_u32 {s(S_IT)}, {s(S_IT)}, 1")
        e(f"s_cmp_lt_u32 {s(S_IT)}, 10")
        e("s_cbranch_scc1 L_C1LOOP")
        self.stamp()
        e(f"s_cmp_lt_u32 {s(S_T)}, 5")
        e(f"s_cselect_b32 {s(S_TMP)}, 0x3ea52b48, 1.0")
        e(f"ds_read_b64 {v(STT,2)}, v61")
        e(f"ds_read_b64 {v(STT+2,2)}, v61 offset:256")
        for f in range(2):
            for j in range(4):
                e(f"ds_read_b128 {v(CS+16*f+4*j,4)}, v62 offset:{(32*f+8*j)*4}")
        e("s_waitcnt lgkmcnt(0)")
        for tt in range(2):
            e(f"v_mul_f32 {v(STT+2*tt)}, {s(S_TMP)}, {v(STT+2*tt)}")
            e(f"v_mul_f32 {v(STT+2*tt+1)}, {s(S_TMP)}, {v(STT+2*tt+1)}")
        PK = 192
        nst = 0
        for f in range(2):
            for tt in range(2):
                d = ACC + 16 * (2 * f + tt)
                ab = STT + 2 * tt
                for i in range(0, 16, 2):
                    e(f"v_pk_mul_f32 {v(d+i,2)}, {v(d+i,2)}, {v(ab,2)} op_sel_hi:[1,0]")
                for i in range(0, 16, 2):
                    e(f"v_pk_fma_f32 {v(d+i,2)}, {v(CS+16*f+i,2)}, {v(ab,2)}, {v(d+i,2)} op_sel:[0,1,0] op_sel_hi:[1,1,1]")
                pk = PK + 8 * (nst & 1)
                for jj in range(2):
                    p = pk + 4 * jj
                    for q in range(4):
                        e(f"v_cvt_pk_bf16_f32 {v(p+q)}, {v(d+8*jj+2*q)}, {v(d+8*jj+2*q+1)}")
                    e(f"v_permlane32_swap_b32 {v(p)}, {v(p+2)}")
                    e(f"v_permlane32_swap_b32 {v(p+1)}, {v(p+3)}")
                    off = (4 * f + 2 * jj) * CH + tt * 512
                    hi, lo = off >> 12, off & 4095
                    e(f"s_mov_b32 {s(S_TMP)}, {hi << 12}")
                    e(f"buffer_store_dwordx4 {v(p,4)}, {v(VST)}, {s(SRD_WS,4)}, {s(S_TMP)} offen offset:{lo} sc1")
                nst += 1
        self.stamp("st_issued")
        e("s_waitcnt vmcnt(0)")
        self.stamp("st_drained")
        self.bar("BE1")
        e("s_branch L_P2")


    def store_mode(self, instr_list):
        e = self.e
        La = self.L("L_sm"); Lb = self.L("L_sm")
        e(f"s_cmp_eq_u32 {s(S_MODE)}, 1")
        e(f"s_cbranch_scc1 {La}")
        for t in instr_list: e(t if t.startswith("s_") or t.startswith("v_") else t + " sc1")
        e(f"s_branch {Lb}")
        self.lab(La)
        for t in instr_list: e(t)
        self.lab(Lb)

    def set_fb(self, val):
        e = self.e
        e(f"s_lshl_b32 {s(S_TMP)}, {s(S_G)}, 8")
        e(f"s_lshl_b32 {s(S_TMP2)}, {s(S_I)}, 2")
        e(f"s_add_u32 {s(S_TMP)}, {s(S_TMP)}, {s(S_TMP2)}")
        e(f"s_add_u32 {s(S_TMP)}, {s(S_TMP)}, {WS_FB}")
        e(f"v_mov_b32 v2, {val}")
        e(f"v_mov_b32 v3, 0")
        e("s_mov_b64 exec, 1")
        self.store_mode([f"buffer_store_dword v2, v3, {s(SRD_WS,4)}, {s(S_TMP)} offen"])
        e("s_mov_b64 exec, -1")

    def phase2(self):
        e = self.e
        self.role = "P2"
        S_P, S_R2, S_TQ, S_QT, S_HD = S_T, S_R, S_T0, S_KA, S_KW
        S_MK = 66
        VQ0, VQ1 = 8, 12
        KF = (16, 24); VF = (32, 40); OA = 48; BM = 64
        VK0, VK1, VV = 72, 73, 74
        T = [96 + 16 * j for j in range(9)]
        self.lab("L_P2")
        self.stamp("P2in")
        e(f"s_and_b32 {s(S_P)}, {s(S_I)}, 15")
        e(f"s_lshr_b32 {s(S_R2)}, {s(S_I)}, 4")
        e(f"s_lshl_b32 {s(S_TQ)}, {s(S_G)}, 8")
        e(f"s_lshl_b32 {s(S_TMP)}, {s(S_R2)}, 7")
        e(f"s_add_u32 {s(S_TQ)}, {s(S_TQ)}, {s(S_TMP)}")
        e(f"s_and_b32 {s(S_QT)}, {s(S_WV)}, 3")
        e(f"s_lshr_b32 {s(S_HD)}, {s(S_WV)}, 2")
        Lno = self.L("L_no")
        e(f"s_cmp_ge_u32 {s(S_WV)}, 6")
        e(f"s_cbranch_scc1 {Lno}")
        e(f"s_lshl_b32 {s(S_TMP)}, {s(S_WV)}, 6"); e(f"s_add_u32 {s(S_TMP)}, {s(S_TMP)}, {s(S_TQ)}")
        e(f"s_cmp_lt_u32 {s(S_TMP)}, 256"); e(f"s_cselect_b32 {s(S_TMP)}, 0, 0x3f80")
        e(f"v_mov_b32 v2, {s(S_TMP)}"); e("v_mov_b32 v3, 0"); e(f"v_mov_b32 v4, {s(S_TMP)}"); e("v_mov_b32 v5, 0")
        e(f"s_lshl_b32 {s(S_TMP)}, {s(S_WV)}, 10")
        e(f"s_add_u32 {s(S_TMP)}, {s(S_TMP)}, {LDS_ONES}")
        e(f"v_lshl_add_u32 v6, v0, 4, {s(S_TMP)}")
        e("ds_write_b128 v6, v[2:5]")
        self.lab(Lno)
        e("v_and_b32 v1, 31, v0")
        e("v_lshrrev_b32 v2, 5, v0")
        e(f"s_lshl_b32 {s(S_TMP)}, {s(S_QT)}, 5")
        e(f"v_add_u32 v3, {s(S_TMP)}, v1")
        e("v_lshlrev_b32 v3, 4, v3")
        e(f"s_mul_i32 {s(S_TMP)}, {s(S_HD)}, 3")
        e(f"v_add_u32 v4, {s(S_TMP)}, v2")
        e(f"v_mul_u32_u24 v4, {PL}, v4")
        e(f"v_add_u32 {v(VK0)}, v3, v4")
        e(f"v_add_u32 {v(VK1)}, {LDS_K + 2*PL}, v3")
        e("v_bfe_u32 v4, v0, 4, 1")
        e("v_lshlrev_b32 v4, 2, v4")
        e("v_and_b32 v5, 3, v0")
        e("v_or_b32 v4, v4, v5")
        e(f"s_mul_i32 {s(S_TMP)}, {s(S_HD)}, 5")
        e(f"v_add_u32 v5, {s(S_TMP)}, v4")
        e("v_lshrrev_b32 v6, 1, v5")
        e(f"v_mul_u32_u24 v6, {PL}, v6")
        e("v_and_b32 v5, 1, v5")
        e("v_lshl_add_u32 v6, v5, 3, v6")
        e(f"v_add_u32 v6, {LDS_V}, v6")
        e("v_cmp_gt_u32 vcc, 5, v4")
        e(f"v_mov_b32 v7, {LDS_ONES}")
        e("v_cndmask_b32 v6, v7, v6, vcc")
        e("v_bfe_u32 v5, v0, 2, 2")
        e("v_lshl_add_u32 v5, v2, 2, v5")
        e(f"s_lshl_b32 {s(S_TMP)}, {s(S_QT)}, 5")
        e(f"v_add_u32 v5, {s(S_TMP)}, v5")
        e(f"v_lshl_add_u32 {v(VV)}, v5, 4, v6")
        e(f"s_lshl_b32 {s(S_TMP)}, {s(S_QT)}, 5")
        e(f"s_add_u32 {s(S_TMP)}, {s(S_TMP)}, {s(S_TQ)}")
        e(f"v_add_u32 v3, {s(S_TMP)}, v1")
        e("v_lshlrev_b32 v3, 4, v3")
        e(f"s_mul_i32 {s(S_TMP)}, {s(S_P)}, 5")
        e(f"s_mul_i32 {s(S_TMP2)}, {s(S_HD)}, 3")
        e(f"s_add_u32 {s(S_TMP2)}, {s(S_TMP2)}, {s(S_TMP)}")
        e(f"v_add_u32 v4, {s(S_TMP2)}, v2")
        e("v_lshlrev_b32 v4, 15, v4")
        e("v_add_u32 v75, v3, v4")
        e(f"v_add_u32 v75, {WS_QKV}, v75")
        e(f"s_add_u32 {s(S_TMP)}, {s(S_TMP)}, 2")
        e(f"s_lshl_b32 {s(S_TMP)}, {s(S_TMP)}, 15")
        e(f"s_add_u32 {s(S_TMP)}, {s(S_TMP)}, {WS_QKV}")
        e(f"v_add_u32 v76, {s(S_TMP)}, v3")
        e(f"s_mul_i32 {s(S_TMP)}, {s(S_P)}, 5")
        e(f"s_lshl_b32 {s(S_TMP2)}, {s(S_HD)}, 1")
        e(f"s_add_u32 {s(S_TMP2)}, {s(S_TMP2)}, {s(S_TMP)}")
        e(f"v_add_u32 v4, {s(S_TMP2)}, v2")
        e("v_lshlrev_b32 v4, 15, v4")
        e("v_add_u32 v77, v3, v4")
        e(f"v_add_u32 v77, {WS_O}, v77")
        e(f"s_add_u32 {s(S_TMP)}, {s(S_TMP)}, 4")
        e(f"s_lshl_b32 {s(S_TMP)}, {s(S_TMP)}, 15")
        e(f"s_lshl_b32 {s(S_TMP2)}, {s(S_HD)}, 3")
        e(f"s_add_u32 {s(S_TMP)}, {s(S_TMP)}, {s(S_TMP2)}")
        e(f"s_add_u32 {s(S_TMP)}, {s(S_TMP)}, {WS_O}")
        e(f"v_add_u32 v78, {s(S_TMP)}, v3")
        e(f"v_lshl_add_u32 v2, v0, 3, {s(S_WV)}")
        e("v_cmp_le_u32 vcc, 30, v2")
        e("v_cndmask_b32 v3, 0, 1, vcc")
        e("v_mul_u32_u24 v4, 30, v3"); e("v_sub_u32 v4, v2, v4")
        e("v_mul_u32_u24 v5, 43, v4"); e("v_lshrrev_b32 v5, 8, v5")
        e("v_mul_u32_u24 v6, 6, v5"); e("v_sub_u32 v6, v4, v6")
        e("v_mul_u32_u24 v7, 5, v3"); e("v_add_u32 v7, v7, v5")
        e(f"v_mul_u32_u24 v7, {PL}, v7"); e("v_lshl_add_u32 v91, v6, 10, v7")
        e("v_add_u32 v7, 1, v3"); e("v_mul_u32_u24 v7, 80, v7"); e("v_add_u32 v7, v7, v5")
        e(f"s_mul_i32 {s(S_TMP)}, {s(S_P)}, 5"); e(f"v_add_u32 v7, {s(S_TMP)}, v7")
        e("v_lshlrev_b32 v7, 15, v7")
        e(f"s_sub_u32 {s(S_TMP)}, {s(S_TQ)}, 256")
        e(f"v_lshl_add_u32 v6, v6, 6, {s(S_TMP)}")
        e("v_lshl_add_u32 v7, v6, 4, v7"); e(f"v_add_u32 v7, {WS_QKV}, v7")
        e("v_cmp_gt_i32 vcc, 0, v6")
        e("v_mov_b32 v5, 0x7f000000")
        e("v_cndmask_b32 v90, v7, v5, vcc")
        for n in range(8):
            e(f"v_readlane_b32 s{66+n}, v90, {n}")
            e(f"v_readlane_b32 s{74+n}, v91, {n}")
        Lns = self.L("L_ns"); Lgo = self.L("L_go")
        e(f"s_cmp_lg_u32 {s(S_WV)}, 6")
        e(f"s_cbranch_scc1 {Lns}")
        e("v_mul_u32_u24 v2, 43, v0")
        e("v_lshrrev_b32 v2, 8, v2")
        e("v_mul_u32_u24 v3, 6, v2")
        e("v_sub_u32 v3, v0, v3")
        e("v_lshrrev_b32 v4, 1, v3")
        e("v_and_b32 v3, 1, v3")
        e(f"s_lshl_b32 {s(S_TMP)}, {s(S_G)}, 1")
        e(f"s_add_u32 {s(S_TMP)}, {s(S_TMP)}, {s(S_R2)}")
        e(f"v_sub_u32 v5, {s(S_TMP)}, v4")
        e(f"s_mul_i32 {s(S_TMP)}, {s(S_P)}, 5")
        e(f"v_lshl_add_u32 v6, v3, 2, {s(S_TMP)}")
        e("v_lshrrev_b32 v6, 4, v6")
        e("v_mul_u32_u24 v7, 5, v2")
        e("v_add_u32 v6, v6, v7")
        e("v_and_b32 v7, 1, v5")
        e("v_mul_u32_u24 v7, 15, v7")
        e("v_add_u32 v6, v6, v7")
        e("v_lshlrev_b32 v6, 3, v6")
        e("v_ashrrev_i32 v7, 1, v5")
        e("v_add_u32 v6, v6, v7")
        e("v_lshlrev_b32 v8, 7, v6")
        e("v_cmp_gt_u32 vcc, 18, v0")
        e(f"v_cmp_le_i32 {s(S_M,2)}, 0, v5")
        e(f"s_and_b64 vcc, vcc, {s(S_M,2)}")
        e(f"v_cmp_eq_u32 {s(S_M,2)}, 0, v2")
        e(f"v_cmp_lt_u32 {s(S_EX,2)}, 0, v4")
        e(f"s_and_b64 {s(S_M,2)}, {s(S_M,2)}, {s(S_EX,2)}")
        e(f"s_andn2_b64 vcc, vcc, {s(S_M,2)}")
        e("v_readlane_b32 s101, v8, 0")
        e("s_nop 3")
        e("v_mov_b32 v9, s101")
        e("v_cndmask_b32 v8, v9, v8, vcc")
        if self.exp & 4096:
            lanes = [0, 1] + list(range(6, 18))
            dst = list(range(24, 32)) + list(range(36, 40)) + [100, 101]
            for k, ln in enumerate(lanes): e(f"v_readlane_b32 s{82+k}, v8, {ln}")
            Lp = self.L("L_sp")
            self.lab(Lp)
            for k in range(14): e(f"s_load_dword s{dst[k]}, {s(S_WS,2)}, s{82+k} glc")
            e("s_waitcnt lgkmcnt(0)")
            e(f"s_mov_b32 {s(S_TMP)}, -1")
            for k in range(14): e(f"s_min_u32 {s(S_TMP)}, {s(S_TMP)}, s{dst[k]}")
            e(f"s_cmp_ge_u32 {s(S_TMP)}, 2")
            e(f"s_cbranch_scc0 {Lp}")
        else:
            e("v_mov_b32 v9, 2")
            self.poll(8, 9, 10)
        e(f"v_mov_b32 v2, {s(S_MODE)}")
        e(f"v_mov_b32 v3, {LDS_CTRL}")
        e("ds_write_b32 v3, v2")
        e(f"s_branch {Lgo}")
        self.lab(Lns)
        self.wo_issue()
        self.lab(Lgo)
        e("s_waitcnt lgkmcnt(0)")
        self.bar("BS1")
        self.stamp("polled")
        e(f"v_mov_b32 v3, {LDS_CTRL}")
        e("ds_read_b32 v2, v3")
        e(f"buffer_load_dwordx4 {v(VQ0,4)}, v75, {s(SRD_WS,4)}, 0 offen sc1")
        e(f"buffer_load_dwordx4 {v(VQ1,4)}, v76, {s(SRD_WS,4)}, 0 offen sc1")
        e("v_lshlrev_b32 v4, 4, v0")
        for n in range(8):
            Lk = self.L("L_kv")
            if n == 7:
                e(f"s_cmp_ge_u32 {s(S_WV)}, 4"); e(f"s_cbranch_scc1 {Lk}")
            e(f"s_mov_b32 m0, s{74+n}")
            e(f"buffer_load_dwordx4 v4, {s(SRD_WS,4)}, s{66+n} offen sc1 lds")
            if n == 7: self.lab(Lk)
        for r in range(16):
            k0 = 8 * (r >> 2) + (r & 3)
            lo = (0xffffffff << k0) & 0xffffffff
            hi = (0xffffffff << (k0 + 4)) & 0xffffffff
            e(f"s_mov_b32 s{S_MK+2*r}, {lo:#x}")
            e(f"s_mov_b32 s{S_MK+2*r+1}, {hi:#x}")
        e("v_mov_b32 v6, 0xffff"); e("v_mov_b32 v7, 0xffff0000")
        for q in range(8):
            e(f"v_cndmask_b32 v79, 0, v6, {s(S_MK+4*q,2)}")
            e(f"v_cndmask_b32 v80, 0, v7, {s(S_MK+4*q+2,2)}")
            e(f"v_or_b32 {v(BM+q)}, v79, v80")
        e("s_waitcnt lgkmcnt(0)")
        e(f"v_readfirstlane_b32 {s(S_MODE)}, v2")
        e("s_waitcnt vmcnt(0)")
        self.bar("BS2")
        self.stamp("kv_in")
        Lkf = self.L("L_kfs")
        e(f"s_cmp_lg_u32 {s(S_WV)}, 6"); e(f"s_cbranch_scc1 {Lkf}")
        self.kvflag_set()
        self.lab(Lkf)
        self.p2_prefetch(S_P, S_TQ)
        self.stamp("pf_iss")
        La = self.L("L_qa"); Lb = self.L("L_qb")
        e(f"s_mov_b32 {s(S_M)}, -1"); e(f"s_mov_b32 {s(S_M+1)}, 0")
        e(f"s_cmp_eq_u32 {s(S_HD)}, 0")
        e(f"s_cbranch_scc1 {La}")
        e(f"v_mov_b32 {v(VQ1)}, 0"); e(f"v_mov_b32 {v(VQ1+1)}, 0")
        e(f"v_cndmask_b32 {v(VQ1+2)}, 0, {v(VQ1+2)}, {s(S_M,2)}")
        e(f"v_cndmask_b32 {v(VQ1+3)}, 0, {v(VQ1+3)}, {s(S_M,2)}")
        e(f"s_branch {Lb}")
        self.lab(La)
        e(f"v_cndmask_b32 {v(VQ1)}, 0, {v(VQ1)}, {s(S_M,2)}")
        e(f"v_cndmask_b32 {v(VQ1+1)}, 0, {v(VQ1+1)}, {s(S_M,2)}")
        e(f"v_mov_b32 {v(VQ1+2)}, 0"); e(f"v_mov_b32 {v(VQ1+3)}, 0")
        self.lab(Lb)
        Lslow = self.L("L_slow"); Lnorm = self.L("L_norm")
        KS = {0: 16, 8: 24}
        for j in range(1, 8): KS[j] = (32, 16, 24)[(j - 1) % 3]
        SBUF = {0: T[0], 8: T[8]}
        for j in range(1, 8): SBUF[j] = T[1] if j & 1 else T[2]
        pvorder = [0, 8, 1, 2, 3, 4, 5, 6, 7]
        VS = {t: (40, T[3])[n & 1] for n, t in enumerate(pvorder)}
        issued = []
        def ds(tag, text):
            e(text); issued.append(tag)
        def need(tag):
            idx = max(i for i, t in enumerate(issued) if t == tag)
            n = len(issued) - 1 - idx
            e(f"s_waitcnt lgkmcnt({min(n, 15)})")
        def kread(j):
            ds(("K", j), f"ds_read_b128 {v(KS[j],4)}, {v(VK0)} offset:{j*512}")
            ds(("K", j), f"ds_read_b128 {v(KS[j]+4,4)}, {v(VK1)} offset:{j*512}")
        def vread(j, t):
            for u in range(2):
                ds(("V", j, t), f"ds_read_b64_tr_b16 {v(VS[j]+4*t+2*u,2)}, {v(VV)} offset:{j*512+256*t+128*u}")
        def qka(j): return f"v_mfma_f32_32x32x16_bf16 {v(SBUF[j],16)}, {v(KS[j],4)}, {v(VQ0,4)}, 0"
        def qkb(j): return f"v_mfma_f32_32x32x16_bf16 {v(SBUF[j],16)}, {v(KS[j]+4,4)}, {v(VQ1,4)}, {v(SBUF[j],16)}"
        def pvm(j, t, p): return f"v_mfma_f32_32x32x16_bf16 {v(OA,16)}, {v(VS[j]+4*t,4)}, {v(p,4)}, {v(OA,16)}"
        kread(0); kread(8); kread(1)
        for i in range(0, 16, 2): e(f"v_mov_b64 {v(OA+i,2)}, 0")
        need(("K", 0)); e(qka(0)); e(qkb(0))
        vread(0, 0); vread(0, 1)
        need(("K", 8)); e(qka(8)); e(qkb(8))
        kread(2)
        need(("K", 1)); e(qka(1)); e(qkb(1))
        vread(8, 0); vread(8, 1)
        A0 = T[0]; B8 = T[8]
        for r in range(16):
            e(f"v_cndmask_b32 {v(A0+r)}, {v(A0+r)}, {v(B8+r)}, {s(S_MK+2*r,2)}")
        need(("K", 2))
        for i in range(4): e(f"v_exp_f32 {v(A0+i)}, {v(A0+i)}")
        e(qka(2))
        for i in range(4, 16): e(f"v_exp_f32 {v(A0+i)}, {v(A0+i)}")
        e(qkb(2))
        kread(3)
        for t in range(2):
            for q in range(4):
                e(f"v_cvt_pk_bf16_f32 {v(A0+8*t+q)}, {v(A0+8*t+2*q)}, {v(A0+8*t+2*q+1)}")
        for t in range(2):
            for q in range(4):
                src = A0 + 8 * t + q
                e(f"v_and_b32 {v(B8+4*t+q)}, {v(BM+4*t+q)}, {v(src)}")
                e(f"v_bfi_b32 {v(src)}, {v(BM+4*t+q)}, 0, {v(src)}")
        need(("V", 0, 1))
        e(pvm(0, 0, A0))
        def exps(b, lo, hi):
            for i in range(lo, hi): e(f"v_exp_f32 {v(b+i)}, {v(b+i)}")
        def cvts(b, t):
            for q in range(4): e(f"v_cvt_pk_bf16_f32 {v(b+8*t+q)}, {v(b+8*t+2*q)}, {v(b+8*t+2*q+1)}")
        b1 = SBUF[1]
        exps(b1, 0, 3); e(pvm(0, 1, A0 + 8))
        vread(1, 0); vread(1, 1)
        exps(b1, 3, 6); need(("V", 8, 1)); e(pvm(8, 0, B8))
        exps(b1, 6, 8); cvts(b1, 0); e(pvm(8, 1, B8 + 4))
        vread(2, 0); vread(2, 1)
        for j in range(1, 8):
            b = SBUF[j]
            nxt = j + 2 if j == 1 else None
            if j > 1:
                exps(b, 0, 4)
                if j + 1 <= 7: need(("K", j + 1)); e(qka(j + 1))
                exps(b, 4, 8); cvts(b, 0)
            exps(b, 8, 10)
            need(("V", j, 0)); e(pvm(j, 0, b))
            exps(b, 10, 13)
            if j == 1:
                pass
            elif j + 1 <= 7:
                e(qkb(j + 1))
            exps(b, 13, 16); cvts(b, 1)
            if j + 2 <= 7 and j > 1: kread(j + 2)
            e("s_nop 0")
            need(("V", j, 1)); e(pvm(j, 1, b + 8))
            if j + 2 <= 7: vread(j + 2, 0); vread(j + 2, 1)
        self.FASTCHECK = True
        e(f"v_mov_b32 v80, {v(OA+8)}")
        e(f"v_mov_b32 v81, {v(OA+8)}")
        e("v_permlane32_swap_b32 v80, v81")
        e("v_mov_b32 v82, 0x1f800000")
        e("v_mov_b32 v83, 0x5f800000")
        e(f"v_cmp_ge_f32 {s(S_M,2)}, v81, v82")
        e("v_cmp_le_f32 vcc, v81, v83")
        e(f"s_and_b64 vcc, vcc, {s(S_M,2)}")
        e("s_cmp_eq_u64 vcc, -1")
        e(f"s_cbranch_scc0 {Lslow}")
        if self.exp & 8192: e(f"s_branch {Lslow}")
        self.lab(Lnorm)
        self.stamp("attn_done")
        e(f"v_mov_b32 v80, {v(OA+8)}")
        e(f"v_mov_b32 v81, {v(OA+8)}")
        e("v_permlane32_swap_b32 v80, v81")
        e("v_rcp_f32 v81, v81")
        for i in range(12): e(f"v_mul_f32 {v(OA+i)}, v81, {v(OA+i)}")
        for q in range(6): e(f"v_cvt_pk_bf16_f32 {v(84+q)}, {v(OA+2*q)}, {v(OA+2*q+1)}")
        self.store_mode([f"buffer_store_dwordx4 v[84:87], v77, {s(SRD_WS,4)}, 0 offen",
                         "s_mov_b32 exec_hi, 0",
                         f"buffer_store_dwordx2 v[88:89], v78, {s(SRD_WS,4)}, 0 offen",
                         "s_mov_b32 exec_hi, -1"])
        self.stamp("o_iss")
        e("s_waitcnt vmcnt(0)")
        self.stamp("o_drn")
        self.bar("BE2")
        Lw = self.L("L_w")
        e(f"s_cmp_lg_u32 {s(S_WV)}, 6")
        e(f"s_cbranch_scc1 {Lw}")
        self.set_fb(3)
        self.lab(Lw)
        self.stamp("P2end")
        e("s_branch L_P3")
        self.lab(Lslow)
        e("s_nop 7")
        def kreads(j):
            b = KF[j & 1]
            return [f"ds_read_b128 {v(b,4)}, {v(VK0)} offset:{j*512}", f"ds_read_b128 {v(b+4,4)}, {v(VK1)} offset:{j*512}"]
        for t in kreads(0): e(t)
        for j in range(9):
            if j < 8:
                for t in kreads(j + 1): e(t)
                e("s_waitcnt lgkmcnt(2)")
            else:
                e("s_waitcnt lgkmcnt(0)")
            b = KF[j & 1]
            e(f"v_mfma_f32_32x32x16_bf16 {v(T[j],16)}, {v(b,4)}, {v(VQ0,4)}, 0")
            e(f"v_mfma_f32_32x32x16_bf16 {v(T[j],16)}, {v(b+4,4)}, {v(VQ1,4)}, {v(T[j],16)}")
        def vreads(j):
            b = VF[j & 1]
            return [f"ds_read_b64_tr_b16 {v(b+4*t+2*u,2)}, {v(VV)} offset:{j*512+256*t+128*u}" for t in range(2) for u in range(2)]
        for t in vreads(0): e(t)
        Lfix = self.L("L_fix"); Lret = self.L("L_ret")
        e(f"s_lshr_b32 {s(S_TMP)}, {s(S_TQ)}, 5")
        e(f"s_add_u32 {s(S_TMP)}, {s(S_TMP)}, {s(S_QT)}")
        e(f"s_cmp_lt_u32 {s(S_TMP)}, 8")
        e(f"s_cbranch_scc1 {Lfix}")
        self.lab(Lret)
        for r in range(16):
            e(f"v_cndmask_b32 {v(T[0]+r)}, {v(T[0]+r)}, {v(T[8]+r)}, {s(S_MK+2*r,2)}")
        MX = 80
        vals = [T[j] + r for j in range(8) for r in range(16)]
        for k in range(4):
            e(f"v_max3_f32 {v(MX+k)}, {v(vals[3*k])}, {v(vals[3*k+1])}, {v(vals[3*k+2])}")
        idx = 12; k = 0
        while idx + 1 < len(vals):
            e(f"v_max3_f32 {v(MX+k)}, {v(MX+k)}, {v(vals[idx])}, {v(vals[idx+1])}")
            idx += 2; k = (k + 1) & 3
        assert idx == len(vals)
        e(f"v_max3_f32 {v(MX)}, {v(MX)}, {v(MX+1)}, {v(MX+2)}")
        e(f"v_max_f32 {v(MX)}, {v(MX)}, {v(MX+3)}")
        e(f"v_mov_b32 {v(MX+1)}, {v(MX)}")
        e(f"v_permlane32_swap_b32 {v(MX)}, {v(MX+1)}")
        e(f"v_max_f32 {v(MX)}, {v(MX)}, {v(MX+1)}")
        e(f"v_sub_f32 {v(MX)}, 0, {v(MX)}")
        e(f"v_mov_b32 {v(MX+1)}, {v(MX)}")
        for i in range(0, 16, 2): e(f"v_mov_b64 {v(OA+i,2)}, 0")
        def softmax_tile(j):
            b = T[j]
            for i in range(0, 16, 2):
                e(f"v_pk_add_f32 {v(b+i,2)}, {v(b+i,2)}, {v(MX,2)}")
            for i in range(16):
                e(f"v_exp_f32 {v(b+i)}, {v(b+i)}")
            for t in range(2):
                for q in range(4):
                    e(f"v_cvt_pk_bf16_f32 {v(b+8*t+q)}, {v(b+8*t+2*q)}, {v(b+8*t+2*q+1)}")
        def pv(j, p0, p1):
            b = VF[j & 1]
            e(f"v_mfma_f32_32x32x16_bf16 {v(OA,16)}, {v(b,4)}, {v(p0,4)}, {v(OA,16)}")
            e(f"v_mfma_f32_32x32x16_bf16 {v(OA,16)}, {v(b+4,4)}, {v(p1,4)}, {v(OA,16)}")
        softmax_tile(0)
        for t in range(2):
            for q in range(4):
                src = T[0] + 8 * t + q
                e(f"v_and_b32 {v(T[8]+4*t+q)}, {v(BM+4*t+q)}, {v(src)}")
                e(f"v_bfi_b32 {v(src)}, {v(BM+4*t+q)}, 0, {v(src)}")
        for j in range(9):
            if j < 8:
                for t in vreads(j + 1): e(t)
            if 1 <= j < 8: softmax_tile(j)
            e("s_waitcnt lgkmcnt(4)" if j < 8 else "s_waitcnt lgkmcnt(0)")
            if j < 8: pv(j, T[j], T[j] + 8)
            else: pv(8, T[8], T[8] + 4)
        e(f"s_branch {Lnorm}")
        self.lab(Lfix)
        e("s_nop 15")
        e("v_mov_b32 v79, 0xf149f2ca")
        for j in range(8):
            Ls = self.L("L_fs")
            e(f"s_cmp_gt_u32 {s(S_TMP)}, {7-j}")
            e(f"s_cbranch_scc1 {Ls}")
            for r in range(16): e(f"v_mov_b32 {v(T[j]+r)}, v79")
            self.lab(Ls)
        e(f"s_branch {Lret}")


    def s_hs_half_issue(self, half, glc=False):
        e = self.e
        g = " glc" if glc else ""
        e(f"s_load_dwordx16 s[{SH}:{SH+15}], {s(S_DBG,2)}, {128*half}{g}")
        e(f"s_load_dwordx16 s[{SH+16}:{SH+31}], {s(S_DBG,2)}, {128*half+64}{g}")

    def s_hs_half_verify(self, half):
        e = self.e
        L = self.L("L_ha"); L2 = self.L("L_ha")
        e(f"s_branch {L2}")
        self.lab(L)
        e("s_sleep 8")
        self.s_hs_half_issue(half, glc=True)
        self.lab(L2)
        e("s_waitcnt lgkmcnt(0)")
        e(f"s_mov_b32 {s(S_TMP)}, 0x80808080")
        for q in range(32): e(f"s_and_b32 {s(S_TMP)}, {s(S_TMP)}, s{SH+q}")
        e(f"s_cmp_eq_u32 {s(S_TMP)}, 0x80808080")
        e(f"s_cbranch_scc0 {L}")

    def s_hs_all(self):
        for half in range(2):
            self.s_hs_half_issue(half)
            self.s_hs_half_verify(half)

    def wrow_voffsets(self, va, vb, rowbytes):
        e = self.e
        e("v_lshrrev_b32 v2, 3, v0")
        e("v_and_b32 v3, 7, v0")
        e("v_bfe_u32 v4, v0, 4, 1")
        e("v_lshlrev_b32 v4, 2, v4")
        e("v_xor_b32 v3, v3, v4")
        e("v_and_b32 v4, 3, v2")
        e("v_lshrrev_b32 v5, 2, v2")
        e("v_lshl_add_u32 v6, v5, 3, v4")
        e(f"v_mul_u32_u24 v6, {rowbytes}, v6")
        e(f"v_lshl_add_u32 {v(va)}, v3, 4, v6")
        if vb is not None:
            e("v_mul_u32_u24 v6, 20, v5")
            e("v_add_u32 v6, v6, v4")
            e(f"v_mul_u32_u24 v6, {rowbytes}, v6")
            e(f"v_lshl_add_u32 {v(vb)}, v3, 4, v6")

    def p3_decode(self):
        e = self.e
        e(f"s_mul_i32 {s(S_R)}, {s(S_I)}, 26")
        e(f"s_lshr_b32 {s(S_R)}, {s(S_R)}, 8")
        e(f"s_mul_i32 {s(S_TMP)}, {s(S_R)}, 10")
        e(f"s_sub_u32 {s(S_T)}, {s(S_I)}, {s(S_TMP)}")
        e(f"s_mul_i32 {s(S_TMP)}, {s(S_R)}, 96")
        e(f"s_lshl_b32 {s(S_T0)}, {s(S_G)}, 8")
        e(f"s_add_u32 {s(S_T0)}, {s(S_T0)}, {s(S_TMP)}")

    def wo_setup(self):
        e = self.e
        e(f"s_mul_i32 {s(S_TMP)}, {s(S_I)}, 26")
        e(f"s_lshr_b32 {s(S_TMP)}, {s(S_TMP)}, 8")
        e(f"s_mul_i32 {s(S_TMP)}, {s(S_TMP)}, 10")
        e(f"s_sub_u32 {s(S_TMP)}, {s(S_I)}, {s(S_TMP)}")
        e(f"s_lshl_b32 {s(S_TMP)}, {s(S_TMP)}, 7")
        self.srd(SRD_W, S_WO, S_TMP, 640 * 1280)
        self.wrow_voffsets(40, 41, 1280)

    def wo_range(self, s_u, s_end):
        e = self.e
        L = self.L("L_wol")
        self.lab(L)
        e(f"s_mov_b32 {s(S_TMP)}, 0"); e(f"s_mov_b32 {s(S_TMP2)}, 0"); e(f"s_mov_b32 {s(S_TMP4)}, 0")
        for lim, st, off, var in ((16, 16, 20, 0), (32, 32, 16, 1), (40, 40, 4, 0), (56, 56, 24, 0), (72, 64, 16, 1)):
            e(f"s_cmp_ge_u32 {s(s_u)}, {lim}")
            e(f"s_cselect_b32 {s(S_TMP)}, {st}, {s(S_TMP)}")
            e(f"s_cselect_b32 {s(S_TMP2)}, {off}, {s(S_TMP2)}")
            e(f"s_cselect_b32 {s(S_TMP4)}, {var}, {s(S_TMP4)}")
        e(f"s_sub_u32 {s(S_TMP)}, {s(s_u)}, {s(S_TMP)}")
        e(f"s_mul_i32 {s(S_TMP)}, {s(S_TMP)}, 40")
        e(f"s_add_u32 {s(S_TMP)}, {s(S_TMP)}, {s(S_TMP2)}")
        e(f"s_mul_i32 {s(S_TMP)}, {s(S_TMP)}, 1280")
        e(f"s_lshl_b32 {s(S_TMP2)}, {s(s_u)}, 10")
        e(f"s_add_u32 m0, {s(S_TMP2)}, {LDS_WO}")
        Lb = self.L("L_wob"); Lc = self.L("L_woc")
        e(f"s_cmp_eq_u32 {s(S_TMP4)}, 1"); e(f"s_cbranch_scc1 {Lb}")
        e(f"buffer_load_dwordx4 v40, {s(SRD_W,4)}, {s(S_TMP)} offen lds")
        e(f"s_branch {Lc}")
        self.lab(Lb)
        e(f"buffer_load_dwordx4 v41, {s(SRD_W,4)}, {s(S_TMP)} offen lds")
        self.lab(Lc)
        e(f"s_add_u32 {s(s_u)}, {s(s_u)}, 1")
        e(f"s_cmp_lt_u32 {s(s_u)}, {s(s_end)}")
        e(f"s_cbranch_scc1 {L}")

    def touch_planes(self, nplanes, lines_per_plane, base_sgpr, vdst):
        e = self.e
        tot = nplanes * lines_per_plane
        n = (tot + 63) // 64
        for k in range(n):
            e(f"v_add_u32 v2, {64*k}, v0")
            if lines_per_plane == 8:
                e("v_lshrrev_b32 v3, 3, v2"); e("v_and_b32 v4, 7, v2")
            elif lines_per_plane == 16:
                e("v_lshrrev_b32 v3, 4, v2"); e("v_and_b32 v4, 15, v2")
            else:
                e("v_mul_u32_u24 v3, 171, v2"); e("v_lshrrev_b32 v3, 11, v3"); e("v_mul_u32_u24 v4, 12, v3"); e("v_sub_u32 v4, v2, v4")
            e("v_lshlrev_b32 v3, 15, v3")
            e("v_lshl_add_u32 v3, v4, 7, v3")
            if tot - 64 * k < 64:
                e(f"v_cmp_gt_u32 vcc, {tot-64*k}, v0")
                e("v_cndmask_b32 v3, 0, v3, vcc")
            e(f"buffer_load_dword {v(vdst+k)}, v3, {s(SRD_WS,4)}, {s(base_sgpr)} offen")

    def touch_o(self, s_p, s_tq):
        e = self.e
        e(f"s_cmp_lt_u32 {s(s_p)}, 8"); e(f"s_cselect_b32 {s(S_TMP)}, 32, 64"); e(f"s_add_u32 {s(S_TMP)}, {s(S_TMP)}, {s(s_p)}")
        e(f"s_lshl_b32 {s(S_TMP2)}, {s(s_tq)}, 4"); e(f"s_add_u32 {s(S_TMP2)}, {s(S_TMP2)}, {WS_O}")
        e("v_lshrrev_b32 v2, 4, v0"); e("v_and_b32 v4, 15, v0")
        e("v_lshrrev_b32 v3, 1, v2"); e("v_lshlrev_b32 v3, 4, v3"); e("v_and_b32 v5, 1, v2"); e("v_mul_u32_u24 v5, 40, v5")
        e("v_add_u32 v3, v3, v5"); e(f"v_add_u32 v3, {s(s_p)}, v3")
        e("v_lshlrev_b32 v3, 15, v3"); e("v_lshl_add_u32 v3, v4, 7, v3")
        e(f"buffer_load_dword v252, v3, {s(SRD_WS,4)}, {s(S_TMP2)} offen")
        e(f"s_lshl_b32 {s(S_TMP)}, {s(S_TMP)}, 15"); e(f"s_add_u32 {s(S_TMP2)}, {s(S_TMP2)}, {s(S_TMP)}")
        e("v_lshlrev_b32 v3, 7, v4")
        e(f"buffer_load_dword v253, v3, {s(SRD_WS,4)}, {s(S_TMP2)} offen")

    def touch_h(self):
        e = self.e
        e(f"s_mul_i32 {s(S_TMP)}, {s(S_I)}, 26"); e(f"s_lshr_b32 {s(S_TMP)}, {s(S_TMP)}, 8")
        e(f"s_mul_i32 {s(S_TMP2)}, {s(S_TMP)}, 10"); e(f"s_sub_u32 {s(S_TMP2)}, {s(S_I)}, {s(S_TMP2)}")
        e(f"s_mul_i32 {s(S_TMP)}, {s(S_TMP)}, 96"); e(f"s_lshl_b32 {s(S_TMP3)}, {s(S_G)}, 8"); e(f"s_add_u32 {s(S_TMP)}, {s(S_TMP)}, {s(S_TMP3)}")
        e(f"s_lshl_b32 {s(S_TMP3)}, {s(S_TMP2)}, 14"); e(f"s_lshl_b32 {s(S_TMP4)}, {s(S_TMP)}, 3")
        e(f"s_add_u32 {s(S_TMP3)}, {s(S_TMP3)}, {s(S_TMP4)}"); e(f"s_add_u32 {s(S_TMP3)}, {s(S_TMP3)}, {WS_ST2}")
        e("v_and_b32 v3, 7, v0"); e("v_lshlrev_b32 v3, 7, v3")
        e(f"buffer_load_dword v249, v3, {s(SRD_WS,4)}, {s(S_TMP3)} offen")
        e(f"s_lshl_b32 {s(S_TMP2)}, {s(S_TMP2)}, 18"); e(f"s_lshl_b32 {s(S_TMP)}, {s(S_TMP)}, 4")
        e(f"s_add_u32 {s(S_TMP)}, {s(S_TMP)}, {s(S_TMP2)}"); e(f"s_add_u32 {s(S_TMP4)}, {s(S_TMP)}, {WS_H}")
        self.touch_planes(8, 12, S_TMP4, 250)

    def touch_h1(self, dst=100):
        e = self.e
        e(f"s_and_b32 {s(S_TMP)}, {s(S_I)}, 7"); e(f"s_mul_i32 {s(S_TMP)}, {s(S_TMP)}, 24"); e(f"s_lshl_b32 {s(S_TMP)}, {s(S_TMP)}, 15")
        e(f"s_lshr_b32 {s(S_TMP2)}, {s(S_I)}, 3"); e(f"s_lshl_b32 {s(S_TMP2)}, {s(S_TMP2)}, 6")
        e(f"s_lshl_b32 {s(S_TMP3)}, {s(S_G)}, 8"); e(f"s_add_u32 {s(S_TMP2)}, {s(S_TMP2)}, {s(S_TMP3)}"); e(f"s_lshl_b32 {s(S_TMP2)}, {s(S_TMP2)}, 4")
        e(f"s_add_u32 {s(S_TMP)}, {s(S_TMP)}, {s(S_TMP2)}")
        e(f"s_add_u32 {s(S_TMP4)}, {s(S_TMP)}, {WS_H1}")
        self.touch_planes(24, 8, S_TMP4, dst)

    def touch_w1(self, k0, k1):
        e = self.e
        self.srd(SRD_T, S_W1, size=640 * 3072)
        e("v_lshlrev_b32 v2, 7, v0")
        for k in range(k0, k1):
            e(f"s_lshl_b32 {s(S_TMP)}, {s(S_I)}, 3")
            e(f"s_add_u32 {s(S_TMP)}, {s(S_TMP)}, {k}")
            e(f"s_mul_i32 {s(S_TMP)}, {s(S_TMP)}, {60*128}")
            e(f"buffer_load_dword {v(104+k)}, v2, {s(SRD_T,4)}, {s(S_TMP)} offen")

    def p2_prefetch(self, s_p, s_tq):
        e = self.e
        Lsk = self.L("L_pf"); Lnw = self.L("L_pf")
        e(f"s_cmp_ge_u32 {s(S_WV)}, 4"); e(f"s_cbranch_scc1 {Lsk}")
        e(f"s_and_b32 {s(S_TMP)}, {s(S_I)}, 7")
        e(f"s_cmp_lt_u32 {s(S_TMP)}, 6"); e(f"s_cbranch_scc1 {Lnw}")
        e(f"s_cmp_lg_u32 {s(S_WV)}, 3"); e(f"s_cbranch_scc1 {Lnw}")
        e(f"s_lshr_b32 {s(S_TMP2)}, {s(S_I)}, 3"); e(f"s_lshl_b32 {s(S_TMP2)}, {s(S_TMP2)}, 6")
        e(f"s_lshl_b32 {s(S_TMP3)}, {s(S_G)}, 8"); e(f"s_add_u32 {s(S_TMP2)}, {s(S_TMP2)}, {s(S_TMP3)}"); e(f"s_lshl_b32 {s(S_TMP2)}, {s(S_TMP2)}, 4")
        e(f"s_add_u32 {s(S_TMP4)}, {s(S_TMP2)}, {WS_QKV + 240*CH}")
        L7 = self.L("L_pf")
        e(f"s_cmp_eq_u32 {s(S_TMP)}, 7"); e(f"s_cbranch_scc1 {L7}")
        self.touch_planes(8, 8, S_TMP4, 250)
        e(f"s_branch {Lnw}")
        self.lab(L7)
        e(f"s_add_u32 {s(S_TMP4)}, {s(S_TMP4)}, {8*CH}")
        self.touch_planes(24, 8, S_TMP4, 250)
        self.lab(Lnw)
        self.lab(Lsk)
        for wv, ptr, size in ((0, S_W1, 640 * 3072), (1, S_W2, 1536 * 1280)):
            Ln = self.L("L_pf")
            e(f"s_cmp_lg_u32 {s(S_WV)}, {wv}"); e(f"s_cbranch_scc1 {Ln}")
            self.srd(SRD_T, ptr, size=size)
            e(f"s_mul_i32 {s(S_TMP)}, s2, {60*128}")
            e("v_lshlrev_b32 v2, 7, v0")
            e(f"buffer_load_dword v253, v2, {s(SRD_T,4)}, {s(S_TMP)} offen")
            self.lab(Ln)

    def wo_issue(self):
        e = self.e
        Lsk = self.L("L_wi")
        e(f"s_cmp_ge_u32 {s(S_I)}, 30"); e(f"s_cbranch_scc1 {Lsk}")
        self.wo_setup()
        e(f"s_min_u32 {s(S_IT)}, {s(S_WV)}, 6")
        L = self.L("L_wil")
        self.lab(L)
        e(f"s_mul_i32 {s(S_TMP2)}, {s(S_IT)}, {40*1280}")
        e(f"s_mul_i32 {s(S_TMP4)}, {s(S_IT)}, {5*1024}"); e(f"s_add_u32 m0, {s(S_TMP4)}, {LDS_WO}")
        for m in range(5):
            if m: e(f"s_add_u32 m0, m0, {s(S_C1024)}")
            e(f"s_add_u32 {s(S_TMP)}, {s(S_TMP2)}, {(0, 4, 20, 24, 16)[m]*1280}")
            e(f"buffer_load_dwordx4 {'v41' if m == 4 else 'v40'}, {s(SRD_W,4)}, {s(S_TMP)} offen lds")
        e(f"s_add_u32 {s(S_IT)}, {s(S_IT)}, 7")
        e(f"s_cmp_lt_u32 {s(S_IT)}, 16"); e(f"s_cbranch_scc1 {L}")
        self.lab(Lsk)

    def kvflag_set(self):
        e = self.e
        e(f"s_lshl_b32 {s(S_TMP)}, {s(S_G)}, 5")
        e(f"s_add_u32 {s(S_TMP)}, {s(S_TMP)}, {s(S_I)}")
        e(f"s_and_b32 {s(S_TMP2)}, {s(S_TMP)}, 3")
        e(f"s_lshl_b32 {s(S_TMP2)}, {s(S_TMP2)}, 3")
        e(f"s_and_b32 {s(S_TMP)}, {s(S_TMP)}, 0xfc")
        e(f"s_lshl_b32 {s(S_TMP4)}, 0x40, {s(S_TMP2)}")
        e(f"s_atomic_or {s(S_TMP4)}, {s(S_DBG,2)}, {s(S_TMP)}")

    def kvflag_issue(self, glc=False):
        e = self.e
        g = " glc" if glc else ""
        e(f"s_lshl_b32 {s(S_TMP)}, {s(S_G)}, 5")
        e(f"s_load_dwordx8 s[{SH}:{SH+7}], {s(S_DBG,2)}, {s(S_TMP)}{g}")
        e(f"s_add_u32 {s(S_TMP)}, {s(S_G)}, 1"); e(f"s_min_u32 {s(S_TMP)}, {s(S_TMP)}, 7"); e(f"s_lshl_b32 {s(S_TMP)}, {s(S_TMP)}, 5")
        e(f"s_load_dwordx8 s[{SH+8}:{SH+15}], {s(S_DBG,2)}, {s(S_TMP)}{g}")

    def kvflag_verify(self):
        e = self.e
        L = self.L("L_kf"); L2 = self.L("L_kf")
        e(f"s_branch {L2}")
        self.lab(L)
        e("s_sleep 8")
        self.kvflag_issue(glc=True)
        self.lab(L2)
        e("s_waitcnt lgkmcnt(0)")
        e(f"s_mov_b32 {s(S_TMP)}, 0x40404040")
        for q in range(16): e(f"s_and_b32 {s(S_TMP)}, {s(S_TMP)}, s{SH+q}")
        e(f"s_cmp_eq_u32 {s(S_TMP)}, 0x40404040")
        e(f"s_cbranch_scc0 {L}")

    def role_dispatch(self, ph):
        e = self.e
        e(f"s_cmp_lt_u32 {s(S_WV)}, 4"); e(f"s_cbranch_scc1 L_C{ph}")
        e(f"s_cmp_eq_u32 {s(S_WV)}, 6"); e(f"s_cbranch_scc1 L_S{ph}")
        e(f"s_cmp_eq_u32 {s(S_WV)}, 7"); e(f"s_cbranch_scc1 L_X{ph}")

    def poll_fb(self, val, need_mask_sgpr):
        e = self.e
        e(f"s_lshl_b32 {s(S_TMP2)}, {s(S_G)}, 8")
        e(f"s_add_u32 {s(S_TMP2)}, {s(S_TMP2)}, {WS_FB}")
        e("v_and_b32 v2, 31, v0")
        e(f"v_lshl_add_u32 v8, v2, 2, {s(S_TMP2)}")
        e(f"v_lshrrev_b32 v3, v2, {s(need_mask_sgpr)}") if False else None
        e(f"v_mov_b32 v3, {s(need_mask_sgpr)}")
        e("v_lshrrev_b32 v3, v2, v3")
        e("v_and_b32 v3, 1, v3")
        e(f"v_mul_u32_u24 v9, {val}, v3")
        self.poll(8, 9, 10)

    def frag_addr_w128(self, vdst, hstride, base):
        e = self.e
        e("v_lshrrev_b32 v2, 5, v0")
        e("v_bfe_u32 v3, v0, 2, 2")
        e("v_bfe_u32 v4, v0, 4, 1")
        e("v_lshlrev_b32 v4, 1, v4")
        e("v_bfe_u32 v5, v0, 1, 1")
        e("v_or_b32 v4, v4, v5")
        e(f"s_and_b32 {s(S_TMP)}, {s(S_WV)}, 1")
        e(f"s_lshl_b32 {s(S_TMP)}, {s(S_TMP)}, 2")
        e(f"v_or_b32 v4, {s(S_TMP)}, v4")
        e("v_bfe_u32 v5, v0, 3, 1")
        e("v_lshlrev_b32 v5, 2, v5")
        e("v_xor_b32 v4, v4, v5")
        e("v_lshlrev_b32 v4, 4, v4")
        e("v_lshl_add_u32 v4, v3, 7, v4")
        e("v_and_b32 v5, 1, v0")
        e("v_lshl_add_u32 v4, v5, 3, v4")
        e(f"v_mul_u32_u24 v5, {hstride}, v2")
        e("v_add_u32 v4, v4, v5")
        e(f"v_add_u32 {v(vdst)}, {base}, v4")

    HRES = 240

    def pair_reduce(self, ACC, xbase, RED):
        e = self.e
        Lk = self.L("L_k1"); Lj = self.L("L_kj")
        e(f"s_mul_i32 {s(S_TMP)}, {s(S_WV)}, 6144")
        e(f"s_add_u32 {s(S_TMP)}, {s(S_TMP)}, {xbase}")
        e(f"v_lshl_add_u32 v2, v0, 4, {s(S_TMP)}")
        e(f"s_xor_b32 {s(S_TMP)}, {s(S_WV)}, 2")
        e(f"s_mul_i32 {s(S_TMP)}, {s(S_TMP)}, 6144")
        e(f"s_add_u32 {s(S_TMP)}, {s(S_TMP)}, {xbase}")
        e(f"v_lshl_add_u32 v3, v0, 4, {s(S_TMP)}")
        e(f"s_cmp_ge_u32 {s(S_WV)}, 2"); e(f"s_cbranch_scc1 {Lk}")
        for kh, lab in ((0, None), (1, Lk)):
            if lab: self.lab(lab)
            for tt in range(3):
                o = ACC + 16 * tt + 8 * (1 - kh)
                e(f"ds_write_b128 v2, {v(o,4)} offset:{tt*2048}")
                e(f"ds_write_b128 v2, {v(o+4,4)} offset:{tt*2048+1024}")
            e("s_waitcnt lgkmcnt(0)")
            self.e("s_barrier") if kh == 1 else self.bar_pending("BR1")
            for tt in range(3):
                e(f"ds_read_b128 {v(RED+8*tt,4)}, v3 offset:{tt*2048}")
                e(f"ds_read_b128 {v(RED+8*tt+4,4)}, v3 offset:{tt*2048+1024}")
            e("s_waitcnt lgkmcnt(0)")
            for tt in range(3):
                k = ACC + 16 * tt + 8 * kh
                for i in range(0, 8, 2):
                    e(f"v_pk_add_f32 {v(RED+8*tt+i,2)}, {v(RED+8*tt+i,2)}, {v(k+i,2)}")
            if kh == 0: e(f"s_branch {Lj}")
        self.lab(Lj)

    def bar_pending(self, name):
        self.bars.setdefault(self.role, []).append(name)
        self.e("s_barrier")

    def gemm96_loop(self, tag, nst, slot_bytes, nslot, woff, aoff, wks, VW, VB, ACC, FA_, FB_, first_slot=0, wres=False):
        e = self.e
        VWc, VBc = VW + 1, VB + 1
        def reads(m):
            fa = FA_ + 4 * m; fb = FB_ + 12 * m
            o = [f"ds_read_b64_tr_b16 {v(fa+2*u,2)}, {v(VWc)} offset:{m*2*wks+u*512}" for u in range(2)]
            o += [f"ds_read_b128 {v(fb+4*tt,4)}, {v(VBc)} offset:{m*6144+tt*1024}" for tt in range(3)]
            return o
        def mf(m):
            fa = FA_ + 4 * m; fb = FB_ + 12 * m
            return [f"v_mfma_f32_32x32x16_bf16 {v(ACC+16*tt,16)}, {v(fa,4)}, {v(fb+4*tt,4)}, {v(ACC+16*tt,16)}" for tt in range(3)]
        def upd():
            o = [f"v_add_u32 {v(VBc)}, {s(S_SLOT)}, {v(VB)}"]
            o.append(f"v_add_u32 {v(VWc)}, {s(S_KW) if wres else s(S_SLOT)}, {v(VW)}")
            return o
        def step(m, rd):
            mm = mf(m)
            e(mm[0]); e(rd[0]); e(rd[1]); e(mm[1]); e(rd[2]); e(rd[3]); e(mm[2]); e(rd[4])
        e(f"s_mov_b32 {s(S_SLOT)}, {first_slot*slot_bytes}")
        e(f"s_mov_b32 {s(S_KW)}, 0")
        e(f"s_mov_b32 {s(S_IT)}, 0")
        for t in upd(): e(t)
        self.bar(tag + "0")
        for t in reads(0): e(t)
        for t in reads(1): e(t)
        L = f"L_{tag}LOOP"
        self.lab(L)
        e("s_waitcnt lgkmcnt(5)"); step(0, reads(2))
        e("s_waitcnt lgkmcnt(5)"); step(1, reads(3))
        e(f"s_add_u32 {s(S_SLOT)}, {s(S_SLOT)}, {slot_bytes}")
        e(f"s_cmp_eq_u32 {s(S_SLOT)}, {nslot*slot_bytes}")
        e(f"s_cselect_b32 {s(S_SLOT)}, 0, {s(S_SLOT)}")
        e(f"s_add_u32 {s(S_KW)}, {s(S_KW)}, {8*wks}")
        for t in upd(): e(t)
        e("s_waitcnt lgkmcnt(0)")
        self.itstamp(252, tag)
        self.bar(tag + "loop")
        self.itstamp(253, tag)
        step(2, reads(0))
        step(3, reads(1))
        e(f"s_add_u32 {s(S_IT)}, {s(S_IT)}, 1")
        e(f"s_cmp_lt_u32 {s(S_IT)}, {nst}")
        e(f"s_cbranch_scc1 {L}")

    def simple_bar_loop(self, tag, nst, lab):
        e = self.e
        self.bar(tag + "0")
        e(f"s_mov_b32 {s(S_IT)}, 0")
        self.lab(lab)
        self.bar(tag + "loop")
        e(f"s_add_u32 {s(S_IT)}, {s(S_IT)}, 1")
        e(f"s_cmp_lt_u32 {s(S_IT)}, {nst}")
        e(f"s_cbranch_scc1 {lab}")

    def phase3(self):
        e = self.e
        self.role = "P3"
        self.lab("L_P3")
        e(f"s_cmp_ge_u32 {s(S_I)}, 30")
        e("s_cbranch_scc1 L_CS1")
        self.p3_decode()
        self.role_dispatch(3)
        self.role = "L"
        e("v_lshrrev_b32 v2, 5, v0"); e("v_and_b32 v3, 31, v0")
        e("v_lshlrev_b32 v2, 15, v2")
        e("v_lshl_add_u32 v8, v3, 4, v2")
        for idx in range(1, 12):
            e(f"v_add_u32 {v(8+idx)}, {(idx//3)*2*CH + (idx%3)*512}, v8")
        e(f"s_and_b32 {s(S_TMP3)}, {s(S_WV)}, 1")
        e(f"s_lshl_b32 {s(S_KA)}, {s(S_TMP3)}, 18")
        e(f"s_lshl_b32 {s(S_TMP)}, {s(S_T0)}, 4")
        e(f"s_add_u32 {s(S_KA)}, {s(S_KA)}, {s(S_TMP)}")
        e(f"s_add_u32 {s(S_KA)}, {s(S_KA)}, {WS_O}")
        e(f"s_mul_i32 {s(S_TMP4)}, {s(S_TMP3)}, {12*1024}")
        ait3 = [(8 + q, SRD_WS, S_KA, q * 1024, True) for q in range(12)]
        def a_stage(slot):
            e(f"s_add_u32 {s(S_TMP)}, {s(S_TMP4)}, {slot*24576}")
            self.dma_group(ait3, S_TMP)
            e(f"s_add_u32 {s(S_KA)}, {s(S_KA)}, {16*CH}")
        e("s_setprio 3")
        self.bar("BP3a")
        self.stamp("L3go")
        a_stage(0); a_stage(1)
        e("s_waitcnt vmcnt(12)"); self.bar("B30")
        a_stage(2)
        e("s_waitcnt vmcnt(12)"); self.bar("B3loop"); a_stage(0)
        e("s_waitcnt vmcnt(12)"); e("s_barrier"); a_stage(1)
        e("s_waitcnt vmcnt(12)"); e("s_barrier")
        e("s_waitcnt vmcnt(0)"); e("s_barrier")
        e("s_barrier")
        wit, ait = self.l4_setup()
        self.bar("BR1")
        self.ring_pre(wit, 64 * 3072, 32768, between={1: lambda: self.bar("BE3")})
        e("s_branch L_L4B")
        self.role = "S"
        self.lab("L_S3")
        e(f"s_mov_b32 {s(S_TMP)}, 0xffff")
        e(f"s_cmp_eq_u32 {s(S_R)}, 1"); e(f"s_cselect_b32 {s(S_TMP)}, -1, {s(S_TMP)}")
        e(f"s_cmp_eq_u32 {s(S_R)}, 2"); e(f"s_cselect_b32 {s(S_TMP)}, 0xffff0000, {s(S_TMP)}")
        e(f"s_mov_b32 {s(S_TMP4)}, {s(S_TMP)}")
        self.kvflag_issue()
        self.poll_fb(3, S_TMP4)
        self.bar("BP3a")
        self.kvflag_verify()
        self.simple_bar_loop("B3", 5, "L_S3LOOP")
        self.bar("BR1"); self.bar("BE3")
        self.set_fb(4)
        e("s_branch L_P4")
        self.role = "X"
        self.lab("L_X3")
        self.bar("BP3a")
        self.simple_bar_loop("B3", 5, "L_X3LOOP")
        self.bar("BR1"); self.bar("BE3")
        e("s_branch L_P4")
        self.role = "C"
        self.lab("L_C3")
        ACC = 64; FA_ = 112; FB_ = 192; VW = 16; VB = 18; XR = 144; RED = 160
        HR = self.HRES
        e("v_and_b32 v1, 31, v0"); e("v_lshrrev_b32 v2, 5, v0")
        e(f"v_add_u32 v3, {s(S_T0)}, v1")
        e("v_mul_u32_u24 v4, 1280, v3")
        e(f"s_lshl_b32 {s(S_TMP)}, {s(S_T)}, 6")
        e(f"s_and_b32 {s(S_TMP2)}, {s(S_WV)}, 1"); e(f"s_lshl_b32 {s(S_TMP2)}, {s(S_TMP2)}, 5")
        e(f"s_add_u32 {s(S_TMP)}, {s(S_TMP)}, {s(S_TMP2)}")
        e(f"s_lshr_b32 {s(S_TMP2)}, {s(S_WV)}, 1"); e(f"s_lshl_b32 {s(S_TMP2)}, {s(S_TMP2)}, 4")
        e(f"s_add_u32 {s(S_N0)}, {s(S_TMP)}, {s(S_TMP2)}")
        e(f"v_lshl_add_u32 v5, v2, 2, {s(S_N0)}")
        e("v_lshl_add_u32 v4, v5, 1, v4")
        self.srd(SRD_T, S_X, size=2048 * 1280)
        for tt in range(3):
            e(f"s_mov_b32 {s(S_TMP)}, {tt*32*1280}")
            for jj in range(2):
                e(f"buffer_load_dwordx2 {v(XR+4*tt+2*jj,2)}, v4, {s(SRD_T,4)}, {s(S_TMP)} offen offset:{jj*16}")
        e(f"s_lshr_b32 {s(S_TMP)}, {s(S_N0)}, 3")
        e(f"v_add_u32 v5, {s(S_TMP)}, v2")
        e("v_lshlrev_b32 v5, 15, v5")
        e("v_lshl_add_u32 v5, v3, 4, v5")
        e(f"v_add_u32 v20, {WS_H}, v5")
        self.frag_addr_w128(VW, 1024, LDS_WO)
        e(f"s_lshr_b32 {s(S_TMP)}, {s(S_WV)}, 1")
        e(f"s_lshl_b32 {s(S_TMP2)}, {s(S_TMP)}, 11")
        e(f"v_add_u32 {v(VW)}, {s(S_TMP2)}, {v(VW)}")
        e(f"s_mul_i32 {s(S_TMP)}, {s(S_TMP)}, 3072")
        e(f"v_lshl_add_u32 {v(VB)}, v0, 4, {s(S_TMP)}")
        for i in range(0, 48, 2): e(f"v_mov_b64 {v(ACC+i,2)}, 0")
        self.bar("BP3a")
        self.stamp("C3go")
        self.gemm96_loop("B3", 5, 24576, 3, 0, 0, 2048, VW, VB, ACC, FA_, FB_, wres=True)
        self.stamp("C3loop")
        self.pair_reduce(ACC, 131072, RED)
        e("s_waitcnt vmcnt(0)")
        for tt in range(3):
            for q in range(4):
                x = XR + 4 * tt + q; d = RED + 8 * tt + 2 * q
                e(f"v_lshlrev_b32 v2, 16, {v(x)}")
                e(f"v_and_b32 v3, 0xffff0000, {v(x)}")
                e(f"v_add_f32 {v(d)}, {v(d)}, v2")
                e(f"v_add_f32 {v(d+1)}, {v(d+1)}, v3")
                e(f"v_cvt_pk_bf16_f32 {v(HR+4*tt+q)}, {v(d)}, {v(d+1)}")
        st = [f"buffer_store_dwordx4 {v(HR+4*tt,4)}, v20, {s(SRD_WS,4)}, 0 offen offset:{tt*512}" for tt in range(3)]
        Ls = self.L("L_c3s"); Lt = self.L("L_c3t")
        e(f"s_cmp_eq_u32 {s(S_R)}, 2"); e(f"s_cbranch_scc1 {Ls}")
        self.store_mode(st)
        e(f"s_branch {Lt}")
        self.lab(Ls)
        self.store_mode(st[:2])
        self.lab(Lt)
        e("s_waitcnt vmcnt(0)")
        self.bar("BE3")
        self.stamp("C3end")
        e("s_branch L_P4")


    def phase4(self):
        e = self.e
        self.role = "P4"
        self.lab("L_P4")
        e(f"s_lshr_b32 {s(S_R)}, {s(S_I)}, 3")
        e(f"s_and_b32 {s(S_T)}, {s(S_I)}, 7")
        e(f"s_lshl_b32 {s(S_T0)}, {s(S_G)}, 8")
        e(f"s_lshl_b32 {s(S_TMP)}, {s(S_R)}, 6")
        e(f"s_add_u32 {s(S_T0)}, {s(S_T0)}, {s(S_TMP)}")
        e(f"s_mul_i32 {s(S_N0)}, {s(S_T)}, 192")
        self.role_dispatch(4)
        LST = LDS_P4ST; LCS = LST + 512
        self.role = "L"
        wit, ait = self.l4_setup()
        self.ring_pre(wit, 64 * 3072, 32768)
        self.lab("L_L4B")
        self.bar("BP4a")
        self.stamp("L4go")
        self.ring_main(wit, ait, 64 * 3072, 8 * CH, 10, 32768, "B4", "L_L4LOOP")
        self.bar("BC4")
        Lno = self.L("L_no5")
        e(f"s_cmp_ge_u32 {s(S_I)}, 30"); e(f"s_cbranch_scc1 {Lno}")
        wit5, ait5 = self.l5_setup()
        self.ring_pre(wit5, 128 * 1280, 40960)
        self.bar("BE4")
        e("s_branch L_L5B")
        self.lab(Lno)
        e("s_barrier")
        e("s_branch L_FIN")
        self.wit5, self.ait5 = wit5, ait5
        self.role = "S"
        self.lab("L_S4")
        e(f"s_mov_b32 {s(S_TMP4)}, 0x3ff")
        e(f"s_cmp_eq_u32 {s(S_R)}, 1"); e(f"s_cselect_b32 {s(S_TMP4)}, 0xfffff, {s(S_TMP4)}")
        e(f"s_cmp_eq_u32 {s(S_R)}, 2"); e(f"s_cselect_b32 {s(S_TMP4)}, 0xffc00, {s(S_TMP4)}")
        e(f"s_cmp_eq_u32 {s(S_R)}, 3"); e(f"s_cselect_b32 {s(S_TMP4)}, 0x3ff00000, {s(S_TMP4)}")
        Lkq = self.L("L_kq")
        e(f"s_cmp_lt_u32 {s(S_I)}, 30"); e(f"s_cbranch_scc1 {Lkq}")
        self.kvflag_issue()
        self.kvflag_verify()
        self.lab(Lkq)
        self.poll_fb(4, S_TMP4)
        self.bar("BP4a")
        self.ln2_stats_loop("L_S4LOOP")
        self.bar("BE4")
        self.set_fb(5)
        e("s_branch L_P5")
        self.role = "X"
        self.lab("L_X4")
        self.bar("BP4a")
        self.ln2_stats_loop("L_X4LOOP", cs1=True)
        self.bar("BE4")
        e("s_branch L_P5")
        self.role = "C"
        self.lab("L_C4")
        ACC = 64; FA_ = 112; FB_ = 160; VW = 8; VWc = 12; VB = 16; VBc = 17; CS = 144; PK = 192
        e("v_lshrrev_b32 v2, 5, v0"); e("v_bfe_u32 v3, v0, 2, 2")
        e("v_lshl_add_u32 v6, v2, 3, v3"); e("v_mul_u32_u24 v6, 384, v6")
        e("v_and_b32 v5, 1, v0"); e("v_lshl_add_u32 v6, v5, 3, v6")
        e("v_bfe_u32 v4, v0, 4, 1"); e("v_lshlrev_b32 v4, 1, v4"); e("v_bfe_u32 v5, v0, 1, 1"); e("v_or_b32 v4, v4, v5")
        e(f"s_and_b32 {s(S_TMP)}, {s(S_WV)}, 1"); e(f"s_mul_i32 {s(S_TMP)}, {s(S_TMP)}, 12")
        e(f"v_add_u32 v4, {s(S_TMP)}, v4")
        e("v_bfe_u32 v5, v0, 3, 1"); e("v_lshlrev_b32 v5, 2, v5")
        for f in range(3):
            e(f"v_add_u32 v7, {4*f}, v4"); e("v_xor_b32 v7, v7, v5")
            e(f"v_lshl_add_u32 {v(VW+f)}, v7, 4, v6")
        e(f"s_lshr_b32 {s(S_TMP)}, {s(S_WV)}, 1"); e(f"s_lshl_b32 {s(S_TMP)}, {s(S_TMP)}, 10")
        e(f"s_add_u32 {s(S_TMP)}, {s(S_TMP)}, 24576")
        e(f"v_lshl_add_u32 {v(VB)}, v0, 4, {s(S_TMP)}")
        for i in range(0, 48, 2): e(f"v_mov_b64 {v(ACC+i,2)}, 0")
        e("v_and_b32 v1, 31, v0")
        e(f"s_lshr_b32 {s(S_TMP)}, {s(S_WV)}, 1"); e(f"s_lshl_b32 {s(S_TMP)}, {s(S_TMP)}, 5")
        e(f"v_add_u32 v3, {s(S_TMP)}, v1")
        e(f"v_lshlrev_b32 v20, 3, v3"); e(f"v_add_u32 v20, {LST}, v20")
        e(f"v_add_u32 v3, {s(S_T0)}, v3")
        e(f"s_and_b32 {s(S_TMP)}, {s(S_WV)}, 1"); e(f"s_mul_i32 {s(S_TMP)}, {s(S_TMP)}, 96")
        e(f"s_lshl_b32 {s(S_TMP2)}, {s(S_TMP)}, 2"); e(f"s_add_u32 {s(S_TMP2)}, {s(S_TMP2)}, {LCS}")
        e(f"v_lshl_add_u32 v21, v2, 4, {s(S_TMP2)}")
        e(f"s_add_u32 {s(S_TMP)}, {s(S_TMP)}, {s(S_N0)}"); e(f"s_lshr_b32 {s(S_KA)}, {s(S_TMP)}, 3")
        e("v_lshlrev_b32 v4, 15, v2")
        e("v_lshl_add_u32 v4, v3, 4, v4"); e(f"v_add_u32 v22, {WS_H1}, v4")
        def reads(ks):
            fa = FA_ + 12 * ks; fb = FB_ + 4 * ks
            o = []
            for f in range(3):
                for u in range(2):
                    o.append(f"ds_read_b64_tr_b16 {v(fa+4*f+2*u,2)}, {v(VWc+f)} offset:{ks*6144+u*1536}")
            o.append(f"ds_read_b128 {v(fb,4)}, {v(VBc)} offset:{ks*2048}")
            return [o[6], o[0], o[1], o[2], o[3], o[4], o[5]]
        def mf(ks):
            fa = FA_ + 12 * ks; fb = FB_ + 4 * ks
            return [f"v_mfma_f32_32x32x16_bf16 {v(ACC+16*f,16)}, {v(fa+4*f,4)}, {v(fb,4)}, {v(ACC+16*f,16)}" for f in range(3)]
        def upd():
            return [f"v_add_u32 {v(VWc+f)}, {s(S_SLOT)}, {v(VW+f)}" for f in range(3)] + [f"v_add_u32 {v(VBc)}, {s(S_SLOT)}, {v(VB)}"]
        def step(ks, r):
            m = mf(ks)
            e(m[0]); e(r[0]); e(r[1]); e(r[2]); e(m[1]); e(r[3]); e(r[4]); e(m[2]); e(r[5]); e(r[6])
        e(f"s_mov_b32 {s(S_SLOT)}, 0"); e(f"s_mov_b32 {s(S_IT)}, 0")
        for t in upd(): e(t)
        self.bar("BP4a")
        self.stamp("C4go")
        self.bar("B40")
        for t in reads(0): e(t)
        for t in reads(1): e(t)
        self.lab("L_C4LOOP")
        e("s_waitcnt lgkmcnt(7)"); step(0, reads(2))
        e("s_waitcnt lgkmcnt(7)"); step(1, reads(3))
        e(f"s_add_u32 {s(S_SLOT)}, {s(S_SLOT)}, 32768")
        e(f"s_and_b32 {s(S_SLOT)}, {s(S_SLOT)}, {4*32768-1}")
        for t in upd(): e(t)
        e("s_waitcnt lgkmcnt(0)")
        self.itstamp(252, "B4")
        self.bar("B4loop")
        self.itstamp(253, "B4")
        step(2, reads(0))
        step(3, reads(1))
        e(f"s_add_u32 {s(S_IT)}, {s(S_IT)}, 1")
        e(f"s_cmp_lt_u32 {s(S_IT)}, 10")
        e("s_cbranch_scc1 L_C4LOOP")
        self.stamp("C4loop")
        e("s_waitcnt lgkmcnt(0)")
        self.bar("BC4")
        e("ds_read_b64 v[24:25], v20")
        for f in range(3):
            for j in range(4):
                e(f"ds_read_b128 {v(CS+16*f+4*j,4)}, v21 offset:{(32*f+8*j)*4}")
        e("v_mov_b32 v28, 1.0"); e("v_mov_b32 v29, 1.0")
        e("v_mov_b32 v26, 0xbfb8aa3b"); e("v_mov_b32 v27, 0xbfb8aa3b")
        for f in range(3):
            for t in range(2):
                dst = 82 + 2 * f + t
                e(f"s_add_u32 s{dst}, {s(S_KA)}, {4*f+2*t}")
                e(f"s_cmp_ge_u32 s{dst}, 80")
                e(f"s_cselect_b32 {s(S_TMP2)}, 80, 0")
                e(f"s_add_u32 s{dst}, s{dst}, {s(S_TMP2)}")
                e(f"s_lshl_b32 s{dst}, s{dst}, 15")
        e("s_waitcnt lgkmcnt(0)")
        for f in range(3):
            d = ACC + 16 * f; c = CS + 16 * f
            for i in range(0, 16, 2):
                e(f"v_pk_mul_f32 {v(d+i,2)}, {v(d+i,2)}, v[24:25] op_sel_hi:[1,0]")
            for i in range(0, 16, 2):
                e(f"v_pk_fma_f32 {v(d+i,2)}, {v(c+i,2)}, v[24:25], {v(d+i,2)} op_sel:[0,1,0] op_sel_hi:[1,1,1]")
            for i in range(0, 16, 2):
                e(f"v_pk_mul_f32 {v(c+i,2)}, {v(d+i,2)}, v[26:27]")
            for i in range(16):
                e(f"v_exp_f32 {v(c+i)}, {v(c+i)}")
            for i in range(0, 16, 2):
                e(f"v_pk_add_f32 {v(c+i,2)}, {v(c+i,2)}, v[28:29]")
            for i in range(16):
                e(f"v_rcp_f32 {v(c+i)}, {v(c+i)}")
            for i in range(0, 16, 2):
                e(f"v_pk_mul_f32 {v(d+i,2)}, {v(d+i,2)}, {v(c+i,2)}")
            for t in range(2):
                p = PK + 8 * f + 4 * t
                for q in range(4):
                    e(f"v_cvt_pk_bf16_f32 {v(p+q)}, {v(d+8*t+2*q)}, {v(d+8*t+2*q+1)}")
            self.store_mode([f"buffer_store_dwordx4 {v(PK+8*f+4*t,4)}, v22, {s(SRD_WS,4)}, s{82+2*f+t} offen" for t in range(2)])
        self.stamp("C4st")
        e("s_waitcnt vmcnt(0)")
        self.bar("BE4")
        self.stamp("C4end")
        e("s_branch L_P5")

    def ln2_stats_loop(self, lab, cs1=False):
        e = self.e
        e(f"s_and_b32 {s(S_TMP)}, {s(S_WV)}, 1")
        e(f"s_mov_b32 {s(S_KA)}, {s(S_TMP)}")
        e(f"s_lshl_b32 {s(S_TMP)}, {s(S_TMP)}, 10"); e(f"s_add_u32 {s(S_TMP)}, {s(S_TMP)}, 24576")
        e(f"v_lshl_add_u32 v8, v0, 4, {s(S_TMP)}")
        for i in range(72, 88): e(f"v_mov_b32 {v(i)}, 0")
        e("v_mov_b32 v7, 0xffff0000")
        if cs1:
            e(f"s_lshr_b32 {s(S_TMP)}, {s(S_N0)}, 7"); e(f"s_add_u32 {s(S_TMP2)}, {s(S_N0)}, 191"); e(f"s_lshr_b32 {s(S_TMP2)}, {s(S_TMP2)}, 7")
            e(f"v_mov_b32 v2, {s(S_TMP)}"); e(f"v_mov_b32 v3, {s(S_TMP2)}")
            e("v_cmp_eq_u32 vcc, 0, v0"); e("v_cndmask_b32 v2, v3, v2, vcc")
            e("v_and_b32 v3, 1, v2"); e("v_add_u32 v3, 30, v3"); e("v_lshlrev_b32 v3, 3, v3")
            e("v_lshrrev_b32 v2, 1, v2"); e("v_or_b32 v2, v2, v3"); e("v_lshlrev_b32 v4, 7, v2")
            e("v_mov_b32 v5, 2")
        e(f"s_mov_b32 {s(S_SLOT)}, 0"); e(f"s_mov_b32 {s(S_IT)}, 0")
        self.bar("B40")
        for ks in range(4): e(f"ds_read_b128 {v(16+4*ks,4)}, v8 offset:{ks*2048}")
        self.lab(lab)
        e(f"s_add_u32 {s(S_SLOT)}, {s(S_SLOT)}, 32768")
        e(f"s_and_b32 {s(S_SLOT)}, {s(S_SLOT)}, {4*32768-1}")
        e(f"v_add_u32 v9, {s(S_SLOT)}, v8")
        e("s_waitcnt lgkmcnt(0)")
        self.bar("B4loop")
        if cs1:
            La = self.L("L_c1"); Lb = self.L("L_c1")
            e(f"s_cmp_lg_u32 {s(S_IT)}, 5"); e(f"s_cbranch_scc1 {La}")
            e(f"buffer_load_dword v6, v4, {s(SRD_WS,4)}, 0 offen sc1")
            self.lab(La)
            e(f"s_cmp_lg_u32 {s(S_IT)}, 7"); e(f"s_cbranch_scc1 {Lb}")
            self.poll(4, 5, 6, preloaded=True)
            e(f"s_lshl_b32 {s(S_TMP)}, {s(S_N0)}, 2"); e(f"s_add_u32 {s(S_TMP)}, {s(S_TMP)}, {WS_CS1}")
            e("v_lshlrev_b32 v3, 4, v0")
            e(f"s_mov_b32 m0, {LDS_P4ST + 512}")
            e("s_mov_b32 exec_hi, 0xffff")
            e(f"buffer_load_dwordx4 v3, {s(SRD_WS,4)}, {s(S_TMP)} offen sc1 lds")
            e("s_mov_b32 exec_hi, -1")
            self.lab(Lb)
        for i in range(16):
            e(f"v_lshlrev_b32 {v(40+2*i)}, 16, {v(16+i)}")
            e(f"v_and_b32 {v(41+2*i)}, v7, {v(16+i)}")
        for ks in range(4): e(f"ds_read_b128 {v(16+4*ks,4)}, v9 offset:{ks*2048}")
        for i in range(32):
            a_ = 72 + (i & 7); q_ = 80 + (i & 7)
            e(f"v_add_f32 {v(a_)}, {v(a_)}, {v(40+i)}")
            e(f"v_fmac_f32 {v(q_)}, {v(40+i)}, {v(40+i)}")
        e(f"s_add_u32 {s(S_IT)}, {s(S_IT)}, 1")
        e(f"s_cmp_lt_u32 {s(S_IT)}, 10")
        e(f"s_cbranch_scc1 {lab}")
        e("v_pk_add_f32 v[72:73], v[72:73], v[74:75]"); e("v_pk_add_f32 v[76:77], v[76:77], v[78:79]")
        e("v_pk_add_f32 v[80:81], v[80:81], v[82:83]"); e("v_pk_add_f32 v[84:85], v[84:85], v[86:87]")
        e("v_pk_add_f32 v[10:11], v[72:73], v[76:77]"); e("v_pk_add_f32 v[12:13], v[80:81], v[84:85]")
        e("v_add_f32 v10, v10, v11"); e("v_add_f32 v12, v12, v13")
        e("v_mov_b32 v11, v10"); e("v_mov_b32 v13, v12")
        e("v_permlane32_swap_b32 v10, v11"); e("v_permlane32_swap_b32 v12, v13")
        e("v_add_f32 v10, v10, v11"); e("v_add_f32 v12, v12, v13")
        e("v_mul_f32 v10, 0x3acccccd, v10"); e("v_mul_f32 v12, 0x3acccccd, v12")
        e("v_fma_f32 v12, -v10, v10, v12"); e("v_max_f32 v12, 0, v12"); e("v_add_f32 v12, 0x3727c5ac, v12")
        e("v_rsq_f32 v14, v12"); e("v_mul_f32 v15, -1.0, v10"); e("v_mul_f32 v15, v15, v14")
        e("v_and_b32 v2, 31, v0"); e(f"s_lshl_b32 {s(S_TMP)}, {s(S_KA)}, 8"); e(f"s_add_u32 {s(S_TMP)}, {s(S_TMP)}, {LDS_P4ST}")
        e(f"v_lshl_add_u32 v2, v2, 3, {s(S_TMP)}")
        e("s_mov_b32 exec_hi, 0")
        e("ds_write_b64 v2, v[14:15]")
        e("s_mov_b32 exec_hi, -1")
        e("s_waitcnt vmcnt(0) lgkmcnt(0)")
        self.bar("BC4")

    def dma_group(self, items, base):
        e = self.e
        prev = None
        for (vg_, srd, so, lo, sc1) in items:
            if prev is None:
                e(f"s_add_u32 m0, {s(base)}, {lo}")
            elif lo - prev == 1024:
                e(f"s_add_u32 m0, m0, {s(S_C1024)}")
            else:
                e(f"s_add_u32 m0, m0, {lo - prev}")
            prev = lo
            e(f"buffer_load_dwordx4 {v(vg_)}, {s(srd,4)}, {s(so)} offen{' sc1' if sc1 else ''} lds")

    def ring_pre(self, wit, wadv, slot_bytes, nslot=4, split=None, between=None):
        e = self.e
        for st in range(nslot):
            e(f"s_add_u32 {s(S_TMP)}, {s(S_TMP3)}, {st*slot_bytes}")
            self.dma_group(wit, S_TMP)
            e(f"s_add_u32 {s(S_KW)}, {s(S_KW)}, {wadv}")
            if between and st in between: between[st]()

    def ring_main(self, wit, ait, wadv, aadv, nst, slot_bytes, tag, lab, nslot=4, jump=None):
        e = self.e
        nw, na = len(wit), len(ait); per = nw + na
        for st in range(nslot):
            e(f"s_add_u32 {s(S_TMP)}, {s(S_TMP4)}, {st*slot_bytes}")
            self.dma_group(ait, S_TMP)
            e(f"s_add_u32 {s(S_KA)}, {s(S_KA)}, {aadv}")
            if st == 1:
                e(f"s_waitcnt vmcnt({na})")
                self.bar(tag + "0")
        e(f"s_mov_b32 {s(S_IT)}, 0")
        e(f"s_mov_b32 {s(S_FILL)}, 0")
        self.lab(lab)
        Lw = [self.L("L_rw") for _ in range(5)]; Lt = self.L("L_t"); Ls = self.L("L_s")
        self.itstamp(250, tag)
        e(f"s_cmp_eq_u32 {s(S_IT)}, 0"); e(f"s_cbranch_scc1 {Lw[0]}")
        e(f"s_cmp_eq_u32 {s(S_IT)}, 1"); e(f"s_cbranch_scc1 {Lw[1]}")
        e(f"s_cmp_eq_u32 {s(S_IT)}, {nst-3}"); e(f"s_cbranch_scc1 {Lw[2]}")
        e(f"s_cmp_gt_u32 {s(S_IT)}, {nst-3}"); e(f"s_cbranch_scc1 {Lw[3]}")
        e(f"s_waitcnt vmcnt({min(63, 2*per)})"); e(f"s_branch {Lt}")
        self.lab(Lw[0]); e(f"s_waitcnt vmcnt({2*na})"); e(f"s_branch {Lt}")
        self.lab(Lw[1]); e(f"s_waitcnt vmcnt({na+per})"); e(f"s_branch {Lt}")
        self.lab(Lw[2]); e(f"s_waitcnt vmcnt({per})"); e(f"s_branch {Lt}")
        self.lab(Lw[3]); e("s_waitcnt vmcnt(0)")
        self.lab(Lt)
        self.itstamp(251, tag)
        self.bar(tag + "loop")
        self.itstamp(252, tag)
        e(f"s_cmp_gt_u32 {s(S_IT)}, {nst-nslot-1}")
        e(f"s_cbranch_scc1 {Ls}")
        e(f"s_add_u32 {s(S_TMP)}, {s(S_TMP4)}, {s(S_FILL)}")
        self.dma_group(ait, S_TMP)
        e(f"s_add_u32 {s(S_TMP)}, {s(S_TMP3)}, {s(S_FILL)}")
        self.dma_group(wit, S_TMP)
        e(f"s_add_u32 {s(S_KA)}, {s(S_KA)}, {aadv}")
        e(f"s_add_u32 {s(S_KW)}, {s(S_KW)}, {wadv}")
        if jump:
            Lj = self.L("L_jp")
            e(f"s_cmp_lg_u32 {s(S_IT)}, {jump[0]}"); e(f"s_cbranch_scc1 {Lj}")
            e(f"s_add_u32 {s(S_KA)}, {s(S_KA)}, {jump[1]}")
            self.lab(Lj)
        self.lab(Ls)
        self.itstamp(253, tag)
        e(f"s_add_u32 {s(S_FILL)}, {s(S_FILL)}, {slot_bytes}")
        e(f"s_cmp_eq_u32 {s(S_FILL)}, {nslot*slot_bytes}")
        e(f"s_cselect_b32 {s(S_FILL)}, 0, {s(S_FILL)}")
        e(f"s_add_u32 {s(S_IT)}, {s(S_IT)}, 1")
        e(f"s_cmp_lt_u32 {s(S_IT)}, {nst}")
        e(f"s_cbranch_scc1 {lab}")

    def l4_setup(self):
        e = self.e
        e(f"s_lshr_b32 {s(S_R)}, {s(S_I)}, 3")
        e(f"s_and_b32 {s(S_T)}, {s(S_I)}, 7")
        e(f"s_lshl_b32 {s(S_T0)}, {s(S_G)}, 8")
        e(f"s_lshl_b32 {s(S_TMP)}, {s(S_R)}, 6")
        e(f"s_add_u32 {s(S_T0)}, {s(S_T0)}, {s(S_TMP)}")
        e(f"s_mul_i32 {s(S_N0)}, {s(S_T)}, 192")
        for ev in range(3):
            e(f"v_add_u32 v2, {64*ev}, v0")
            e("v_mul_u32_u24 v3, 171, v2"); e("v_lshrrev_b32 v3, 12, v3")
            e("v_mul_u32_u24 v4, 24, v3"); e("v_sub_u32 v4, v2, v4")
            e("v_bfe_u32 v5, v3, 1, 1"); e("v_lshlrev_b32 v5, 2, v5"); e("v_xor_b32 v4, v4, v5")
            e("v_and_b32 v5, 3, v3"); e("v_lshrrev_b32 v6, 2, v3"); e("v_lshl_add_u32 v5, v6, 3, v5")
            e("v_mul_u32_u24 v5, 3072, v5")
            e(f"v_lshl_add_u32 {v(8+ev)}, v4, 4, v5")
        for m in range(1, 4):
            roff = (16 * (m >> 1) + 4 * (m & 1)) * 3072
            for ev in range(3):
                e(f"v_add_u32 {v(8+3*m+ev)}, {roff}, {v(8+ev)}")
        e("v_lshrrev_b32 v2, 5, v0"); e("v_and_b32 v3, 31, v0")
        e("v_lshlrev_b32 v2, 15, v2")
        e("v_lshl_add_u32 v20, v3, 4, v2")
        for idx in range(1, 4):
            e(f"v_add_u32 {v(20+idx)}, {(idx>>1)*2*CH + (idx&1)*512}, v20")
        e(f"s_and_b32 {s(S_IT)}, {s(S_WV)}, 1")
        e(f"s_lshl_b32 {s(S_TMP)}, {s(S_N0)}, 1")
        self.srd(SRD_W, S_W1, S_TMP, 640 * 3072)
        e(f"s_mul_i32 {s(S_KW)}, {s(S_IT)}, {32*3072}")
        e(f"s_lshl_b32 {s(S_KA)}, {s(S_T0)}, 4")
        e(f"s_add_u32 {s(S_KA)}, {s(S_KA)}, {WS_H}")
        e(f"s_mul_i32 {s(S_TMP)}, {s(S_IT)}, {4*CH}")
        e(f"s_add_u32 {s(S_KA)}, {s(S_KA)}, {s(S_TMP)}")
        e(f"s_mul_i32 {s(S_TMP3)}, {s(S_IT)}, 12288")
        e(f"s_lshl_b32 {s(S_TMP4)}, {s(S_IT)}, 12")
        e(f"s_add_u32 {s(S_TMP4)}, {s(S_TMP4)}, 24576")
        wit = [(8 + q, SRD_W, S_KW, q * 1024, False) for q in range(12)]
        ait = [(20 + q, SRD_WS, S_KA, q * 1024, True) for q in range(4)]
        return wit, ait

    def l5_setup(self):
        e = self.e
        self.p3_decode()
        self.wrow_voffsets(8, None, 1280)
        for m in range(1, 8):
            e(f"v_add_u32 {v(8+m)}, {(16*(m>>1)+4*(m&1))*1280}, v8")
        e("v_lshrrev_b32 v2, 5, v0"); e("v_and_b32 v3, 31, v0")
        e("v_lshlrev_b32 v2, 15, v2")
        e("v_lshl_add_u32 v20, v3, 4, v2")
        for idx in range(1, 12):
            e(f"v_add_u32 {v(20+idx)}, {(idx//3)*2*CH + (idx%3)*512}, v20")
        e(f"s_and_b32 {s(S_IT)}, {s(S_WV)}, 1")
        e(f"s_lshl_b32 {s(S_TMP)}, {s(S_T)}, 7")
        self.srd(SRD_W, S_W2, S_TMP, 1536 * 1280)
        e(f"s_mul_i32 {s(S_KW)}, {s(S_IT)}, {64*1280}")
        e(f"s_lshl_b32 {s(S_KA)}, {s(S_T0)}, 4")
        e(f"s_add_u32 {s(S_KA)}, {s(S_KA)}, {WS_H1}")
        e(f"s_mul_i32 {s(S_TMP)}, {s(S_IT)}, {8*CH}")
        e(f"s_add_u32 {s(S_KA)}, {s(S_KA)}, {s(S_TMP)}")
        e(f"s_lshl_b32 {s(S_TMP3)}, {s(S_IT)}, 13")
        e(f"s_mul_i32 {s(S_TMP4)}, {s(S_IT)}, 12288")
        e(f"s_add_u32 {s(S_TMP4)}, {s(S_TMP4)}, 16384")
        wit = [(8 + q, SRD_W, S_KW, q * 1024, False) for q in range(8)]
        ait = [(20 + q, SRD_WS, S_KA, q * 1024, True) for q in range(12)]
        return wit, ait

    def phase5(self):
        e = self.e
        self.role = "P5"
        self.lab("L_P5")
        e(f"s_cmp_ge_u32 {s(S_I)}, 30")
        e("s_cbranch_scc1 L_FIN")
        self.p3_decode()
        self.role_dispatch(5)
        SL = 40960
        self.role = "L"
        e("s_endpgm")
        self.lab("L_L5B")
        self.bar("BP5a")
        self.stamp("L5go")
        self.ring_main(self.wit5, self.ait5, 0 if self.exp & 16 else 128 * 1280, 0 if self.exp & 32 else 16 * CH, 12, SL, "B5", "L_L5LOOP", jump=(0, 80 * CH))
        self.bar("BR5")
        e("s_branch L_FIN")
        self.role = "S"
        self.lab("L_S5")
        e(f"s_mov_b32 {s(S_TMP4)}, 0xffff")
        e(f"s_cmp_eq_u32 {s(S_R)}, 1"); e(f"s_cselect_b32 {s(S_TMP4)}, 0xffff00, {s(S_TMP4)}")
        e(f"s_cmp_eq_u32 {s(S_R)}, 2"); e(f"s_cselect_b32 {s(S_TMP4)}, 0xff000000, {s(S_TMP4)}")
        self.poll_fb(5, S_TMP4)
        self.bar("BP5a")
        self.simple_bar_loop("B5", 12, "L_S5LOOP")
        self.bar("BR5")
        e("s_branch L_FIN")
        self.role = "X"
        self.lab("L_X5")
        self.bar("BP5a")
        self.simple_bar_loop("B5", 12, "L_X5LOOP")
        self.bar("BR5")
        e("s_branch L_FIN")
        self.role = "C"
        self.lab("L_C5")
        ACC = 64; FA_ = 112; FB_ = 192; VW = 16; VB = 18; RED = 160
        HR = self.HRES
        e("v_and_b32 v1, 31, v0")
        e(f"v_add_u32 v3, {s(S_T0)}, v1")
        e("v_mul_u32_u24 v4, 1280, v3")
        e(f"s_lshl_b32 {s(S_TMP)}, {s(S_T)}, 6")
        e(f"s_and_b32 {s(S_TMP2)}, {s(S_WV)}, 1"); e(f"s_lshl_b32 {s(S_TMP2)}, {s(S_TMP2)}, 5")
        e(f"s_add_u32 {s(S_TMP)}, {s(S_TMP)}, {s(S_TMP2)}")
        e(f"s_lshr_b32 {s(S_TMP2)}, {s(S_WV)}, 1"); e(f"s_lshl_b32 {s(S_TMP2)}, {s(S_TMP2)}, 4")
        e(f"s_add_u32 {s(S_N0)}, {s(S_TMP)}, {s(S_TMP2)}")
        e("v_lshrrev_b32 v2, 5, v0")
        e(f"v_lshl_add_u32 v5, v2, 3, {s(S_N0)}")
        e("v_lshl_add_u32 v20, v5, 1, v4")
        self.srd(SRD_T, S_OUT, size=2048 * 1280)
        self.frag_addr_w128(VW, 1024, 0)
        e(f"s_lshr_b32 {s(S_TMP)}, {s(S_WV)}, 1")
        e(f"s_lshl_b32 {s(S_TMP2)}, {s(S_TMP)}, 11")
        e(f"v_add_u32 {v(VW)}, {s(S_TMP2)}, {v(VW)}")
        e(f"s_mul_i32 {s(S_TMP)}, {s(S_TMP)}, 3072")
        e(f"s_add_u32 {s(S_TMP)}, {s(S_TMP)}, 16384")
        e(f"v_lshl_add_u32 {v(VB)}, v0, 4, {s(S_TMP)}")
        for i in range(0, 48, 2): e(f"v_mov_b64 {v(ACC+i,2)}, 0")
        self.bar("BP5a")
        self.stamp("C5go")
        self.gemm96_loop("B5", 12, SL, 4, 0, 0, 2048, VW, VB, ACC, FA_, FB_, wres=False)
        self.stamp("C5loop")
        sv = list(self.bars["C"])
        self.pair_reduce(ACC, 0, RED)
        self.bars["C"] = sv + ["BR5"]
        for tt in range(3):
            for q in range(4):
                x = HR + 4 * tt + q; d = RED + 8 * tt + 2 * q
                e(f"v_lshlrev_b32 v2, 16, {v(x)}")
                e(f"v_and_b32 v3, 0xffff0000, {v(x)}")
                e(f"v_add_f32 {v(d)}, {v(d)}, v2")
                e(f"v_add_f32 {v(d+1)}, {v(d+1)}, v3")
                e(f"v_cvt_pk_bf16_f32 {v(24+4*tt+q)}, {v(d)}, {v(d+1)}")
            e(f"v_permlane32_swap_b32 {v(24+4*tt)}, {v(24+4*tt+2)}")
            e(f"v_permlane32_swap_b32 {v(24+4*tt+1)}, {v(24+4*tt+3)}")
            if tt == 2:
                Ls = self.L("L_c5s")
                e(f"s_cmp_eq_u32 {s(S_R)}, 2"); e(f"s_cbranch_scc1 {Ls}")
            e(f"s_mov_b32 {s(S_TMP)}, {tt*32*1280}")
            e(f"buffer_store_dwordx4 {v(24+4*tt,4)}, v20, {s(SRD_T,4)}, {s(S_TMP)} offen")
            if tt == 2: self.lab(Ls)
        self.stamp("C5end")
        e("s_branch L_FIN")

    def colsum_role(self):
        e = self.e
        self.role = "CS"
        self.lab("L_COLSUM")
        e("s_waitcnt lgkmcnt(0)")
        self.srd(SRD_WS, S_WS, size=WS_SIZE)
        e(f"s_getreg_b32 {s(S_XCC)}, hwreg(HW_REG_XCC_ID, 0, 4)")
        e(f"s_lshl_b32 {s(S_T)}, {s(S_G)}, 1")
        e(f"s_add_u32 {s(S_T)}, {s(S_T)}, {s(S_I)}")
        e(f"s_sub_u32 {s(S_T)}, {s(S_T)}, 30")
        Lw = self.L("L_w")
        e(f"s_cmp_lg_u32 {s(S_WV)}, 6")
        e(f"s_cbranch_scc1 {Lw}")
        self.clear_flags()
        e("s_waitcnt vmcnt(0)")
        if not (self.exp & 4): self.handshake_store()
        self.lab(Lw)
        e(f"s_mov_b32 {s(S_FILL)}, 0")
        e(f"s_cmp_ge_u32 {s(S_T)}, 15"); e("s_cbranch_scc1 L_CS_DONE")
        e(f"s_lshl_b32 {s(S_TMP)}, {s(S_T)}, 8")
        self.srd(SRD_W, S_WQKV, S_TMP, 640 * 3840)
        e(f"s_mov_b32 {s(S_N0)}, 3840"); e(f"s_mov_b32 {s(S_R)}, {WS_CSQ}")
        e("s_branch L_CS_BODY")
        self.lab("L_CS1")
        e(f"s_lshl_b32 {s(S_T)}, {s(S_G)}, 1")
        e(f"s_add_u32 {s(S_T)}, {s(S_T)}, {s(S_I)}")
        e(f"s_sub_u32 {s(S_T)}, {s(S_T)}, 30")
        e(f"s_mov_b32 {s(S_FILL)}, 1")
        e(f"s_cmp_ge_u32 {s(S_T)}, 12"); e("s_cbranch_scc1 L_CS_DONE")
        e(f"s_lshl_b32 {s(S_TMP)}, {s(S_T)}, 8")
        self.srd(SRD_W, S_W1, S_TMP, 640 * 3072)
        e(f"s_mov_b32 {s(S_N0)}, 3072"); e(f"s_mov_b32 {s(S_R)}, {WS_CS1}")
        self.lab("L_CS_BODY")
        e("v_lshrrev_b32 v1, 4, v0")
        e(f"s_lshl_b32 {s(S_TMP)}, {s(S_WV)}, 2")
        e(f"v_add_u32 v1, {s(S_TMP)}, v1")
        e(f"v_mul_lo_u32 v2, v1, {s(S_N0)}")
        e("v_and_b32 v3, 15, v0")
        e("v_lshl_add_u32 v2, v3, 4, v2")
        for i in range(8): e(f"v_mov_b32 {v(8+i)}, 0")
        e(f"s_mov_b32 {s(S_KW)}, 0")
        e(f"s_lshl_b32 {s(S_KA)}, {s(S_N0)}, 5")
        NB = 20
        for b in range(NB):
            e(f"buffer_load_dwordx4 {v(32+4*b,4)}, v2, {s(SRD_W,4)}, {s(S_KW)} offen")
            e(f"s_add_u32 {s(S_KW)}, {s(S_KW)}, {s(S_KA)}")
        for b in range(NB):
            if b % 4 == 0: e(f"s_waitcnt vmcnt({NB-4-b})")
            for q in range(4):
                e(f"v_lshlrev_b32 v4, 16, {v(32+4*b+q)}")
                e(f"v_and_b32 v5, 0xffff0000, {v(32+4*b+q)}")
                e(f"v_add_f32 {v(8+2*q)}, {v(8+2*q)}, v4")
                e(f"v_add_f32 {v(8+2*q+1)}, {v(8+2*q+1)}, v5")
        e("v_lshlrev_b32 v4, 9, v1")
        e("v_lshl_add_u32 v4, v3, 5, v4")
        e("ds_write_b128 v4, v[8:11]")
        e("ds_write_b128 v4, v[12:15] offset:16")
        e("s_waitcnt lgkmcnt(0)")
        e("s_barrier")
        Lw = self.L("L_w")
        e(f"s_cmp_ge_u32 {s(S_WV)}, 2")
        e(f"s_cbranch_scc1 {Lw}")
        e(f"s_lshl_b32 {s(S_TMP)}, {s(S_WV)}, 6")
        e(f"v_add_u32 v1, {s(S_TMP)}, v0")
        e("v_lshlrev_b32 v2, 2, v1")
        for k in range(32):
            e(f"ds_read_b32 {v(32+k)}, v2 offset:{512*k}")
        e("s_waitcnt lgkmcnt(0)")
        for k in range(1, 32):
            e(f"v_add_f32 v32, v32, {v(32+k)}")
        e(f"s_lshl_b32 {s(S_TMP)}, {s(S_T)}, 9")
        e(f"s_add_u32 {s(S_TMP)}, {s(S_TMP)}, {s(S_R)}")
        e(f"v_add_u32 v2, {s(S_TMP)}, v2")
        e(f"buffer_store_dword v32, v2, {s(SRD_WS,4)}, 0 offen sc1")
        e("s_waitcnt vmcnt(0)")
        self.lab(Lw)
        e("s_barrier")
        self.lab("L_CS_DONE")
        Lw = self.L("L_w"); Lz = self.L("L_w")
        e(f"s_cmp_lg_u32 {s(S_WV)}, 6")
        e(f"s_cbranch_scc1 {Lw}")
        e(f"s_cmp_eq_u32 {s(S_FILL)}, 1"); e(f"s_cbranch_scc1 {Lz}")
        self.set_fa(1)
        self.s_hs_issue(first=True)
        self.s_hs_verify()
        self.s_hs_all()
        e(f"s_branch {Lw}")
        self.lab(Lz)
        self.set_fa(2)
        self.lab(Lw)
        e(f"s_cmp_eq_u32 {s(S_FILL)}, 1"); e("s_cbranch_scc1 L_P4")
        e("s_branch L_P2")

    def finish(self):
        e = self.e
        self.lab("L_FIN")
        if self.prof:
            e("s_memtime s[98:99]")
            e("s_waitcnt lgkmcnt(0)")
            e("v_writelane_b32 v255, s98, 63")
            e("s_memrealtime s[98:99]")
            e("s_waitcnt lgkmcnt(0)")
            e("v_writelane_b32 v255, s98, 62")
            e(f"s_lshl_b32 {s(S_TMP)}, s2, 11")
            e(f"s_lshl_b32 {s(S_TMP2)}, {s(S_WV)}, 8")
            e(f"s_add_u32 {s(S_TMP)}, {s(S_TMP)}, {s(S_TMP2)}")
            e(f"s_add_u32 {s(S_TMP)}, {s(S_TMP)}, {WS_PROF}")
            e("v_mbcnt_lo_u32_b32 v1, -1, 0")
            e("v_mbcnt_hi_u32_b32 v1, -1, v1")
            e("v_lshlrev_b32 v1, 2, v1")
            e(f"buffer_store_dword v255, v1, {s(SRD_WS,4)}, {s(S_TMP)} offen")
            if self.itphase:
                for q in range(4):
                    e(f"s_add_u32 {s(S_TMP)}, {s(S_TMP)}, {0x80000}")
                    e(f"buffer_store_dword v{250+q}, v1, {s(SRD_WS,4)}, {s(S_TMP)} offen")
        self.lab("L_END")
        e("s_endpgm")
        self.lab("L_CODE_END")

    def build(self):
        self.entry()
        self.p1_loader()
        self.p1_sync()
        self.p1_aux()
        self.p1_compute()
        self.colsum_role()
        self.phase2()
        self.bars_p1 = {r: list(self.bars[r]) for r in ("C", "L", "S", "X")}
        self.phase3()
        self.phase4()
        self.phase5()
        self.finish()
        def norm(lst):
            out = []
            for b in lst:
                if out and out[-1] == b and b.endswith("loop"): continue
                out.append(b)
            return out
        ref = norm(self.bars["C"])
        for r in ("L", "S", "X"):
            assert norm(self.bars[r]) == ref, (r, norm(self.bars[r]), ref)
        body = self.A.finalize()
        hdr = open("cdna_kernels/" + NAME + ".s.ref").read().split("; Override")[0]
        out = hdr + "; @launch grid=(256,1,1) block=(512,1,1) lds=163840\n"
        out += '.amdgcn_target "amdgcn-amd-amdhsa--gfx950"\n.text\n'
        k = NAME + "_kernel"
        out += f".globl {k}\n.p2align 8\n.type {k},@function\n{k}:\n"
        out += body
        out += f""".section .rodata,"a"
.p2align 6
.amdhsa_kernel {k}
  .amdhsa_next_free_vgpr 256
  .amdhsa_next_free_sgpr 102
  .amdhsa_accum_offset 256
  .amdhsa_group_segment_fixed_size 0
  .amdhsa_kernarg_size 72
  .amdhsa_user_sgpr_count 2
  .amdhsa_user_sgpr_kernarg_segment_ptr 1
  .amdhsa_system_sgpr_workgroup_id_x 1
  .amdhsa_float_denorm_mode_32 3
.end_amdhsa_kernel
"""
        return out

if __name__ == "__main__":
    import argparse, subprocess
    ap = argparse.ArgumentParser()
    ap.add_argument("-o", default="k.s")
    ap.add_argument("--stop", type=int, default=99)
    ap.add_argument("--prof", action="store_true")
    ap.add_argument("--exp", type=int, default=0)
    ap.add_argument("--itphase", default=None)
    ap.add_argument("--h1it", type=int, default=5)
    a_ = ap.parse_args()
    g = Gen(stop=a_.stop, prof=a_.prof); g.exp = a_.exp; g.itphase = a_.itphase; g.h1it = a_.h1it
    txt = g.build()
    open(a_.o, "w").write(txt)
    print("nops inserted:", g.A.nops_inserted, "lines:", txt.count("\n"), "stamps:", g.stampnames)
    import json; json.dump(g.stampnames, open(a_.o + ".stamps.json", "w"))
    r = subprocess.run(["clang", "-x", "assembler", "-target", "amdgcn-amd-amdhsa", "-mcpu=gfx950", "-c", a_.o, "-o", "k.o"], capture_output=True, text=True)
    if r.returncode: print(r.stderr[:3000]); sys.exit(1)
    r = subprocess.run("llvm-objdump -h k.o | grep text", shell=True, capture_output=True, text=True); print(r.stdout.strip())
```
